```python
import torch

def _softmax(x, axis=-1):
    return torch.softmax(x, dim=axis)
def _gelu(x):
    return torch.nn.functional.gelu(x, approximate="tanh")
def _silu(x):
    return torch.nn.functional.silu(x)
def _sigmoid(x):
    return torch.sigmoid(x)
def _layernorm(x, axis=-1, eps=1e-5):
    m = x.mean(dim=axis, keepdim=True)
    v = x.var(dim=axis, keepdim=True, unbiased=False)
    return (x - m) / torch.sqrt(v + eps)
def _scatter_add(tgt, idx, src, axis=0):
    return tgt.clone().index_add_(axis, idx, src)
def _segment_sum(src, seg, n):
    out = torch.zeros((n,) + src.shape[1:], dtype=src.dtype)
    return out.index_add_(0, seg, src)
def _pad(x, pw):
    flat = tuple(v for pair in reversed(pw) for v in pair)
    return torch.nn.functional.pad(x, flat)

kernel_name = 'parallel_sum__linear_kernel_hedgehog__mixer_token_mlp__prompt'

def setup_inputs():

    _w = (lambda a: (lambda t: t.to(torch.bfloat16) if t.is_floating_point() else t)(torch.as_tensor(a)))
    def _A_setup():
        B, S, D, H = 1, 2048, 512, 32
        Dh = D // H
        return {
            "x": _w((lambda *s: torch.randn(*s, dtype=torch.bfloat16) * 0.05)(B, S, D)),
            "wqkv": _w((lambda *s: torch.randn(*s, dtype=torch.bfloat16) * 0.2)(D, 3 * D)),
            "w_phi": _w((lambda *s: torch.randn(*s, dtype=torch.bfloat16) * 0.2)(H, Dh, Dh) * (Dh ** -0.5)),
            "wo": _w((lambda *s: torch.randn(*s, dtype=torch.bfloat16) * 0.05)(D, D)),
        }
    _A_in = _A_setup()

    def _B_setup():
        B, S, D, F = 1, 2048, 512, 1376
        return {
            "x": _w((lambda *s: torch.randn(*s, dtype=torch.bfloat16) * 0.05)(B, S, D)),
            "w1": _w((lambda *s: torch.randn(*s, dtype=torch.bfloat16) * 0.8)(S, F) * (S ** -0.5)),
            "b1": _w((lambda *s: torch.randn(*s, dtype=torch.bfloat16) * 3.2)(F) * 0.02),
            "w2": _w((lambda *s: torch.randn(*s, dtype=torch.bfloat16) * 0.4)(F, S) * (F ** -0.5)),
            "b2": _w((lambda *s: torch.randn(*s, dtype=torch.bfloat16) * 1.6)(S) * 0.02),
        }
    _B_in = _B_setup()

    return {
        "A_x": _A_in["x"],
        "A_wqkv": _A_in["wqkv"],
        "A_w_phi": _A_in["w_phi"],
        "A_wo": _A_in["wo"],
        "B_x": _B_in["x"],
        "B_w1": _B_in["w1"],
        "B_b1": _B_in["b1"],
        "B_w2": _B_in["w2"],
        "B_b2": _B_in["b2"],
    }

def reference(A_x, A_wqkv, A_w_phi, A_wo, B_x, B_w1, B_b1, B_w2, B_b2):
    def _A_ref(x, wqkv, w_phi, wo):
        B, S, D = x.shape
        H = 32; Dh = D // H
        qkv = (lambda x, *d: x.permute(*d))((x @ wqkv).reshape(B, S, 3, H, Dh), 2, 0, 3, 1, 4)
        q, k, v = qkv[0], qkv[1], qkv[2]
        pq = torch.einsum("bhsd,hdf->bhsf", q, w_phi)
        pk = torch.einsum("bhsd,hdf->bhsf", k, w_phi)
        phi_q = torch.concatenate([_softmax(pq, axis=-1), _softmax(-pq, axis=-1)], axis=-1)
        phi_k = torch.concatenate([_softmax(pk, axis=-1), _softmax(-pk, axis=-1)], axis=-1)
        kv = torch.einsum("bhsf,bhsd->bhfd", phi_k, v)
        z  = torch.einsum("bhsf->bhf", phi_k)
        num = torch.einsum("bhqf,bhfd->bhqd", phi_q, kv)
        den = torch.einsum("bhqf,bhf->bhq", phi_q, z)[..., None] + 1e-6
        o = num / den
        return (lambda x, *d: x.permute(*d))(o, 0, 2, 1, 3).reshape(B, S, D) @ wo

    def _B_ref(x, w1, b1, w2, b2):
        B, S, D = x.shape
        h = _layernorm(x, axis=-1)
        u = torch.einsum("bsd,sf->bdf", h, w1) + b1
        u = _gelu(u)
        y = torch.einsum("bdf,fs->bds", u, w2) + b2
        return (lambda x, *d: x.permute(*d))(y, 0, 2, 1)

    x = A_x
    xn = _layernorm(x, axis=-1)
    return x + _A_ref(xn, A_wqkv, A_w_phi, A_wo) + _B_ref(xn, B_w1, B_b1, B_w2, B_b2)
```

```python
import re

_REG = re.compile(r'^(-?\|?)([vas])(\d+)\|?$')
_RNG = re.compile(r'^(-?\|?)([vas])\[(\d+):(\d+)\]\|?$')
_ABS = re.compile(r'^-?abs\((.*)\)$')


def regs_of(op):
    op = op.strip()
    m = _ABS.match(op)
    if m:
        op = m.group(1)
    m = _REG.match(op)
    if m:
        return {(m.group(2), int(m.group(3)))}
    m = _RNG.match(op)
    if m:
        return {(m.group(2), i) for i in range(int(m.group(3)), int(m.group(4)) + 1)}
    if op in ('vcc', 'vcc_lo', 'vcc_hi'):
        return {('vcc', 0)}
    if op in ('exec', 'exec_lo', 'exec_hi'):
        return {('exec', 0)}
    if op == 'm0':
        return {('m0', 0)}
    return set()


TRANS = ('v_exp_', 'v_log_', 'v_rcp_', 'v_rsq_', 'v_sqrt_', 'v_sin_', 'v_cos_')


class Ins:
    __slots__ = ('text', 'mn', 'ops', 'cls', 'wr', 'rd', 'srcA', 'srcB', 'srcC', 'passes', 'pos',
                 'dpp', 'trans', 'dot', 'perm', 'data', 'wide', 'lds_dma', 'sregs_rd', 'rdlane')

    def __init__(self, text):
        self.text = text
        t = text.split(';')[0].strip()
        parts = t.split(None, 1)
        self.mn = parts[0]
        rest = parts[1] if len(parts) > 1 else ''
        ops, cur, depth = [], '', 0
        for ch in rest:
            if ch in '[(':
                depth += 1
            if ch in '])':
                depth -= 1
            if ch == ',' and depth == 0:
                ops.append(cur.strip())
                cur = ''
            else:
                cur += ch
        if cur.strip():
            ops.append(cur.strip())
        mods = ''
        if ops:
            sp = ops[-1].split(None, 1)
            ops[-1] = sp[0]
            if len(sp) > 1:
                mods = sp[1]
        self.ops = ops
        mn = self.mn
        self.wr, self.rd = set(), set()
        self.srcA = self.srcB = self.srcC = set()
        self.passes = 0
        self.dpp = '_dpp' in mn or 'quad_perm' in mods or 'row_' in mods
        self.trans = mn.startswith(TRANS)
        self.dot = mn.startswith('v_dot')
        self.perm = mn.startswith('v_permlane')
        self.rdlane = mn.startswith(('v_readlane', 'v_readfirstlane'))
        self.data = set()
        self.wide = False
        self.lds_dma = False
        R = [regs_of(o) for o in ops]
        if mn.startswith('v_mfma'):
            self.cls = 'mfma'
            self.wr = R[0]
            self.srcA, self.srcB, self.srcC = R[1], R[2], R[3]
            self.rd = R[1] | R[2] | R[3]
            self.passes = 8 if '32x32x16' in mn else 4
            assert '32x32x16_bf16' in mn or '16x16x32_bf16' in mn, mn
        elif mn.startswith('v_'):
            self.cls = 'valu'
            if self.perm:
                self.wr = R[0] | R[1]
                self.rd = R[0] | R[1]
            elif mn.startswith('v_cmpx'):
                self.wr = R[0] | {('exec', 0)}
                self.rd = set().union(*R[1:])
            elif '_co_' in mn:
                self.wr = R[0] | R[1]
                self.rd = set().union(*R[2:])
            else:
                self.wr = R[0]
                self.rd = set().union(*R[1:]) if len(R) > 1 else set()
                if mn.startswith(('v_fmac', 'v_dot2c', 'v_pk_fmac', 'v_writelane')):
                    self.rd |= R[0]
                if self.dpp:
                    self.rd |= R[0]
        elif mn.startswith('ds_'):
            self.cls = 'ds'
            if mn.startswith(('ds_read', 'ds_bpermute', 'ds_permute', 'ds_swizzle')):
                self.wr = R[0]
                self.rd = set().union(*R[1:])
            else:
                self.rd = set().union(*R)
        elif mn.startswith(('buffer_', 'global_')):
            self.cls = 'vmem'
            allm = ' ' + mods + ' '
            if mn in ('buffer_wbl2', 'buffer_inv'):
                pass
            elif ' lds ' in allm or '_lds_' in mn:
                self.lds_dma = True
                self.rd = set().union(*R) | {('m0', 0)}
            elif '_load' in mn:
                self.wr = R[0]
                self.rd = set().union(*R[1:])
            else:
                self.rd = set().union(*R)
                if mn.startswith('buffer_'):
                    self.data = R[0]
                else:
                    self.data = R[1]
                self.wide = mn.endswith(('x3', 'x4'))
                if 'atomic' in mn and ' sc0 ' in allm:
                    self.wr = self.data
        elif mn.startswith('s_'):
            self.cls = 'salu'
            if mn.startswith(('s_cmp', 's_waitcnt', 's_barrier', 's_nop', 's_branch', 's_cbranch', 's_endpgm',
                              's_setprio', 's_sleep', 's_bitcmp')):
                self.rd = set().union(*R) if R else set()
            else:
                self.wr = R[0] if R else set()
                self.rd = set().union(*R[1:]) if len(R) > 1 else set()
                if 'saveexec' in mn:
                    self.wr = self.wr | {('exec', 0)}
        else:
            raise ValueError('unknown instruction ' + text)


def need_ws(p, c):
    n = 0
    vec = lambda s: {r for r in s if r[0] in 'va'}
    sc = lambda s: {r for r in s if r[0] in ('s', 'vcc')}
    if p.cls == 'mfma':
        D = p.wr
        if c.cls == 'mfma':
            if D & (c.srcA | c.srcB):
                n = max(n, {4: 8, 8: 12}[p.passes])
            if D & c.srcC:
                if c.srcC == D and c.passes == p.passes:
                    pass
                else:
                    n = max(n, {4: 6, 8: 10}[p.passes])
            elif D & c.wr:
                n = max(n, {4: 8, 8: 12}[p.passes])
        else:
            if D & (c.rd | c.wr):
                n = max(n, {4: 8, 8: 12}[p.passes])
            if c.cls == 'valu' and (p.srcC & c.wr):
                n = max(n, {4: 3, 8: 7}[p.passes])
    elif p.cls == 'valu':
        if c.cls == 'mfma':
            if vec(p.wr) & c.rd:
                n = max(n, 3 if p.dot else 2)
            if ('exec', 0) in p.wr:
                n = max(n, 4)
        if c.cls == 'valu':
            if vec(p.wr) & c.rd:
                if c.dpp or c.perm:
                    n = max(n, 2)
                if c.rdlane:
                    n = max(n, 1)
                if p.trans and not c.trans:
                    n = max(n, 1)
            if p.dot and (vec(p.wr) & (c.rd | c.wr)) and c.mn != p.mn:
                n = max(n, 3)
            if sc(p.wr) & c.rd:
                n = max(n, 4 if c.mn.startswith(('v_readlane', 'v_writelane')) else 2)
            if ('exec', 0) in p.wr:
                if c.dpp:
                    n = max(n, 5)
                if c.perm or c.rdlane:
                    n = max(n, 4)
        if c.cls == 'vmem' and (sc(p.wr) & c.rd):
            n = max(n, 5)
        if c.cls == 'salu' and (sc(p.wr) & c.rd):
            n = max(n, 1)
        if c.cls in ('ds', 'vmem') and p.trans and (vec(p.wr) & c.rd):
            n = max(n, 1)
        if c.cls in ('ds', 'vmem') and p.dot and (vec(p.wr) & c.rd):
            n = max(n, 3)
    elif p.cls == 'salu':
        if ('m0', 0) in p.wr and c.lds_dma:
            n = max(n, 1)
    elif p.cls == 'vmem':
        if p.wide and (p.data & c.wr):
            n = max(n, 2 if c.cls in ('valu', 'mfma') else 1)
    elif p.cls == 'ds':
        if p.mn.startswith('ds_write_b128') and c.cls in ('valu',) and (p.rd & c.wr):
            n = max(n, 1)
    return n


class Asm:
    def __init__(self):
        self.lines = []
        self.hist = []
        self.pos = 0
        self.vm_issued = 0
        self.lg_issued = 0
        self.nlabel = 0
        self.nbytes_hint = 0

    def raw(self, s):
        self.lines.append(s)

    def comment(self, s):
        self.lines.append('    ; ' + s)

    def label(self, name):
        self.flush()
        self.lines.append(name + ':')

    def newlabel(self, base='L'):
        self.nlabel += 1
        return '%s_%d' % (base, self.nlabel)

    def flush(self):
        worst = 0
        for p in self.hist:
            w = 0
            if p.cls == 'mfma':
                w = {4: 8, 8: 12}[p.passes]
            elif p.cls == 'valu':
                w = 5 if any(r[0] in ('s', 'vcc', 'exec') for r in p.wr) else (3 if p.dot else 2)
            elif p.cls == 'salu' and ('m0', 0) in p.wr:
                w = 1
            elif p.cls == 'vmem' and p.wide:
                w = 2
            elif p.cls == 'ds':
                w = 1 if p.mn.startswith('ds_write_b128') else 0
            rem = w - (self.pos - p.pos - 1)
            worst = max(worst, rem)
        self._nop(worst)
        self.hist = []

    def _nop(self, n):
        while n > 0:
            k = min(n, 16)
            self.lines.append('    s_nop %d' % (k - 1))
            self.pos += k
            n -= k

    def I(self, text):
        ins = Ins(text)
        need = 0
        for p in self.hist:
            w = need_ws(p, ins)
            if w:
                have = self.pos - p.pos - 1
                need = max(need, w - have)
        self._nop(need)
        ins.pos = self.pos
        if ins.mn == 's_nop':
            self.pos += int(ins.ops[0]) + 1
        else:
            self.pos += 1
        self.lines.append('    ' + text)
        self.hist.append(ins)
        self.hist = [p for p in self.hist if self.pos - p.pos <= 24]
        tok = None
        if ins.cls == 'vmem' and ins.mn not in ('buffer_wbl2', 'buffer_inv'):
            self.vm_issued += 1
            tok = self.vm_issued
        elif ins.cls == 'ds':
            self.lg_issued += 1
            tok = self.lg_issued
        return tok

    def wait_vm(self, tok):
        n = self.vm_issued - tok
        assert n >= 0
        if n > 63:
            n = 63
        self.I('s_waitcnt vmcnt(%d)' % n)

    def wait_lg(self, tok):
        n = self.lg_issued - tok
        assert n >= 0
        if n > 15:
            n = 15
        self.I('s_waitcnt lgkmcnt(%d)' % n)

    def text(self):
        return '\n'.join(self.lines) + '\n'
```

```python
from asmlib import Asm
from gen import *

GK1 = 0xc0135761
GK2 = 0xbdd2d3e8


def f32bits(x):
    import struct
    return struct.unpack('<I', struct.pack('<f', x))[0]


import math
GK1 = f32bits(-2.0 * math.sqrt(2.0 / math.pi) * math.log2(math.e))
GK2 = f32bits(-2.0 * math.sqrt(2.0 / math.pi) * math.log2(math.e) * 0.044715)


def lane_fields(a, vL, base):
    names = ['l31', 'hh', 'i16', 'gq', 'r4', 'c4', 'l3', 'l7']
    d = {n: base + i for i, n in enumerate(names)}
    a.I(f'v_and_b32 v{d["l31"]}, 31, v{vL}')
    a.I(f'v_lshrrev_b32 v{d["hh"]}, 5, v{vL}')
    a.I(f'v_and_b32 v{d["i16"]}, 15, v{vL}')
    a.I(f'v_lshrrev_b32 v{d["gq"]}, 4, v{vL}')
    a.I(f'v_bfe_u32 v{d["r4"]}, v{vL}, 2, 2')
    a.I(f'v_and_b32 v{d["c4"]}, 3, v{vL}')
    a.I(f'v_lshrrev_b32 v{d["l3"]}, 3, v{vL}')
    a.I(f'v_and_b32 v{d["l7"]}, 7, v{vL}')
    return d


def gen_k2(a):
    end = 'K2_END'
    prologue(a, 256, end)
    S_SRD, S_SRDB = 28, 32
    S_W, S_DT, S_FT, S_T0, S_T1, S_T2, S_K1, S_K2, S_K3 = range(52, 61)
    vL, vT = 64, 65
    a.I(f'v_and_b32 v{vL}, 63, v0')
    a.I(f'v_lshrrev_b32 v{vT}, 6, v0')
    a.I(f'v_readfirstlane_b32 s{S_W}, v{vT}')
    a.I(f's_and_b32 s{S_T0}, s2, 7')
    a.I(f's_lshr_b32 s{S_T1}, s2, 3')
    a.I(f's_cmp_ge_u32 s{S_T1}, 29')
    a.I('s_cbranch_scc1 K2_RED')
    a.I(f's_mul_i32 s{S_T0}, s{S_T0}, 29')
    a.I(f's_add_u32 s{S_T0}, s{S_T0}, s{S_T1}')
    a.I(f's_and_b32 s{S_DT}, s{S_T0}, 3')
    a.I(f's_lshr_b32 s{S_FT}, s{S_T0}, 2')
    a.I(f's_cmp_ge_u32 s{S_FT}, 29')
    a.I(f's_cselect_b32 s{S_T1}, 29, 0')
    a.I(f's_cselect_b32 s{S_T2}, 4, 0')
    a.I(f's_sub_u32 s{S_FT}, s{S_FT}, s{S_T1}')
    a.I(f's_add_u32 s{S_DT}, s{S_DT}, s{S_T2}')
    vA, vB = 66, 69
    a.I(f'v_lshlrev_b32 v{vT}, 4, v{vL}')
    a.I(f's_lshl_b32 s{S_T0}, s{S_W}, 14')
    a.I(f's_mul_i32 s{S_T1}, s{S_FT}, {3 * 65536}')
    a.I(f's_add_u32 s{S_T1}, s{S_T1}, s{S_T0}')
    a.I(f's_add_u32 s{S_T1}, s{S_T1}, {W1F_OFF}')
    a.I(f's_lshl_b32 s{S_T2}, s{S_DT}, 18')
    a.I(f's_add_u32 s{S_T2}, s{S_T2}, s{S_T0}')
    a.I(f'v_add_u32 v{vA}, s{S_T1}, v{vT}')
    a.I(f'v_add_u32 v{vB}, s{S_T2}, v{vT}')
    for i in range(1, 3):
        a.I(f'v_add_u32 v{vA+i}, {i * 65536}, v{vA}')
    for i in range(1, 4):
        a.I(f'v_add_u32 v{vB+i}, {i * 65536}, v{vB}')
    a.I(f's_mov_b32 s{S_K1}, 4096')
    a.I(f's_mov_b32 s{S_K2}, 8192')
    a.I(f's_mov_b32 s{S_K3}, 12288')
    a.I('s_waitcnt lgkmcnt(0)')
    srd(a, S_SRD, P_WS, W1F_OFF + W1F_SIZE)
    srd(a, S_SRDB, P_B1, 2752)
    R = 9
    toks = {}

    def issue(n):
        base = 28 * (n % R)
        so = ['0', f's{S_K1}', f's{S_K2}', f's{S_K3}'][n >> 2]
        off = f' offset:{(n & 3) * 1024}' if n & 3 else ''
        for i in range(7):
            ad = vA + i
            r = base + 4 * i
            toks[n] = a.I(f'buffer_load_dwordx4 a[{r}:{r+3}], v{ad}, s[{S_SRD}:{S_SRD+3}], {so} offen{off}')

    for n in range(R):
        issue(n)
    lf = lane_fields(a, vL, 73)
    for n in range(16):
        a.wait_vm(toks[n])
        base = 28 * (n % R)
        for fb in range(3):
            for db in range(4):
                D = 4 * (fb * 4 + db)
                A_ = base + 4 * fb
                B_ = base + 12 + 4 * db
                c = '0' if n == 0 else f'v[{D}:{D+3}]'
                a.I(f'v_mfma_f32_16x16x32_bf16 v[{D}:{D+3}], a[{A_}:{A_+3}], a[{B_}:{B_+3}], {c}')
        if n + R < 16:
            issue(n + R)
        if n == 6:
            vBi = 81
            a.I(f's_and_b32 s{S_T0}, s{S_W}, 1')
            a.I(f's_lshl_b32 s{S_T0}, s{S_T0}, 3')
            a.I(f's_mul_i32 s{S_T1}, s{S_FT}, 96')
            a.I(f's_add_u32 s{S_T0}, s{S_T0}, s{S_T1}')
            a.I(f'v_and_b32 v{vBi}, 1, v{vL}')
            a.I(f'v_lshlrev_b32 v{vBi}, 4, v{vBi}')
            BI = 82
            for jj in range(3):
                tokB = a.I(f'buffer_load_dwordx2 v[{BI+2*jj}:{BI+2*jj+1}], v{vBi}, s[{S_SRDB}:{S_SRDB+3}], s{S_T0} offen offset:{jj * 32}')
    aW, aR, aS = 88, 89, 90
    a.I(f's_mul_i32 s{S_T0}, s{S_W}, 13312')
    a.I(f'v_mul_u32_u24 v{aW}, 208, v{lf["i16"]}')
    a.I(f'v_lshl_add_u32 v{aW}, v{lf["gq"]}, 4, v{aW}')
    a.I(f'v_add_u32 v{aW}, s{S_T0}, v{aW}')
    for fb in range(3):
        for db in range(4):
            D = 4 * (fb * 4 + db)
            a.I(f'ds_write_b128 v{aW}, v[{D}:{D+3}] offset:{db * 3328 + fb * 64}')
    a.I(f's_lshr_b32 s{S_T0}, s{S_W}, 1')
    a.I(f's_and_b32 s{S_T1}, s{S_W}, 1')
    a.I(f's_mul_i32 s{S_T2}, s{S_T0}, {32 * 208}')
    a.I(f's_lshl_b32 s{S_K1}, s{S_T1}, 4')
    a.I(f's_add_u32 s{S_T2}, s{S_T2}, s{S_K1}')
    a.I(f'v_lshrrev_b32 v{aR}, 1, v{vL}')
    a.I(f'v_mul_u32_u24 v{aR}, 208, v{aR}')
    a.I(f'v_and_b32 v{vT}, 1, v{vL}')
    a.I(f'v_lshl_add_u32 v{aR}, v{vT}, 5, v{aR}')
    a.I(f'v_add_u32 v{aR}, s{S_T2}, v{aR}')
    a.I(f'v_lshlrev_b32 v{aS}, 3, v{vL}')
    a.I(f's_mul_i32 s{S_K1}, s{S_DT}, {UF_DT}')
    a.I(f's_mul_i32 s{S_K2}, s{S_FT}, 6144')
    a.I(f's_add_u32 s{S_K1}, s{S_K1}, s{S_K2}')
    a.I(f's_lshl_b32 s{S_K2}, s{S_W}, 9')
    a.I(f's_add_u32 s{S_K1}, s{S_K1}, s{S_K2}')
    a.I(f's_add_u32 s{S_K1}, s{S_K1}, {UF_OFF}')
    a.I(f's_mov_b32 s{S_SRD+2}, {WS_USED}')
    a.I(f's_mov_b32 s{S_K2}, {GK1}')
    a.I(f's_mov_b32 s{S_K3}, {GK2}')
    a.I('s_waitcnt lgkmcnt(0)')
    a.I('s_barrier')
    RD = 0
    for jj in range(3):
        for p in range(4):
            b = RD + 16 * jj + 4 * p
            a.I(f'ds_read_b128 v[{b}:{b+3}], v{aR} offset:{p * 13312 + jj * 64}')
    a.wait_vm(tokB)
    T = 92
    for jj in range(3):
        a.I(f's_waitcnt lgkmcnt({8 - 4 * jj})')
        b = RD + 16 * jj
        for i in range(4):
            a.I(f'v_add_f32 v{b+i}, v{b+i}, v{b+4+i}')
            a.I(f'v_add_f32 v{b+8+i}, v{b+8+i}, v{b+12+i}')
        for i in range(4):
            a.I(f'v_add_f32 v{b+i}, v{b+i}, v{b+8+i}')
        a.I(f'v_cvt_pk_bf16_f32 v{b+4}, v{b}, v{b+1}')
        a.I(f'v_cvt_pk_bf16_f32 v{b+5}, v{b+2}, v{b+3}')
        for k in range(2):
            a.I(f'v_lshlrev_b32 v{b+2*k}, 16, v{b+4+k}')
            a.I(f'v_and_b32 v{b+2*k+1}, 0xffff0000, v{b+4+k}')
            a.I(f'v_lshlrev_b32 v{b+8+2*k}, 16, v{BI+2*jj+k}')
            a.I(f'v_and_b32 v{b+8+2*k+1}, 0xffff0000, v{BI+2*jj+k}')
        for i in range(4):
            a.I(f'v_add_f32 v{b+i}, v{b+i}, v{b+8+i}')
        a.I(f'v_cvt_pk_bf16_f32 v{b+4}, v{b}, v{b+1}')
        a.I(f'v_cvt_pk_bf16_f32 v{b+5}, v{b+2}, v{b+3}')
        for k in range(2):
            a.I(f'v_lshlrev_b32 v{b+2*k}, 16, v{b+4+k}')
            a.I(f'v_and_b32 v{b+2*k+1}, 0xffff0000, v{b+4+k}')
        a.I(f'v_mov_b32 v{T}, s{S_K2}')
        for i in range(4):
            a.I(f'v_mul_f32 v{b+4+i}, v{b+i}, v{b+i}')
        for i in range(4):
            a.I(f'v_fma_f32 v{b+4+i}, v{b+4+i}, s{S_K3}, v{T}')
        for i in range(4):
            a.I(f'v_mul_f32 v{b+4+i}, v{b+4+i}, v{b+i}')
        for i in range(4):
            a.I(f'v_exp_f32 v{b+4+i}, v{b+4+i}')
        for i in range(4):
            a.I(f'v_add_f32 v{b+4+i}, 1.0, v{b+4+i}')
        for i in range(4):
            a.I(f'v_rcp_f32 v{b+4+i}, v{b+4+i}')
        for i in range(4):
            a.I(f'v_mul_f32 v{b+i}, v{b+i}, v{b+4+i}')
        a.I(f'v_cvt_pk_bf16_f32 v{b+8}, v{b}, v{b+1}')
        a.I(f'v_cvt_pk_bf16_f32 v{b+9}, v{b+2}, v{b+3}')
        a.I(f'buffer_store_dwordx2 v[{b+8}:{b+9}], v{aS}, s[{S_SRD}:{S_SRD+3}], s{S_K1} offen')
        if jj < 2:
            a.I(f's_add_u32 s{S_K1}, s{S_K1}, 2048')
    a.I('s_endpgm')

    a.label('K2_RED')
    a.vm_issued = 0
    a.I(f's_sub_u32 s{S_T1}, s{S_T1}, 29')
    a.I(f's_lshl_b32 s{S_T1}, s{S_T1}, 3')
    a.I(f's_add_u32 s{S_T1}, s{S_T1}, s{S_T0}')
    a.I(f's_cmp_ge_u32 s{S_T1}, 16')
    a.I(f's_cbranch_scc1 {end}')
    a.I(f's_lshl_b32 s{S_T1}, s{S_T1}, 2')
    a.I(f's_add_u32 s{S_T1}, s{S_T1}, s{S_W}')
    a.I(f's_lshr_b32 s{S_T2}, s{S_T1}, 1')
    a.I(f's_and_b32 s{S_K1}, s{S_T1}, 1')
    a.I(f's_mul_i32 s{S_K2}, s{S_T2}, {32 * KVP_STRIDE}')
    a.I(f's_mul_i32 s{S_K3}, s{S_K1}, 1088')
    a.I(f's_add_u32 s{S_K2}, s{S_K2}, s{S_K3}')
    a.I(f's_add_u32 s{S_K2}, s{S_K2}, {KVP_OFF}')
    vP = 66
    a.I(f'v_and_b32 v{vP}, 31, v{vL}')
    a.I(f'v_min_u32 v{vP}, 16, v{vP}')
    a.I(f'v_lshrrev_b32 v{vT}, 5, v{vL}')
    a.I(f'v_mul_u32_u24 v{vT}, 17, v{vT}')
    a.I(f'v_add_lshl_u32 v{vP}, v{vP}, v{vT}, 4')
    a.I('s_waitcnt lgkmcnt(0)')
    srd(a, S_SRD, P_WS, WS_USED)
    LB = 72
    rt = {}

    def rissue(i):
        b = LB + 4 * (i % 32)
        off = ' offset:544' if i & 1 else ''
        rt[i] = a.I(f'buffer_load_dwordx4 v[{b}:{b+3}], v{vP}, s[{S_SRD}:{S_SRD+3}], s{S_K2} offen{off}')
        if i & 1:
            a.I(f's_add_u32 s{S_K2}, s{S_K2}, {KVP_STRIDE}')

    for i in range(32):
        rissue(i)
    for i in range(64):
        a.wait_vm(rt[i])
        b = LB + 4 * (i % 32)
        acc = 4 * (i & 1)
        for k in range(4):
            if i < 2:
                a.I(f'v_mov_b32 v{acc+k}, v{b+k}')
            else:
                a.I(f'v_add_f32 v{acc+k}, v{acc+k}, v{b+k}')
        if i + 32 < 64:
            rissue(i + 32)
    for k in range(4):
        a.I(f'v_cvt_pk_bf16_f32 v{8+k}, v{2*k}, v{2*k+1}')
    a.I(f's_lshl_b32 s{S_T1}, s{S_T1}, 10')
    a.I(f's_add_u32 s{S_T1}, s{S_T1}, {KVF_OFF}')
    a.I(f'v_lshlrev_b32 v{vT}, 4, v{vL}')
    a.I(f'buffer_store_dwordx4 v[8:11], v{vT}, s[{S_SRD}:{S_SRD+3}], s{S_T1} offen')
    a.label(end)
    a.I('s_endpgm')


def gen_k3(a):
    end = 'K3_END'
    prologue(a, 256, end)
    S_SRD = 28
    S_W, S_TB, S_CG, S_T0, S_T1, S_T2 = range(52, 58)
    vL, vT = 64, 65
    a.I(f'v_and_b32 v{vL}, 63, v0')
    a.I(f'v_lshrrev_b32 v{vT}, 6, v0')
    a.I(f'v_readfirstlane_b32 s{S_W}, v{vT}')
    a.I(f's_and_b32 s{S_T0}, s2, 7')
    a.I(f's_lshr_b32 s{S_T1}, s2, 3')
    a.I(f's_lshr_b32 s{S_TB}, s{S_T0}, 1')
    a.I(f's_lshl_b32 s{S_TB}, s{S_TB}, 3')
    a.I(f's_lshr_b32 s{S_T2}, s{S_T1}, 2')
    a.I(f's_add_u32 s{S_TB}, s{S_TB}, s{S_T2}')
    a.I(f's_and_b32 s{S_CG}, s{S_T0}, 1')
    a.I(f's_lshl_b32 s{S_CG}, s{S_CG}, 2')
    a.I(f's_and_b32 s{S_T2}, s{S_T1}, 3')
    a.I(f's_add_u32 s{S_CG}, s{S_CG}, s{S_T2}')
    a.I(f'v_lshlrev_b32 v{vT}, 4, v{vL}')
    a.I('s_waitcnt lgkmcnt(0)')
    srd(a, S_SRD, P_WS, WS_USED)
    PHQ, KV = 32, 48
    a.I(f's_lshl_b32 s{S_T0}, s2, 14')
    a.I(f's_lshl_b32 s{S_T1}, s{S_W}, 12')
    a.I(f's_add_u32 s{S_T0}, s{S_T0}, s{S_T1}')
    a.I(f's_add_u32 s{S_T0}, s{S_T0}, {PQ_OFF}')
    for q in range(4):
        a.I(f'buffer_load_dwordx4 v[{PHQ+4*q}:{PHQ+4*q+3}], v{vT}, s[{S_SRD}:{S_SRD+3}], s{S_T0} offen offset:{q * 1024}')
    a.I(f's_lshr_b32 s{S_T1}, s{S_W}, 1')
    a.I(f's_lshl_b32 s{S_T1}, s{S_T1}, 1')
    a.I(f's_lshl_b32 s{S_T2}, s{S_CG}, 2')
    a.I(f's_add_u32 s{S_T1}, s{S_T1}, s{S_T2}')
    a.I(f's_lshl_b32 s{S_T0}, s{S_T1}, 11')
    a.I(f's_add_u32 s{S_T0}, s{S_T0}, {KVF_OFF}')
    for q in range(4):
        a.I(f'buffer_load_dwordx4 v[{KV+4*q}:{KV+4*q+3}], v{vT}, s[{S_SRD}:{S_SRD+3}], s{S_T0} offen offset:{q * 1024}')
    a.I(f's_lshl_b32 s{S_T0}, s{S_TB}, 5')
    a.I(f's_add_u32 s{S_T0}, s{S_T0}, s{S_T1}')
    a.I(f's_lshl_b32 s{S_T0}, s{S_T0}, 11')
    a.I(f's_and_b32 s{S_T2}, s{S_W}, 1')
    a.I(f's_lshl_b32 s{S_T2}, s{S_T2}, 10')
    a.I(f's_add_u32 s{S_T0}, s{S_T0}, s{S_T2}')
    a.I(f's_add_u32 s{S_T0}, s{S_T0}, {OF_OFF}')
    a.I('s_waitcnt vmcnt(0)')
    for hd in range(2):
        D = 16 * hd
        a.I(f'v_mfma_f32_32x32x16_bf16 v[{D}:{D+15}], v[{KV+8*hd}:{KV+8*hd+3}], v[{PHQ+8*hd}:{PHQ+8*hd+3}], 0')
        a.I(f'v_mfma_f32_32x32x16_bf16 v[{D}:{D+15}], v[{KV+8*hd+4}:{KV+8*hd+7}], v[{PHQ+8*hd+4}:{PHQ+8*hd+7}], v[{D}:{D+15}]')
    for hd in range(2):
        D = 16 * hd
        a.I(f'v_add_f32 v{D+8}, 0x358637bd, v{D+8}')
        a.I(f'v_rcp_f32 v{D+8}, v{D+8}')
        for i in range(8):
            a.I(f'v_mul_f32 v{D+i}, v{D+i}, v{D+8}')
        for i in range(4):
            a.I(f'v_cvt_pk_bf16_f32 v{D+12+i}, v{D+2*i}, v{D+2*i+1}')
        a.I(f'buffer_store_dwordx4 v[{D+12}:{D+15}], v{vT}, s[{S_SRD}:{S_SRD+3}], s{S_T0} offen offset:{hd * 2048}')
    a.label(end)
    a.I('s_endpgm')


def gen_k4(a):
    end = 'K4_END'
    prologue(a, 256, end)
    S_SRDF, S_SRDT, S_SRDX, S_SRDO, S_SRDB = 28, 32, 36, 40, 44
    S_W, S_ST, S_DT, S_T0, S_T1, S_T2, S_RS, S_STEP, S_SOT, S_SOF, S_LW, S_CNT, S_KB0 = range(52, 65)
    vL, vT = 64, 65
    a.I(f'v_and_b32 v{vL}, 63, v0')
    a.I(f'v_lshrrev_b32 v{vT}, 6, v0')
    a.I(f'v_readfirstlane_b32 s{S_W}, v{vT}')
    a.I(f's_and_b32 s{S_T0}, s2, 7')
    a.I(f's_lshr_b32 s{S_T1}, s2, 3')
    a.I(f's_lshr_b32 s{S_ST}, s{S_T0}, 1')
    a.I(f's_lshl_b32 s{S_ST}, s{S_ST}, 3')
    a.I(f's_lshr_b32 s{S_T2}, s{S_T1}, 2')
    a.I(f's_add_u32 s{S_ST}, s{S_ST}, s{S_T2}')
    a.I(f's_and_b32 s{S_DT}, s{S_T0}, 1')
    a.I(f's_lshl_b32 s{S_DT}, s{S_DT}, 2')
    a.I(f's_and_b32 s{S_T2}, s{S_T1}, 3')
    a.I(f's_add_u32 s{S_DT}, s{S_DT}, s{S_T2}')
    lf = lane_fields(a, vL, 66)
    vL16, vTD0, vTD1, vR0, vR1, t0, t1 = 74, 75, 76, 77, 78, 79, 80
    a.I(f'v_lshlrev_b32 v{vL16}, 4, v{vL}')
    a.I(f's_mul_i32 s{S_LW}, s{S_W}, 40960')
    a.I(f's_sub_u32 s{S_KB0}, s{S_W}, 1')
    a.I(f's_mul_i32 s{S_KB0}, s{S_KB0}, 29')
    a.I(f's_cmp_eq_u32 s{S_W}, 3')
    a.I(f's_cselect_b32 s{S_CNT}, 28, 29')
    a.I(f's_cmp_eq_u32 s{S_W}, 0')
    a.I(f's_cselect_b32 s{S_CNT}, 32, s{S_CNT}')
    a.I(f's_cselect_b32 s{S_RS}, 1, 4')
    a.I(f's_lshl_b32 s{S_RS}, s{S_RS}, 10')
    a.I(f's_lshl_b32 s{S_STEP}, s{S_RS}, 4')
    a.I(f's_lshl_b32 s{S_T0}, s{S_ST}, 16')
    a.I(f's_add_u32 s{S_T0}, s{S_T0}, {OF_OFF}')
    a.I(f's_mul_i32 s{S_T1}, s{S_DT}, {UF_DT}')
    a.I(f's_lshl_b32 s{S_T2}, s{S_KB0}, 11')
    a.I(f's_add_u32 s{S_T1}, s{S_T1}, s{S_T2}')
    a.I(f's_add_u32 s{S_T1}, s{S_T1}, {UF_OFF}')
    a.I(f's_cmp_eq_u32 s{S_W}, 0')
    a.I(f's_cselect_b32 s{S_T0}, s{S_T0}, s{S_T1}')
    a.I(f's_lshl_b32 s{S_T1}, s{S_DT}, 7')
    a.I(f's_lshl_b32 s{S_T2}, s{S_ST}, 7')
    a.I(f's_lshl_b32 s{S_SOT}, s{S_KB0}, 16')
    a.I(f's_add_u32 s{S_T2}, s{S_T2}, s{S_SOT}')
    a.I(f's_cmp_eq_u32 s{S_W}, 0')
    a.I(f's_cselect_b32 s{S_T1}, s{S_T1}, s{S_T2}')
    a.I(f'v_bfe_u32 v{t0}, v{vL}, 4, 1')
    a.I(f'v_lshlrev_b32 v{t0}, 2, v{t0}')
    a.I(f'v_xor_b32 v{t0}, v{t0}, v{lf["l7"]}')
    a.I(f'v_lshlrev_b32 v{t0}, 4, v{t0}')
    a.I(f'v_mul_u32_u24 v{t1}, s{S_RS}, v{lf["l3"]}')
    a.I(f'v_add_u32 v{vTD0}, v{t0}, v{t1}')
    a.I(f's_lshl_b32 s{S_T2}, s{S_RS}, 3')
    a.I(f's_sub_u32 s{S_T2}, s{S_T2}, 1024')
    a.I(f'v_add_u32 v{vTD1}, s{S_T2}, v{vTD0}')
    a.I(f'v_bfe_u32 v{t0}, v{vL}, 3, 1')
    a.I(f'v_lshlrev_b32 v{t0}, 2, v{t0}')
    a.I(f'v_bfe_u32 v{t1}, v{vL}, 4, 1')
    a.I(f'v_lshlrev_b32 v{t1}, 1, v{t1}')
    a.I(f'v_bfe_u32 v{vR0}, v{vL}, 1, 1')
    a.I(f'v_add_u32 v{t1}, v{t1}, v{vR0}')
    a.I(f'v_xor_b32 v{t1}, v{t1}, v{t0}')
    a.I(f'v_lshlrev_b32 v{t1}, 4, v{t1}')
    a.I(f'v_and_b32 v{t0}, 1, v{vL}')
    a.I(f'v_lshl_add_u32 v{t1}, v{t0}, 3, v{t1}')
    a.I(f'v_lshl_add_u32 v{t0}, v{lf["hh"]}, 2, v{lf["r4"]}')
    a.I(f'v_lshl_add_u32 v{t1}, v{t0}, 7, v{t1}')
    a.I(f'v_add_u32 v{vR0}, s{S_LW}, v{t1}')
    a.I(f'v_xor_b32 v{vR1}, 64, v{vR0}')
    a.I('s_waitcnt lgkmcnt(0)')
    a.I(f's_add_u32 s{S_SRDF}, s{P_WS}, s{S_T0}')
    a.I(f's_addc_u32 s{S_SRDF+1}, s{P_WS+1}, 0')
    a.I(f's_lshl_b32 s{S_SRDF+2}, s{S_CNT}, 11')
    a.I(f's_mov_b32 s{S_SRDF+3}, 0x20000')
    a.I(f's_cmp_eq_u32 s{S_W}, 0')
    a.I(f's_cselect_b32 s{S_SRDT}, s{P_WO}, s{P_W2}')
    a.I(f's_cselect_b32 s{S_SRDT+1}, s{P_WO+1}, s{P_W2+1}')
    a.I(f's_add_u32 s{S_SRDT}, s{S_SRDT}, s{S_T1}')
    a.I(f's_addc_u32 s{S_SRDT+1}, s{S_SRDT+1}, 0')
    a.I(f's_mul_i32 s{S_SRDT+2}, s{S_CNT}, s{S_STEP}')
    a.I(f's_sub_u32 s{S_SRDT+2}, s{S_SRDT+2}, s{S_RS}')
    a.I(f's_add_u32 s{S_SRDT+2}, s{S_SRDT+2}, 128')
    a.I(f's_mov_b32 s{S_SRDT+3}, 0x20000')
    srd(a, S_SRDX, P_X, 2048 * 1024)
    srd(a, S_SRDO, P_OUT, 2048 * 1024)
    srd(a, S_SRDB, P_B2, 4096)
    vXO, vBO = 81, 82
    XR, BR = 84, 92
    a.I(f'v_lshrrev_b32 v{t0}, 3, v0')
    a.I(f'v_lshlrev_b32 v{vBO}, 1, v{t0}')
    aR = 113
    a.I(f'v_mul_u32_u24 v{aR}, 272, v{t0}')
    a.I(f'v_lshl_add_u32 v{aR}, v{lf["l7"]}, 5, v{aR}')
    a.I(f'v_lshlrev_b32 v{vXO}, 10, v{t0}')
    a.I(f'v_lshl_add_u32 v{vXO}, v{lf["l7"]}, 4, v{vXO}')
    a.I(f's_lshl_b32 s{S_T0}, s{S_ST}, 16')
    a.I(f's_lshl_b32 s{S_T1}, s{S_DT}, 7')
    a.I(f's_add_u32 s{S_T0}, s{S_T0}, s{S_T1}')
    a.I(f'v_add_u32 v{vXO}, s{S_T0}, v{vXO}')
    a.I(f's_lshl_b32 s{S_T2}, s{S_ST}, 7')
    a.I(f's_mov_b32 s{S_T1}, 32768')
    a.I(f'buffer_load_dwordx4 v[{XR}:{XR+3}], v{vXO}, s[{S_SRDX}:{S_SRDX+3}], 0 offen')
    a.I(f'buffer_load_dwordx4 v[{XR+4}:{XR+7}], v{vXO}, s[{S_SRDX}:{S_SRDX+3}], s{S_T1} offen')
    a.I(f'buffer_load_ushort v{BR}, v{vBO}, s[{S_SRDB}:{S_SRDB+3}], s{S_T2} offen')
    a.I(f'buffer_load_ushort v{BR+1}, v{vBO}, s[{S_SRDB}:{S_SRDB+3}], s{S_T2} offen offset:64')
    a.I(f's_mov_b32 s{S_SOT}, 0')
    a.I(f's_mov_b32 s{S_SOF}, 0')
    NS, DEP, NSL = 32, 14, 20
    tT, tF = {}, {}

    def issue(n):
        a.I(f's_add_u32 m0, s{S_LW}, {(n % NSL) * 2048}')
        a.I(f'buffer_load_dwordx4 v{vTD0}, s[{S_SRDT}:{S_SRDT+3}], s{S_SOT} offen lds')
        tT[n] = a.I(f'buffer_load_dwordx4 v{vTD1}, s[{S_SRDT}:{S_SRDT+3}], s{S_SOT} offen offset:1024 lds')
        a.I(f's_add_u32 s{S_SOT}, s{S_SOT}, s{S_STEP}')
        r = 8 * (n % DEP)
        o = (n & 1) * 2048
        a.I(f'buffer_load_dwordx4 a[{r}:{r+3}], v{vL16}, s[{S_SRDF}:{S_SRDF+3}], s{S_SOF} offen offset:{o}')
        tF[n] = a.I(f'buffer_load_dwordx4 a[{r+4}:{r+7}], v{vL16}, s[{S_SRDF}:{S_SRDF+3}], s{S_SOF} offen offset:{o + 1024}')
        if n & 1:
            a.I(f's_add_u32 s{S_SOF}, s{S_SOF}, 4096')

    TB = 96

    def treads(n):
        b = TB + 8 * (n & 1)
        o = (n % NSL) * 2048
        for cb, ad in enumerate((vR0, vR1)):
            a.I(f'ds_read_b64_tr_b16 v[{b+4*cb}:{b+4*cb+1}], v{ad} offset:{o}')
            a.I(f'ds_read_b64_tr_b16 v[{b+4*cb+2}:{b+4*cb+3}], v{ad} offset:{o + 1024}')

    for n in range(DEP):
        issue(n)
    a.wait_vm(tT[0])
    treads(0)
    for n in range(NS):
        if n + 1 < NS:
            a.wait_vm(tT[n + 1])
            a.I('s_waitcnt lgkmcnt(0)')
            treads(n + 1)
        else:
            a.wait_vm(tF[n])
            a.I('s_waitcnt lgkmcnt(0)')
        b = TB + 8 * (n & 1)
        r = 8 * (n % DEP)
        for fb in range(2):
            for cb in range(2):
                D = 16 * (2 * fb + cb)
                c = '0' if n == 0 else f'v[{D}:{D+15}]'
                a.I(f'v_mfma_f32_32x32x16_bf16 v[{D}:{D+15}], a[{r+4*fb}:{r+4*fb+3}], v[{b+4*cb}:{b+4*cb+3}], {c}')
        if n + DEP < NS:
            issue(n + DEP)
    aW = 112
    a.I('s_barrier')
    a.I(f's_cmp_eq_u32 s{S_W}, 0')
    a.I('s_cbranch_scc1 K4_W0')
    a.I(f's_mul_i32 s{S_T0}, s{S_W}, 17408')
    a.I(f'v_mul_u32_u24 v{aW}, 272, v{lf["l31"]}')
    a.I(f'v_lshl_add_u32 v{aW}, v{lf["hh"]}, 4, v{aW}')
    a.I(f'v_add_u32 v{aW}, s{S_T0}, v{aW}')
    for fb in range(2):
        for cb in range(2):
            D = 16 * (2 * fb + cb)
            for q in range(4):
                a.I(f'ds_write_b128 v{aW}, v[{D+4*q}:{D+4*q+3}] offset:{cb * 32 * 272 + fb * 128 + q * 32}')
    a.I('s_branch K4_JOIN')
    a.label('K4_W0')
    a.I(f'v_mul_u32_u24 v{aW}, 1088, v{lf["hh"]}')
    a.I(f'v_lshl_add_u32 v{aW}, v{lf["l31"]}, 2, v{aW}')
    for fb in range(2):
        for cb in range(2):
            D = 16 * (2 * fb + cb)
            for r in range(16):
                row = 32 * fb + (r & 3) + 8 * (r >> 2)
                a.I(f'ds_write_b32 v{aW}, v{D+r} offset:{row * 272 + cb * 128}')
    a.label('K4_JOIN')
    a.I('s_waitcnt lgkmcnt(0)')
    a.I('s_barrier')
    for ps in range(2):
        for p in range(4):
            for hf in range(2):
                b = 32 * ps + 8 * p + 4 * hf
                a.I(f'ds_read_b128 v[{b}:{b+3}], v{aR} offset:{p * 17408 + ps * 8704 + hf * 16}')
    for ps in range(2):
        a.I(f's_waitcnt lgkmcnt({8 - 8 * ps})')
        b = 32 * ps
        a.I(f'v_lshlrev_b32 v{BR+ps}, 16, v{BR+ps}')
        for i in range(8):
            a.I(f'v_add_f32 v{b+i}, v{b+i}, v{b+8+i}')
            a.I(f'v_add_f32 v{b+16+i}, v{b+16+i}, v{b+24+i}')
        for i in range(8):
            a.I(f'v_add_f32 v{b+i}, v{b+i}, v{b+16+i}')
        for k in range(4):
            x = XR + 4 * ps + k
            a.I(f'v_lshlrev_b32 v{b+8+2*k}, 16, v{x}')
            a.I(f'v_and_b32 v{b+8+2*k+1}, 0xffff0000, v{x}')
        for i in range(8):
            a.I(f'v_add_f32 v{b+8+i}, v{b+8+i}, v{BR+ps}')
        for i in range(8):
            a.I(f'v_add_f32 v{b+i}, v{b+i}, v{b+8+i}')
        for k in range(4):
            a.I(f'v_cvt_pk_bf16_f32 v{b+16+k}, v{b+2*k}, v{b+2*k+1}')
        so = '0' if ps == 0 else f's{S_T1}'
        a.I(f'buffer_store_dwordx4 v[{b+16}:{b+19}], v{vXO}, s[{S_SRDO}:{S_SRDO+3}], {so} offen')
    a.label(end)
    a.I('s_endpgm')


def kernels():
    out = []
    a = Asm()
    gen_k2(a)
    out.append(('hh_k2_kernel', a.text(), 512, 256, 256, 53248))
    a = Asm()
    gen_k3(a)
    out.append(('hh_k3_kernel', a.text(), 72, 72, 256, 0))
    a = Asm()
    gen_k4(a)
    out.append(('hh_k4_kernel', a.text(), 256, 128, 256, 163840))
    return out
```

```python
import sys
import os
sys.path.insert(0, os.path.dirname(os.path.abspath(__file__)))
from asmlib import Asm

NAME = 'parallel_sum__linear_kernel_hedgehog__mixer_token_mlp__prompt'

MB = 1 << 20
HF_OFF = 0
W1F_OFF = 2 * MB
W1F_SIZE = 86 * 65536
KVP_OFF = 8 * MB
KVP_STRIDE = 2176
KVF_OFF = 11 * MB
UF_OFF = 12 * MB
UF_DT = 88 * 2048
OF_OFF = 14 * MB
PQ_OFF = 16 * MB
WS_USED = 24 * MB

LOG2E = 0x3fb8aa3b
ONES = 0x3f803f80

P_X, P_WQKV, P_WPHI, P_WO, P_BX, P_W1, P_B1, P_W2, P_B2, P_OUT, P_DBG, P_WS = [4 + 2 * i for i in range(12)]


def srd(a, d, ptr, nbytes, off_sgpr=None, off_imm=0):
    if off_sgpr is None and off_imm == 0:
        a.I(f's_mov_b32 s{d}, s{ptr}')
        a.I(f's_mov_b32 s{d+1}, s{ptr+1}')
    else:
        if off_sgpr is not None:
            a.I(f's_add_u32 s{d}, s{ptr}, s{off_sgpr}')
            a.I(f's_addc_u32 s{d+1}, s{ptr+1}, 0')
            if off_imm:
                a.I(f's_add_u32 s{d}, s{d}, {off_imm}')
                a.I(f's_addc_u32 s{d+1}, s{d+1}, 0')
        else:
            a.I(f's_add_u32 s{d}, s{ptr}, {off_imm}')
            a.I(f's_addc_u32 s{d+1}, s{ptr+1}, 0')
    if isinstance(nbytes, str):
        a.I(f's_mov_b32 s{d+2}, {nbytes}')
    else:
        a.I(f's_mov_b32 s{d+2}, {nbytes}')
    a.I(f's_mov_b32 s{d+3}, 0x20000')


def prologue(a, nwg, endlabel):
    a.I(f's_cmp_ge_u32 s2, {nwg}')
    a.I(f's_cbranch_scc1 {endlabel}')
    a.I('s_load_dwordx16 s[4:19], s[0:1], 0')
    a.I('s_load_dwordx8 s[20:27], s[0:1], 64')


def bf16_round(a, dst, src):
    a.I(f'v_cvt_pk_bf16_f32 v{dst}, v{src}, v{src}')
    a.I(f'v_and_b32 v{dst}, 0xffff0000, v{dst}')


def ln_scalars(a, vsum, vsq, vm, vrs, t0):
    a.I(f'v_mul_f32 v{vsum}, 0x3b000000, v{vsum}')
    a.I(f'v_mul_f32 v{vsq}, 0x3b000000, v{vsq}')
    a.I(f'v_fma_f32 v{vsq}, -v{vsum}, v{vsum}, v{vsq}')
    a.I(f'v_max_f32 v{vsq}, 0, v{vsq}')
    bf16_round(a, vm, vsum)
    bf16_round(a, t0, vsq)
    a.I(f'v_add_f32 v{t0}, 0x3727c5ac, v{t0}')
    bf16_round(a, t0, t0)
    a.I(f'v_sqrt_f32 v{t0}, v{t0}')
    bf16_round(a, t0, t0)
    a.I(f'v_rcp_f32 v{vrs}, v{t0}')


def reduce32(a, regs, tmp):
    for ctl in ('quad_perm:[1,0,3,2]', 'quad_perm:[2,3,0,1]', 'row_half_mirror', 'row_mirror'):
        for r in regs:
            a.I(f'v_add_f32_dpp v{r}, v{r}, v{r} {ctl} row_mask:0xf bank_mask:0xf')
    for r in regs:
        a.I(f'v_mov_b32 v{tmp}, v{r}')
        a.I(f'v_permlane16_swap_b32 v{r}, v{tmp}')
        a.I(f'v_add_f32 v{r}, v{r}, v{tmp}')


XS0 = 0
WS0 = 40960


def XS(slot):
    return XS0 + slot * 8192


def WSL(slot):
    return WS0 + slot * 24576


HS = XS(4)
W1S = WSL(4)
WPHI_L = W1S + 22 * 1024
EP = WSL(3)
EP_CS = EP
EP_ST = EP + 1024
EP_PK = EP + 2048
EP_VV = EP + 2048 + 16384

S_SRDX, S_SRDW, S_SRDW1, S_SRDWS, S_SRDW1F, S_SRDT = 28, 32, 36, 40, 44, 48
S_W, S_TB, S_CG, S_IA, S_T0, S_T1, S_T2, S_XW, S_WW, S_SOX, S_SOW0, S_SOW1 = range(52, 64)
S_EXEC = 64
S_M1 = 66
S_M2 = 68


def softmax_unit(a, P, T, OUT):
    ta, tb, tc, td = T, T + 1, T + 2, T + 3
    for (t, b) in ((ta, P), (tb, P + 8)):
        a.I(f'v_max3_f32 v{t}, v{b}, v{b+1}, v{b+2}')
        a.I(f'v_max3_f32 v{t}, v{t}, v{b+3}, v{b+4}')
        a.I(f'v_max3_f32 v{t}, v{t}, v{b+5}, v{b+6}')
        a.I(f'v_max_f32 v{t}, v{t}, v{b+7}')
    a.I(f'v_permlane32_swap_b32 v{ta}, v{tb}')
    a.I(f'v_max_f32 v{tc}, v{ta}, v{tb}')
    a.I(f'v_mul_f32 v{tc}, s70, v{tc}')
    a.I(f'v_mov_b32 v{td}, v{tc}')
    a.I(f'v_permlane32_swap_b32 v{tc}, v{td}')
    for i in range(16):
        m = tc if i < 8 else td
        a.I(f'v_fma_f32 v{P+i}, v{P+i}, s70, -v{m}')
    for i in range(16):
        a.I(f'v_exp_f32 v{P+i}, v{P+i}')
    for (t, b) in ((ta, P), (tb, P + 8)):
        a.I(f'v_add_f32 v{t}, v{b}, v{b+1}')
        for i in range(2, 8):
            a.I(f'v_add_f32 v{t}, v{t}, v{b+i}')
    a.I(f'v_permlane32_swap_b32 v{ta}, v{tb}')
    a.I(f'v_add_f32 v{tc}, v{ta}, v{tb}')
    a.I(f'v_rcp_f32 v{tc}, v{tc}')
    a.I(f'v_mov_b32 v{td}, v{tc}')
    a.I(f'v_permlane32_swap_b32 v{tc}, v{td}')
    for i in range(16):
        m = tc if i < 8 else td
        a.I(f'v_mul_f32 v{P+i}, v{P+i}, v{m}')
    for i in range(8):
        a.I(f'v_cvt_pk_bf16_f32 v{OUT+i}, v{P+2*i}, v{P+2*i+1}')


def gen_k1(a, store_phiq=True):
    end = 'K1_END'
    prologue(a, 256, end)
    ACC = 0
    CSA = 48
    XSUM, GRAM = 60, 64
    VONE = 68
    FR = 72
    AUXE = 104
    AUXO = 112
    PHI = 120
    vL, vXD0, vXD1, vWD = 128, 129, 130, 131
    vXA = 132
    vWA = 136
    vCA = 139
    vSA = 142
    vT = 144
    vH = 160

    a.I(f'v_and_b32 v{vL}, 63, v0')
    a.I(f'v_lshrrev_b32 v{vT}, 6, v0')
    a.I(f'v_readfirstlane_b32 s{S_W}, v{vT}')
    a.I(f's_and_b32 s{S_T0}, s2, 7')
    a.I(f's_lshr_b32 s{S_T1}, s2, 3')
    a.I(f's_lshl_b32 s{S_IA}, s{S_T0}, 5')
    a.I(f's_add_u32 s{S_IA}, s{S_IA}, s{S_T1}')
    a.I(f's_lshr_b32 s{S_TB}, s{S_T0}, 1')
    a.I(f's_lshl_b32 s{S_TB}, s{S_TB}, 3')
    a.I(f's_lshr_b32 s{S_T2}, s{S_T1}, 2')
    a.I(f's_add_u32 s{S_TB}, s{S_TB}, s{S_T2}')
    a.I(f's_and_b32 s{S_CG}, s{S_T0}, 1')
    a.I(f's_lshl_b32 s{S_CG}, s{S_CG}, 2')
    a.I(f's_and_b32 s{S_T2}, s{S_T1}, 3')
    a.I(f's_add_u32 s{S_CG}, s{S_CG}, s{S_T2}')
    a.I(f's_lshl_b32 s{S_XW}, s{S_W}, 11')
    a.I(f's_mul_i32 s{S_WW}, s{S_W}, 6144')
    a.I(f's_mov_b32 s70, {LOG2E}')

    l31, hh, i16, gq, r4, c4, l3, l7 = [vT + 1 + i for i in range(8)]
    a.I(f'v_and_b32 v{l31}, 31, v{vL}')
    a.I(f'v_lshrrev_b32 v{hh}, 5, v{vL}')
    a.I(f'v_and_b32 v{i16}, 15, v{vL}')
    a.I(f'v_lshrrev_b32 v{gq}, 4, v{vL}')
    a.I(f'v_bfe_u32 v{r4}, v{vL}, 2, 2')
    a.I(f'v_and_b32 v{c4}, 3, v{vL}')
    a.I(f'v_lshrrev_b32 v{l3}, 3, v{vL}')
    a.I(f'v_and_b32 v{l7}, 7, v{vL}')
    t0, t1, t2 = vT + 9, vT + 10, vT + 11

    vAX = vT + 12
    a.I(f'v_lshlrev_b32 v{vAX}, 10, v{hh}')
    a.I(f'v_lshl_add_u32 v{vAX}, v{l31}, 4, v{vAX}')
    vL16 = vT + 13
    a.I(f'v_lshlrev_b32 v{vL16}, 4, v{vL}')

    a.I(f's_lshl_b32 s{S_T0}, s{S_TB}, 16')
    a.I(f's_lshl_b32 s{S_T1}, s{S_W}, 14')
    a.I(f's_add_u32 s{S_T0}, s{S_T0}, s{S_T1}')
    a.I(f'v_xor_b32 v{t0}, v{l7}, v{gq}')
    a.I(f'v_lshlrev_b32 v{t0}, 4, v{t0}')
    a.I(f'v_lshl_add_u32 v{t0}, v{l3}, 10, v{t0}')
    a.I(f'v_add_u32 v{vXD0}, s{S_T0}, v{t0}')
    a.I(f'v_xor_b32 v{vXD1}, 64, v{vXD0}')
    a.I(f'v_add_u32 v{vXD1}, {8192 - 1024}, v{vXD1}')
    a.I(f's_mul_i32 s{S_T0}, s{S_W}, {16 * 3072}')
    a.I(f's_lshl_b32 s{S_T1}, s{S_CG}, 7')
    a.I(f's_add_u32 s{S_T0}, s{S_T0}, s{S_T1}')
    a.I(f'v_and_b32 v{t0}, 1, v{gq}')
    a.I(f'v_lshlrev_b32 v{t0}, 2, v{t0}')
    a.I(f'v_xor_b32 v{t0}, v{l7}, v{t0}')
    a.I(f'v_lshlrev_b32 v{t0}, 4, v{t0}')
    a.I(f'v_mul_u32_u24 v{t1}, 3072, v{l3}')
    a.I(f'v_add3_u32 v{vWD}, v{t0}, v{t1}, s{S_T0}')

    a.I('s_waitcnt lgkmcnt(0)')
    srd(a, S_SRDX, P_X, 2048 * 1024)
    srd(a, S_SRDW, P_WQKV, 512 * 3072)
    a.I(f's_mul_i32 s{S_T0}, s{S_IA}, 22016')
    srd(a, S_SRDW1, P_W1, 22016, off_sgpr=S_T0)

    a.I(f's_lshl_b32 s{S_T0}, s{S_IA}, 13')
    a.I(f's_add_u32 s{S_T0}, s{S_T0}, s{S_XW}')
    a.I(f'buffer_load_dwordx4 v[{vH}:{vH+3}], v{vAX}, s[{S_SRDX}:{S_SRDX+3}], s{S_T0} offen')
    tokAX = a.I(f'buffer_load_dwordx4 v[{vH+4}:{vH+7}], v{vAX}, s[{S_SRDX}:{S_SRDX+3}], s{S_T0} offen offset:512')

    stage_tok = {}

    def issue_stage(st):
        slot = st % 5
        a.I(f's_mov_b32 s{S_SOX}, {st * 128}')
        a.I(f's_mov_b32 s{S_SOW0}, {st * 196608}')
        a.I(f's_mov_b32 s{S_SOW1}, {st * 196608 + 24576}')
        a.I(f's_add_u32 m0, s{S_XW}, {XS(slot)}')
        a.I(f'buffer_load_dwordx4 v{vXD0}, s[{S_SRDX}:{S_SRDX+3}], s{S_SOX} offen lds')
        a.I(f'buffer_load_dwordx4 v{vXD1}, s[{S_SRDX}:{S_SRDX+3}], s{S_SOX} offen offset:1024 lds')
        for p in range(2):
            a.I(f's_add_u32 m0, s{S_WW}, {WSL(slot) + p * 3072}')
            so = S_SOW0 if p == 0 else S_SOW1
            for seg in range(3):
                off = f' offset:{seg * 1024}' if seg else ''
                tok = a.I(f'buffer_load_dwordx4 v{vWD}, s[{S_SRDW}:{S_SRDW+3}], s{so} offen{off} lds')
        stage_tok[st] = tok

    issue_stage(0)
    issue_stage(1)
    a.I(f's_lshl_b32 s{S_T1}, s{S_W}, 10')
    for j in range(5):
        a.I(f's_add_u32 m0, s{S_T1}, {W1S + j * 4096}')
        a.I(f's_add_u32 s{S_T0}, s{S_T1}, {j * 4096}')
        a.I(f'buffer_load_dwordx4 v{vL16}, s[{S_SRDW1}:{S_SRDW1+3}], s{S_T0} offen lds')
    a.I(f's_cmp_ge_u32 s{S_W}, 2')
    a.I(f's_cselect_b32 s{S_SRDT}, s{P_WPHI}, s{S_SRDW1}')
    a.I(f's_cselect_b32 s{S_SRDT+1}, s{P_WPHI+1}, s{S_SRDW1+1}')
    a.I(f's_cselect_b32 s{S_SRDT+2}, 16384, s{S_SRDW1+2}')
    a.I(f's_mov_b32 s{S_SRDT+3}, 0x20000')
    a.I(f's_lshl_b32 s{S_T0}, s{S_CG}, 11')
    a.I(f's_sub_u32 s{S_T0}, s{S_T0}, 2048')
    a.I(f's_cmp_ge_u32 s{S_W}, 2')
    a.I(f's_cselect_b32 s{S_T0}, s{S_T0}, {20 * 1024}')
    a.I(f's_add_u32 s{S_T0}, s{S_T0}, s{S_T1}')
    a.I(f's_add_u32 m0, s{S_T1}, {W1S + 20 * 1024}')
    tokW1 = a.I(f'buffer_load_dwordx4 v{vL16}, s[{S_SRDT}:{S_SRDT+3}], s{S_T0} offen lds')
    issue_stage(2)
    issue_stage(3)

    srd(a, S_SRDWS, P_WS, WS_USED)
    srd(a, S_SRDW1F, P_WS, W1F_SIZE, off_imm=W1F_OFF)

    a.I(f's_and_b32 s{S_T0}, s{S_W}, 1')
    a.I(f's_lshr_b32 s{S_T1}, s{S_W}, 1')
    a.I(f'v_bfe_u32 v{t0}, v{vL}, 1, 3')
    a.I(f'v_xor_b32 v{t0}, v{t0}, v{hh}')
    a.I(f'v_lshlrev_b32 v{t0}, 4, v{t0}')
    a.I(f'v_lshl_add_u32 v{t0}, v{l31}, 7, v{t0}')
    a.I(f's_lshl_b32 s{S_T2}, s{S_T0}, 12')
    a.I(f'v_add_u32 v{vXA}, s{S_T2}, v{t0}')
    for ks in range(1, 4):
        a.I(f'v_xor_b32 v{vXA+ks}, {ks * 32}, v{vXA}')
    a.I(f'v_bfe_u32 v{t0}, v{vL}, 3, 1')
    a.I(f'v_lshlrev_b32 v{t0}, 2, v{t0}')
    a.I(f'v_and_b32 v{t1}, 1, v{vL}')
    a.I(f'v_lshlrev_b32 v{t1}, 3, v{t1}')
    a.I(f'v_lshl_add_u32 v{t1}, v{r4}, 7, v{t1}')
    a.I(f'v_bfe_u32 v{t2}, v{vL}, 4, 1')
    a.I(f'v_lshlrev_b32 v{t2}, 1, v{t2}')
    a.I(f'v_bfe_u32 v{vWA}, v{vL}, 1, 1')
    a.I(f'v_add_u32 v{t2}, v{t2}, v{vWA}')
    a.I(f's_lshl_b32 s{S_T2}, s{S_T1}, 2')
    a.I(f'v_add_u32 v{t2}, s{S_T2}, v{t2}')
    a.I(f'v_xor_b32 v{t2}, v{t2}, v{t0}')
    a.I(f'v_lshl_add_u32 v{t2}, v{t2}, 4, v{t1}')
    a.I(f'v_mul_u32_u24 v{vWA}, 3072, v{hh}')
    a.I(f'v_add_u32 v{t2}, v{t2}, v{vWA}')
    for b in range(3):
        a.I(f'v_add_u32 v{vWA+b}, {WS0 + b * 49152}, v{t2}')
    a.I(f'v_bfe_u32 v{t2}, v{vL}, 1, 1')
    a.I(f's_lshl_b32 s{S_T2}, s{S_W}, 1')
    a.I(f'v_add_u32 v{t2}, s{S_T2}, v{t2}')
    a.I(f'v_xor_b32 v{t2}, v{t2}, v{t0}')
    a.I(f'v_lshl_add_u32 v{t2}, v{t2}, 4, v{t1}')
    a.I(f'v_mul_u32_u24 v{vCA}, 3072, v{gq}')
    a.I(f'v_add_u32 v{t2}, v{t2}, v{vCA}')
    for b in range(3):
        a.I(f'v_add_u32 v{vCA+b}, {WS0 + b * 49152}, v{t2}')
    a.I(f'v_bfe_u32 v{t0}, v{vL}, 1, 3')
    a.I(f'v_xor_b32 v{t0}, v{t0}, v{gq}')
    a.I(f'v_lshlrev_b32 v{t0}, 4, v{t0}')
    a.I(f'v_lshl_add_u32 v{t0}, v{i16}, 7, v{t0}')
    a.I(f'v_add_u32 v{vSA}, s{S_XW}, v{t0}')
    a.I(f'v_xor_b32 v{vSA+1}, 64, v{vSA}')
    for i in range(4):
        a.I(f'v_mov_b32 v{VONE+i}, {ONES}')

    X = vH
    sm, sq, vm, vrs, tt = vH + 8, vH + 9, vH + 10, vH + 11, vH + 12
    u0, u1 = vH + 13, vH + 14
    a.wait_vm(tokAX)
    for rnd in range(2):
        a.I(f'v_mov_b32 v{sm}, 0')
        a.I(f'v_mov_b32 v{sq}, 0')
        for i in range(8):
            a.I(f'v_dot2c_f32_bf16 v{sm}, v{VONE}, v{X+i}')
            a.I(f'v_dot2c_f32_bf16 v{sq}, v{X+i}, v{X+i}')
        reduce32(a, [sm, sq], tt)
        ln_scalars(a, sm, sq, vm, vrs, tt)
        for i in range(8):
            a.I(f'v_lshlrev_b32 v{u0}, 16, v{X+i}')
            a.I(f'v_and_b32 v{u1}, 0xffff0000, v{X+i}')
            a.I(f'v_sub_f32 v{u0}, v{u0}, v{vm}')
            a.I(f'v_sub_f32 v{u1}, v{u1}, v{vm}')
            a.I(f'v_cvt_pk_bf16_f32 v{X+i}, v{u0}, v{u1}')
            a.I(f'v_lshlrev_b32 v{u0}, 16, v{X+i}')
            a.I(f'v_and_b32 v{u1}, 0xffff0000, v{X+i}')
            a.I(f'v_mul_f32 v{u0}, v{u0}, v{vrs}')
            a.I(f'v_mul_f32 v{u1}, v{u1}, v{vrs}')
            a.I(f'v_cvt_pk_bf16_f32 v{X+i}, v{u0}, v{u1}')
    a.I(f's_lshl_b32 s{S_T0}, s{S_W}, 1')
    a.I(f'v_add_u32 v{u0}, s{S_T0}, v{hh}')
    a.I(f'v_and_b32 v{u1}, 3, v{u0}')
    a.I(f'v_lshlrev_b32 v{u1}, 6, v{u1}')
    a.I(f'v_lshl_add_u32 v{u1}, v{l31}, 4, v{u1}')
    a.I(f'v_lshl_add_u32 v{u0}, v{u0}, 10, v{u1}')
    a.I(f'v_add_u32 v{u1}, 512, v{u1}')
    a.I(f'v_and_b32 v{u1}, 1023, v{u1}')
    a.I(f'v_and_b32 v{tt}, 0xfffffc00, v{u0}')
    a.I(f'v_or_b32 v{u1}, v{u1}, v{tt}')
    a.I(f'ds_write_b128 v{u0}, v[{X}:{X+3}] offset:{HS}')
    a.I(f'ds_write_b128 v{u1}, v[{X+4}:{X+7}] offset:{HS}')
    aH0, aH1, aW1, aST, aPH, vSG = vH + 16, vH + 17, vH + 18, vH + 19, vH + 20, vH + 21
    a.I(f'v_lshlrev_b32 v{u0}, 5, v{gq}')
    a.I(f'v_lshl_add_u32 v{u0}, v{c4}, 3, v{u0}')
    a.I(f's_lshl_b32 s{S_T0}, s{S_W}, 8')
    a.I(f'v_lshl_add_u32 v{u1}, v{r4}, 6, v{u0}')
    a.I(f'v_add_u32 v{u1}, s{S_T0}, v{u1}')
    a.I(f'v_add_u32 v{tt}, 128, v{u1}')
    a.I(f'v_and_b32 v{u1}, 1023, v{u1}')
    a.I(f'v_and_b32 v{tt}, 1023, v{tt}')
    a.I(f'v_lshl_add_u32 v{aH0}, v{r4}, 10, v{u1}')
    a.I(f'v_lshl_add_u32 v{aH1}, v{r4}, 10, v{tt}')
    a.I(f'v_mul_u32_u24 v{aW1}, 2752, v{r4}')
    a.I(f's_lshl_b32 s{S_T0}, s{S_W}, 7')
    a.I(f's_add_u32 s{S_T0}, s{S_T0}, {W1S}')
    a.I(f'v_add3_u32 v{aW1}, v{aW1}, v{u0}, s{S_T0}')
    a.I(f's_and_b32 s{S_T0}, s{S_IA}, 3')
    a.I(f's_lshl_b32 s{S_T0}, s{S_T0}, 8')
    a.I(f's_lshr_b32 s{S_T1}, s{S_IA}, 2')
    a.I(f's_lshl_b32 s{S_T1}, s{S_T1}, 10')
    a.I(f's_add_u32 s{S_T0}, s{S_T0}, s{S_T1}')
    a.I(f'v_lshlrev_b32 v{aST}, 16, v{gq}')
    a.I(f'v_lshl_add_u32 v{aST}, v{i16}, 4, v{aST}')
    a.I(f'v_add_u32 v{aST}, s{S_T0}, v{aST}')
    a.I(f'v_lshl_add_u32 v{aPH}, v{hh}, 2, v{r4}')
    a.I(f'v_lshlrev_b32 v{aPH}, 5, v{aPH}')
    a.I(f'v_lshl_add_u32 v{aPH}, v{c4}, 3, v{aPH}')
    a.I(f's_lshr_b32 s{S_T0}, s{S_W}, 1')
    a.I(f's_lshl_b32 s{S_T0}, s{S_T0}, 10')
    a.I(f's_add_u32 s{S_T0}, s{S_T0}, {WPHI_L}')
    a.I(f'v_add_u32 v{aPH}, s{S_T0}, v{aPH}')
    a.I(f'v_bfe_u32 v{vSG}, v{vL}, 4, 1')
    a.I(f'v_mul_u32_u24 v{vSG}, 0x8000, v{vSG}')
    a.I(f'v_lshl_or_b32 v{vSG}, v{vSG}, 16, v{vSG}')

    a.wait_vm(tokW1)
    a.I('s_waitcnt lgkmcnt(0)')
    a.I('s_barrier')
    TRB = 0
    for u, ad in enumerate((aH0, aH1)):
        a.I(f'ds_read_b64_tr_b16 v[{TRB+4*u}:{TRB+4*u+1}], v{ad} offset:{HS}')
        a.I(f'ds_read_b64_tr_b16 v[{TRB+4*u+2}:{TRB+4*u+3}], v{ad} offset:{HS + 4096}')
    for hd in range(2):
        a.I(f'ds_read_b64_tr_b16 v[{PHI+4*hd}:{PHI+4*hd+1}], v{aPH} offset:{hd * 512}')
        a.I(f'ds_read_b64_tr_b16 v[{PHI+4*hd+2}:{PHI+4*hd+3}], v{aPH} offset:{hd * 512 + 256}')
    a.I('s_waitcnt lgkmcnt(0)')
    a.I(f's_lshl_b32 s{S_T0}, s{S_W}, 19')
    a.I(f's_add_u32 s{S_T1}, s{S_T0}, 262144')
    a.I(f'buffer_store_dwordx4 v[{TRB}:{TRB+3}], v{aST}, s[{S_SRDWS}:{S_SRDWS+3}], s{S_T0} offen')
    a.I(f'buffer_store_dwordx4 v[{TRB+4}:{TRB+7}], v{aST}, s[{S_SRDWS}:{S_SRDWS+3}], s{S_T1} offen')
    for j in range(6):
        b = TRB + 8 + 4 * j
        a.I(f'ds_read_b64_tr_b16 v[{b}:{b+1}], v{aW1} offset:{j * 512}')
        a.I(f'ds_read_b64_tr_b16 v[{b+2}:{b+3}], v{aW1} offset:{j * 512 + 11008}')
    for i in range(8):
        a.I(f'v_xor_b32 v{PHI+i}, v{PHI+i}, v{vSG}')
    a.I(f's_lshl_b32 s{S_T0}, s{S_W}, 18')
    a.I('s_waitcnt lgkmcnt(0)')
    for j in range(6):
        b = TRB + 8 + 4 * j
        a.I(f'buffer_store_dwordx4 v[{b}:{b+3}], v{aST}, s[{S_SRDW1F}:{S_SRDW1F+3}], s{S_T0} offen')
        if j < 5:
            a.I(f's_add_u32 s{S_T0}, s{S_T0}, {4 * 262144}')


    def wbase(slot):
        return slot // 2, (slot % 2) * 24576

    def issue_reads(n):
        st, ks = divmod(n, 4)
        slot = st % 5
        F = FR + 16 * (n & 1)
        bi, bo = wbase(slot)
        a.I(f'ds_read_b128 v[{F}:{F+3}], v{vXA+ks} offset:{XS(slot)}')
        for seg in range(3):
            o = bo + ks * 6144 + seg * 1024
            W = F + 4 + 4 * seg
            a.I(f'ds_read_b64_tr_b16 v[{W}:{W+1}], v{vWA+bi} offset:{o}')
            a.I(f'ds_read_b64_tr_b16 v[{W+2}:{W+3}], v{vWA+bi} offset:{o + 512}')
        jp = ks >> 1
        if n % 2 == 0:
            a.I(f'ds_read_b128 v[{AUXE}:{AUXE+3}], v{vSA+jp} offset:{XS(slot)}')
            segs = [(0, AUXE + 4)]
        else:
            segs = [(1, AUXO), (2, AUXO + 4)]
        for seg, W in segs:
            o = bo + jp * 12288 + seg * 1024
            a.I(f'ds_read_b64_tr_b16 v[{W}:{W+1}], v{vCA+bi} offset:{o}')
            a.I(f'ds_read_b64_tr_b16 v[{W+2}:{W+3}], v{vCA+bi} offset:{o + 512}')

    def mfmas(n):
        F = FR + 16 * (n & 1)
        first = n == 0
        for seg in range(3):
            A = ACC + 16 * seg
            W = F + 4 + 4 * seg
            c = '0' if first else f'v[{A}:{A+15}]'
            a.I(f'v_mfma_f32_32x32x16_bf16 v[{A}:{A+15}], v[{W}:{W+3}], v[{F}:{F+3}], {c}')
        firstp = n < 2
        if n % 2 == 0:
            lst = [(XSUM, VONE, AUXE), (GRAM, AUXE, AUXE), (CSA, AUXE + 4, VONE)]
        else:
            lst = [(CSA + 4, AUXO, VONE), (CSA + 8, AUXO + 4, VONE)]
        for D, A_, B_ in lst:
            c = '0' if firstp else f'v[{D}:{D+3}]'
            a.I(f'v_mfma_f32_16x16x32_bf16 v[{D}:{D+3}], v[{A_}:{A_+3}], v[{B_}:{B_+3}], {c}')

    a.I('s_barrier')
    issue_stage(4)
    issue_reads(0)
    for n in range(32):
        a.I('s_waitcnt lgkmcnt(0)')
        if n + 1 < 32:
            if (n + 1) % 4 == 0:
                st = (n + 1) // 4
                a.wait_vm(stage_tok[st])
                a.I('s_barrier')
                if st + 4 <= 7:
                    issue_stage(st + 4)
            issue_reads(n + 1)
        mfmas(n)

    e0 = FR
    aC, aS, g0, g1 = e0, e0 + 1, e0 + 2, e0 + 3
    a.I(f's_lshl_b32 s{S_T0}, s{S_W}, 6')
    a.I(f's_add_u32 s{S_T0}, s{S_T0}, {EP_CS}')
    a.I(f'v_lshlrev_b32 v{aC}, 4, v{gq}')
    a.I(f'v_add_u32 v{aC}, s{S_T0}, v{aC}')
    a.I(f's_lshl_b32 s{S_T0}, s{S_W}, 7')
    a.I(f's_add_u32 s{S_T0}, s{S_T0}, {EP_ST}')
    a.I(f'v_lshlrev_b32 v{aS}, 3, v{i16}')
    a.I(f'v_add_u32 v{aS}, s{S_T0}, v{aS}')
    a.I(f'v_cmp_eq_u32 vcc, 1, v{c4}')
    a.I(f'v_cndmask_b32 v{g1}, v{GRAM}, v{GRAM+1}, vcc')
    a.I(f'v_cmp_eq_u32 vcc, 2, v{c4}')
    a.I(f'v_cndmask_b32 v{g1}, v{g1}, v{GRAM+2}, vcc')
    a.I(f'v_cmp_eq_u32 vcc, 3, v{c4}')
    a.I(f'v_cndmask_b32 v{g1}, v{g1}, v{GRAM+3}, vcc')
    a.I(f'v_mov_b32 v{g0}, v{XSUM}')
    a.I(f'v_cmp_eq_u32 vcc, v{r4}, v{gq}')
    a.I(f's_and_saveexec_b64 s[{S_EXEC}:{S_EXEC+1}], vcc')
    a.I(f'ds_write_b64 v{aS}, v[{g0}:{g1}]')
    a.I(f's_mov_b64 exec, s[{S_EXEC}:{S_EXEC+1}]')
    a.I(f'v_cmp_eq_u32 vcc, 0, v{i16}')
    a.I(f's_and_saveexec_b64 s[{S_EXEC}:{S_EXEC+1}], vcc')
    for seg in range(3):
        a.I(f'ds_write_b128 v{aC}, v[{CSA+4*seg}:{CSA+4*seg+3}] offset:{seg * 256}')
    a.I(f's_mov_b64 exec, s[{S_EXEC}:{S_EXEC+1}]')
    a.I(f's_and_b32 s{S_T0}, s{S_W}, 1')
    a.I(f's_lshr_b32 s{S_T1}, s{S_W}, 1')
    a.I(f's_lshl_b32 s{S_T2}, s{S_T0}, 8')
    a.I(f's_add_u32 s{S_T2}, s{S_T2}, {EP_ST}')
    a.I(f'v_lshlrev_b32 v{aS}, 3, v{l31}')
    a.I(f'v_add_u32 v{aS}, s{S_T2}, v{aS}')
    a.I(f's_lshl_b32 s{S_T2}, s{S_T1}, 7')
    a.I(f's_add_u32 s{S_T2}, s{S_T2}, {EP_CS}')
    a.I(f'v_lshlrev_b32 v{aC}, 4, v{hh}')
    a.I(f'v_add_u32 v{aC}, s{S_T2}, v{aC}')
    a.I('s_waitcnt lgkmcnt(0)')
    a.I('s_barrier')
    CSR = 160
    a.I(f'ds_read_b64 v[{g0}:{g1}], v{aS}')
    for seg in range(3):
        for q4 in range(4):
            b = CSR + 16 * seg + 4 * q4
            a.I(f'ds_read_b128 v[{b}:{b+3}], v{aC} offset:{seg * 256 + q4 * 32}')
    vm2, vrs2, tt2 = e0 + 4, e0 + 5, e0 + 6
    a.I('s_waitcnt lgkmcnt(12)')
    ln_scalars(a, g0, g1, vm2, vrs2, tt2)
    a.I('s_waitcnt lgkmcnt(0)')
    PKD = 208
    for i in range(48):
        a.I(f'v_fma_f32 v{ACC+i}, -v{vm2}, v{CSR+i}, v{ACC+i}')
        a.I(f'v_mul_f32 v{ACC+i}, v{ACC+i}, v{vrs2}')
    for i in range(24):
        a.I(f'v_cvt_pk_bf16_f32 v{PKD+i}, v{ACC+2*i}, v{ACC+2*i+1}')
    for u in range(4):
        hd = u & 1
        B_ = PKD + 4 * u
        a.I(f'v_mfma_f32_32x32x16_bf16 v[{16*u}:{16*u+15}], v[{PHI+4*hd}:{PHI+4*hd+3}], v[{B_}:{B_+3}], 0')
    aV, aK, swv, swk = e0 + 8, e0 + 9, e0 + 10, e0 + 11
    aV2, aK1, aK2, aK3 = e0 + 12, e0 + 13, e0 + 14, e0 + 15
    a.I(f's_lshl_b32 s{S_T2}, s{S_T1}, 12')
    a.I(f's_lshl_b32 s{S_SOX}, s{S_T0}, 10')
    a.I(f's_add_u32 s{S_T2}, s{S_T2}, s{S_SOX}')
    a.I(f's_add_u32 s{S_T2}, s{S_T2}, {EP_VV}')
    a.I(f'v_bfe_u32 v{swv}, v{vL}, 2, 2')
    a.I(f'v_xor_b32 v{swv}, v{swv}, v{hh}')
    a.I(f'v_lshlrev_b32 v{swv}, 3, v{swv}')
    a.I(f'v_lshl_add_u32 v{aV}, v{l31}, 5, v{swv}')
    a.I(f'v_add_u32 v{aV}, s{S_T2}, v{aV}')
    a.I(f'v_xor_b32 v{aV2}, 16, v{aV}')
    a.I(f's_lshl_b32 s{S_T2}, s{S_T1}, 13')
    a.I(f's_lshl_b32 s{S_SOX}, s{S_T0}, 11')
    a.I(f's_add_u32 s{S_T2}, s{S_T2}, s{S_SOX}')
    a.I(f's_add_u32 s{S_T2}, s{S_T2}, {EP_PK}')
    a.I(f'v_bfe_u32 v{swk}, v{vL}, 1, 3')
    a.I(f'v_xor_b32 v{swk}, v{swk}, v{hh}')
    a.I(f'v_lshlrev_b32 v{swk}, 3, v{swk}')
    a.I(f'v_lshl_add_u32 v{aK}, v{l31}, 6, v{swk}')
    a.I(f'v_add_u32 v{aK}, s{S_T2}, v{aK}')
    a.I(f'v_xor_b32 v{aK1}, 16, v{aK}')
    a.I(f'v_xor_b32 v{aK2}, 32, v{aK}')
    a.I(f'v_xor_b32 v{aK3}, 48, v{aK}')
    for hd in range(2):
        b = PKD + 16 + 4 * hd
        a.I(f'ds_write_b64 v{aV}, v[{b}:{b+1}] offset:{hd * 2048}')
        a.I(f'ds_write_b64 v{aV2}, v[{b+2}:{b+3}] offset:{hd * 2048}')
    SMT = e0 + 16
    PHQ = 232
    PHK = 160
    for u in (2, 3):
        hd = u & 1
        softmax_unit(a, 16 * u, SMT, PHK + 8 * hd)
        for c, ad in enumerate((aK, aK1, aK2, aK3)):
            b = PHK + 8 * hd + 2 * c
            a.I(f'ds_write_b64 v{ad}, v[{b}:{b+1}] offset:{hd * 4096}')
    rK0, rK1, rV0, rV1 = e0 + 24, e0 + 25, e0 + 26, e0 + 27
    tk = e0 + 28
    a.I(f'v_lshl_add_u32 v{tk}, v{hh}, 3, v{r4}')
    a.I(f'v_bfe_u32 v{rK0}, v{vL}, 4, 1')
    a.I(f'v_lshl_add_u32 v{rK0}, v{rK0}, 2, v{c4}')
    a.I(f'v_lshrrev_b32 v{rK1}, 1, v{tk}')
    a.I(f'v_xor_b32 v{rK0}, v{rK0}, v{rK1}')
    a.I(f'v_lshlrev_b32 v{rK0}, 3, v{rK0}')
    a.I(f'v_lshl_add_u32 v{rK0}, v{tk}, 6, v{rK0}')
    a.I(f's_lshl_b32 s{S_T2}, s{S_W}, 12')
    a.I(f's_add_u32 s{S_T2}, s{S_T2}, {EP_PK}')
    a.I(f'v_add_u32 v{rK0}, s{S_T2}, v{rK0}')
    a.I(f'v_xor_b32 v{rK1}, 16, v{rK0}')
    a.I(f'v_add_u32 v{rK1}, 256, v{rK1}')
    a.I(f'v_lshrrev_b32 v{rV0}, 2, v{tk}')
    a.I(f'v_xor_b32 v{rV0}, v{rV0}, v{c4}')
    a.I(f'v_lshlrev_b32 v{rV0}, 3, v{rV0}')
    a.I(f'v_lshl_add_u32 v{rV0}, v{tk}, 5, v{rV0}')
    a.I(f's_lshl_b32 s{S_T2}, s{S_W}, 11')
    a.I(f's_add_u32 s{S_T2}, s{S_T2}, {EP_VV}')
    a.I(f'v_add_u32 v{rV0}, s{S_T2}, v{rV0}')
    a.I(f'v_xor_b32 v{rV1}, 8, v{rV0}')
    a.I(f'v_add_u32 v{rV1}, 128, v{rV1}')
    a.I('s_waitcnt lgkmcnt(0)')
    a.I('s_barrier')
    KA, KB, KD = 176, 192, 32
    for s in range(4):
        a.I(f'ds_read_b64_tr_b16 v[{KA+4*s}:{KA+4*s+1}], v{rK0} offset:{s * 1024}')
        a.I(f'ds_read_b64_tr_b16 v[{KA+4*s+2}:{KA+4*s+3}], v{rK1} offset:{s * 1024}')
    for s in range(4):
        a.I(f'ds_read_b64_tr_b16 v[{KB+4*s}:{KB+4*s+1}], v{rV0} offset:{s * 512}')
        a.I(f'ds_read_b64_tr_b16 v[{KB+4*s+2}:{KB+4*s+3}], v{rV1} offset:{s * 512}')
    for u in (0, 1):
        softmax_unit(a, 16 * u, SMT, PHQ + 8 * u)
    a.I(f'v_cmp_le_u32 vcc, 16, v{l31}')
    a.I('s_waitcnt lgkmcnt(0)')
    for i in range(16):
        a.I(f'v_cndmask_b32 v{KB+i}, v{KB+i}, v{VONE}, vcc')
    for s in range(4):
        c = '0' if s == 0 else f'v[{KD}:{KD+15}]'
        a.I(f'v_mfma_f32_32x32x16_bf16 v[{KD}:{KD+15}], v[{KA+4*s}:{KA+4*s+3}], v[{KB+4*s}:{KB+4*s+3}], {c}')
    aP = e0 + 30
    a.I(f's_lshl_b32 s{S_T2}, s{S_CG}, 2')
    a.I(f's_add_u32 s{S_T2}, s{S_T2}, s{S_W}')
    a.I(f's_lshl_b32 s{S_T2}, s{S_T2}, 5')
    a.I(f's_add_u32 s{S_T2}, s{S_T2}, s{S_TB}')
    a.I(f's_mul_i32 s{S_T2}, s{S_T2}, {KVP_STRIDE}')
    a.I(f's_add_u32 s{S_T2}, s{S_T2}, {KVP_OFF}')
    a.I(f'v_mul_u32_u24 v{aP}, 17, v{hh}')
    a.I(f'v_add_lshl_u32 v{aP}, v{aP}, v{l31}, 4')
    if store_phiq:
        a.I(f's_lshl_b32 s{S_SOX}, s2, 14')
        a.I(f's_lshl_b32 s{S_SOW0}, s{S_W}, 12')
        a.I(f's_add_u32 s{S_SOX}, s{S_SOX}, s{S_SOW0}')
        a.I(f's_add_u32 s{S_SOX}, s{S_SOX}, {PQ_OFF}')
        for q in range(4):
            a.I(f'buffer_store_dwordx4 v[{PHQ+4*q}:{PHQ+4*q+3}], v{vL16}, s[{S_SRDWS}:{S_SRDWS+3}], s{S_SOX} offen offset:{q * 1024}')
    a.I(f'v_cmp_ge_u32 vcc, 16, v{l31}')
    a.I(f's_and_saveexec_b64 s[{S_EXEC}:{S_EXEC+1}], vcc')
    for q in range(4):
        a.I(f'buffer_store_dwordx4 v[{KD+4*q}:{KD+4*q+3}], v{aP}, s[{S_SRDWS}:{S_SRDWS+3}], s{S_T2} offen offset:{q * 544}')
    a.I(f's_mov_b64 exec, s[{S_EXEC}:{S_EXEC+1}]')
    a.label(end)
    a.I('s_endpgm')


def kernel_wrap(name, body_text, vgpr, accum, sgpr=102):
    return f""".text
.globl {name}
.p2align 8
.type {name},@function
{name}:
{body_text}.section .rodata,"a"
.p2align 6
.amdhsa_kernel {name}
  .amdhsa_next_free_vgpr {vgpr}
  .amdhsa_next_free_sgpr {sgpr}
  .amdhsa_accum_offset {accum}
  .amdhsa_group_segment_fixed_size 0
  .amdhsa_kernarg_size 96
  .amdhsa_user_sgpr_count 2
  .amdhsa_user_sgpr_kernarg_segment_ptr 1
  .amdhsa_system_sgpr_workgroup_id_x 1
  .amdhsa_float_denorm_mode_32 3
.end_amdhsa_kernel
"""


HEADER = """; Kernarg layout for this problem (96 bytes, ptrs only, base s[0:1]):
"""


def main():
    import gen_rest
    out = sys.argv[1] if len(sys.argv) > 1 else f'cdna_kernels/{NAME}.s'
    kernels = []
    a = Asm()
    gen_k1(a)
    kernels.append(('hh_k1_kernel', a.text(), 256, 256, 256, 163840))
    kernels += gen_rest.kernels()
    txt = HEADER
    for nm, _, _, _, grid, lds in kernels:
        txt += f'; @launch kernel={nm} grid=({grid},1,1) block=(256,1,1) lds={lds}\n'
    txt += '.amdgcn_target "amdgcn-amd-amdhsa--gfx950"\n'
    for nm, body, vg, acc, _, _ in kernels:
        txt += kernel_wrap(nm, body, vg, acc)
    open(out, 'w').write(txt)
    print('wrote', out, len(txt), 'bytes')


if __name__ == '__main__':
    main()
```

```python
import re

_REG = re.compile(r'^(-?\|?)([vas])(\d+)\|?$')
_RNG = re.compile(r'^(-?\|?)([vas])\[(\d+):(\d+)\]\|?$')
_ABS = re.compile(r'^-?abs\((.*)\)$')


def regs_of(op):
    op = op.strip()
    m = _ABS.match(op)
    if m:
        op = m.group(1)
    m = _REG.match(op)
    if m:
        return {(m.group(2), int(m.group(3)))}
    m = _RNG.match(op)
    if m:
        return {(m.group(2), i) for i in range(int(m.group(3)), int(m.group(4)) + 1)}
    if op in ('vcc', 'vcc_lo', 'vcc_hi'):
        return {('vcc', 0)}
    if op in ('exec', 'exec_lo', 'exec_hi'):
        return {('exec', 0)}
    if op == 'm0':
        return {('m0', 0)}
    return set()


TRANS = ('v_exp_', 'v_log_', 'v_rcp_', 'v_rsq_', 'v_sqrt_', 'v_sin_', 'v_cos_')


class Ins:
    __slots__ = ('text', 'mn', 'ops', 'cls', 'wr', 'rd', 'srcA', 'srcB', 'srcC', 'passes', 'pos',
                 'dpp', 'trans', 'dot', 'perm', 'data', 'wide', 'lds_dma', 'sregs_rd', 'rdlane')

    def __init__(self, text):
        self.text = text
        t = text.split(';')[0].strip()
        parts = t.split(None, 1)
        self.mn = parts[0]
        rest = parts[1] if len(parts) > 1 else ''
        ops, cur, depth = [], '', 0
        for ch in rest:
            if ch in '[(':
                depth += 1
            if ch in '])':
                depth -= 1
            if ch == ',' and depth == 0:
                ops.append(cur.strip())
                cur = ''
            else:
                cur += ch
        if cur.strip():
            ops.append(cur.strip())
        mods = ''
        if ops:
            sp = ops[-1].split(None, 1)
            ops[-1] = sp[0]
            if len(sp) > 1:
                mods = sp[1]
        self.ops = ops
        mn = self.mn
        self.wr, self.rd = set(), set()
        self.srcA = self.srcB = self.srcC = set()
        self.passes = 0
        self.dpp = '_dpp' in mn or 'quad_perm' in mods or 'row_' in mods
        self.trans = mn.startswith(TRANS)
        self.dot = mn.startswith('v_dot')
        self.perm = mn.startswith('v_permlane')
        self.rdlane = mn.startswith(('v_readlane', 'v_readfirstlane'))
        self.data = set()
        self.wide = False
        self.lds_dma = False
        R = [regs_of(o) for o in ops]
        if mn.startswith('v_mfma'):
            self.cls = 'mfma'
            self.wr = R[0]
            self.srcA, self.srcB, self.srcC = R[1], R[2], R[3]
            self.rd = R[1] | R[2] | R[3]
            self.passes = 8 if '32x32x16' in mn else 4
            assert '32x32x16_bf16' in mn or '16x16x32_bf16' in mn, mn
        elif mn.startswith('v_'):
            self.cls = 'valu'
            if self.perm:
                self.wr = R[0] | R[1]
                self.rd = R[0] | R[1]
            elif mn.startswith('v_cmpx'):
                self.wr = R[0] | {('exec', 0)}
                self.rd = set().union(*R[1:])
            elif '_co_' in mn:
                self.wr = R[0] | R[1]
                self.rd = set().union(*R[2:])
            else:
                self.wr = R[0]
                self.rd = set().union(*R[1:]) if len(R) > 1 else set()
                if mn.startswith(('v_fmac', 'v_dot2c', 'v_pk_fmac', 'v_writelane')):
                    self.rd |= R[0]
                if self.dpp:
                    self.rd |= R[0]
        elif mn.startswith('ds_'):
            self.cls = 'ds'
            if mn.startswith(('ds_read', 'ds_bpermute', 'ds_permute', 'ds_swizzle')):
                self.wr = R[0]
                self.rd = set().union(*R[1:])
            else:
                self.rd = set().union(*R)
        elif mn.startswith(('buffer_', 'global_')):
            self.cls = 'vmem'
            allm = ' ' + mods + ' '
            if mn in ('buffer_wbl2', 'buffer_inv'):
                pass
            elif ' lds ' in allm or '_lds_' in mn:
                self.lds_dma = True
                self.rd = set().union(*R) | {('m0', 0)}
            elif '_load' in mn:
                self.wr = R[0]
                self.rd = set().union(*R[1:])
            else:
                self.rd = set().union(*R)
                if mn.startswith('buffer_'):
                    self.data = R[0]
                else:
                    self.data = R[1]
                self.wide = mn.endswith(('x3', 'x4'))
                if 'atomic' in mn and ' sc0 ' in allm:
                    self.wr = self.data
        elif mn.startswith('s_'):
            self.cls = 'salu'
            if mn.startswith(('s_cmp', 's_waitcnt', 's_barrier', 's_nop', 's_branch', 's_cbranch', 's_endpgm',
                              's_setprio', 's_sleep', 's_bitcmp')):
                self.rd = set().union(*R) if R else set()
            else:
                self.wr = R[0] if R else set()
                self.rd = set().union(*R[1:]) if len(R) > 1 else set()
                if 'saveexec' in mn:
                    self.wr = self.wr | {('exec', 0)}
        else:
            raise ValueError('unknown instruction ' + text)


def need_ws(p, c):
    n = 0
    vec = lambda s: {r for r in s if r[0] in 'va'}
    sc = lambda s: {r for r in s if r[0] in ('s', 'vcc')}
    if p.cls == 'mfma':
        D = p.wr
        if c.cls == 'mfma':
            if D & (c.srcA | c.srcB):
                n = max(n, {4: 8, 8: 12}[p.passes])
            if D & c.srcC:
                if c.srcC == D and c.passes == p.passes:
                    pass
                else:
                    n = max(n, {4: 6, 8: 10}[p.passes])
            elif D & c.wr:
                n = max(n, {4: 8, 8: 12}[p.passes])
        else:
            if D & (c.rd | c.wr):
                n = max(n, {4: 8, 8: 12}[p.passes])
            if c.cls == 'valu' and (p.srcC & c.wr):
                n = max(n, {4: 3, 8: 7}[p.passes])
    elif p.cls == 'valu':
        if c.cls == 'mfma':
            if vec(p.wr) & c.rd:
                n = max(n, 3 if p.dot else 2)
            if ('exec', 0) in p.wr:
                n = max(n, 4)
        if c.cls == 'valu':
            if vec(p.wr) & c.rd:
                if c.dpp or c.perm:
                    n = max(n, 2)
                if c.rdlane:
                    n = max(n, 1)
                if p.trans and not c.trans:
                    n = max(n, 1)
            if p.dot and (vec(p.wr) & (c.rd | c.wr)) and c.mn != p.mn:
                n = max(n, 3)
            if sc(p.wr) & c.rd:
                n = max(n, 4 if c.mn.startswith(('v_readlane', 'v_writelane')) else 2)
            if ('exec', 0) in p.wr:
                if c.dpp:
                    n = max(n, 5)
                if c.perm or c.rdlane:
                    n = max(n, 4)
        if c.cls == 'vmem' and (sc(p.wr) & c.rd):
            n = max(n, 5)
        if c.cls == 'salu' and (sc(p.wr) & c.rd):
            n = max(n, 1)
        if c.cls in ('ds', 'vmem') and p.trans and (vec(p.wr) & c.rd):
            n = max(n, 1)
        if c.cls in ('ds', 'vmem') and p.dot and (vec(p.wr) & c.rd):
            n = max(n, 3)
    elif p.cls == 'salu':
        if ('m0', 0) in p.wr and c.lds_dma:
            n = max(n, 1)
    elif p.cls == 'vmem':
        if p.wide and (p.data & c.wr):
            n = max(n, 2 if c.cls in ('valu', 'mfma') else 1)
    elif p.cls == 'ds':
        if p.mn.startswith('ds_write_b128') and c.cls in ('valu',) and (p.rd & c.wr):
            n = max(n, 1)
    return n


class Asm:
    def __init__(self):
        self.lines = []
        self.hist = []
        self.pos = 0
        self.vm_issued = 0
        self.lg_issued = 0
        self.nlabel = 0
        self.nbytes_hint = 0
        self.bg = []
        self.bg_pace = 85
        self.bg_acc = 0
        self.bg_lock = 0

    def raw(self, s):
        self.lines.append(s)

    def comment(self, s):
        self.lines.append('    ; ' + s)

    def label(self, name):
        self.flush()
        self.lines.append(name + ':')

    def newlabel(self, base='L'):
        self.nlabel += 1
        return '%s_%d' % (base, self.nlabel)

    def flush(self):
        worst = 0
        for p in self.hist:
            w = 0
            if p.cls == 'mfma':
                w = {4: 8, 8: 12}[p.passes]
            elif p.cls == 'valu':
                w = 5 if any(r[0] in ('s', 'vcc', 'exec') for r in p.wr) else (3 if p.dot else 2)
            elif p.cls == 'salu' and ('m0', 0) in p.wr:
                w = 1
            elif p.cls == 'vmem' and p.wide:
                w = 2
            elif p.cls == 'ds':
                w = 1 if p.mn.startswith('ds_write_b128') else 0
            rem = w - (self.pos - p.pos - 1)
            worst = max(worst, rem)
        self._nop(worst)
        self.hist = []

    def _nop(self, n):
        while n > 0:
            k = min(n, 16)
            self.lines.append('    s_nop %d' % (k - 1))
            self.pos += k
            n -= k

    def lock(self):
        self.bg_lock += 1

    def unlock(self):
        self.bg_lock -= 1
        assert self.bg_lock >= 0

    def bg_add(self, fn):
        self.bg.append(fn)

    def bg_emit(self, n=1):
        self.bg_lock += 1
        while n > 0 and self.bg:
            self.bg.pop(0)()
            n -= 1
        self.bg_lock -= 1

    def bg_drain(self):
        self.bg_emit(1 << 30)

    @staticmethod
    def cost(ins):
        if ins.cls == 'mfma':
            return 32 if ins.passes == 8 else 16
        if ins.cls == 'valu':
            return 9 if ins.trans else 5
        if ins.cls == 'ds':
            return 2
        if ins.cls == 'vmem':
            return 4
        return 1

    def I(self, text):
        tok = self._I(text)
        if self.bg and not self.bg_lock:
            self.bg_acc += self.cost(self.hist[-1])
            if self.bg_acc >= self.bg_pace:
                self.bg_acc -= self.bg_pace
                self.bg_emit(1)
        return tok

    def _I(self, text):
        ins = Ins(text)
        if ins.mn.startswith(('s_cbranch', 's_branch')):
            keep = [p for p in self.hist if p.cls == 'valu' and ('vcc', 0) in p.wr and len(p.wr) == 1]
            self.hist = [p for p in self.hist if p not in keep]
            self.flush()
        need = 0
        for p in self.hist:
            w = need_ws(p, ins)
            if w:
                have = self.pos - p.pos - 1
                need = max(need, w - have)
        self._nop(need)
        ins.pos = self.pos
        if ins.mn == 's_nop':
            self.pos += int(ins.ops[0]) + 1
        else:
            self.pos += 1
        self.lines.append('    ' + text)
        self.hist.append(ins)
        self.hist = [p for p in self.hist if self.pos - p.pos <= 24]
        tok = None
        if ins.cls == 'vmem' and ins.mn not in ('buffer_wbl2', 'buffer_inv'):
            self.vm_issued += 1
            tok = self.vm_issued
        elif ins.cls == 'ds':
            self.lg_issued += 1
            tok = self.lg_issued
        return tok

    def wait_vm(self, tok):
        n = self.vm_issued - tok
        assert n >= 0
        if n > 63:
            n = 63
        self.I('s_waitcnt vmcnt(%d)' % n)

    def wait_lg(self, tok):
        n = self.lg_issued - tok
        assert n >= 0
        if n > 15:
            n = 15
        self.I('s_waitcnt lgkmcnt(%d)' % n)

    def text(self):
        return '\n'.join(self.lines) + '\n'
```

```python
import sys
import os
import math
import struct
sys.path.insert(0, os.path.dirname(os.path.abspath(__file__)))
from asmlib import Asm

NAME = 'parallel_sum__linear_kernel_hedgehog__mixer_token_mlp__prompt'
OPT = dict(kv.split('=') for kv in os.environ.get('OPT', '').split(',') if kv)


def opt(k, d):
    return int(OPT.get(k, d))


def f32bits(x):
    return struct.unpack('<I', struct.pack('<f', x))[0]


MB = 1 << 20
HF_OFF = 0
W1F_OFF = 2 * MB
W1F_SIZE = 86 * 65536
KVP_OFF = 8 * MB
KVP_STRIDE = 2176
KVF_OFF = 11 * MB
UF_OFF = 12 * MB
UF_DT = 88 * 2048
OF_OFF = 14 * MB
STAMP_OFF = 20 * MB
WS_USED = 24 * MB

LOG2E = 0x3fb8aa3b
ONES = 0x3f803f80
GK1 = f32bits(-2.0 * math.sqrt(2.0 / math.pi) * math.log2(math.e))
GK2 = f32bits(-2.0 * math.sqrt(2.0 / math.pi) * math.log2(math.e) * 0.044715)
STAMPS = os.environ.get('STAMPS', '0') == '1'

P_X, P_WQKV, P_WPHI, P_WO, P_BX, P_W1, P_B1, P_W2, P_B2, P_OUT, P_DBG, P_WS = [4 + 2 * i for i in range(12)]
R_X, R_W, R_W1, R_WS, R_W1F, R_TMP, R_DBG, R_OUT = 28, 32, 36, 40, 44, 48, 52, 56
R_T = R_W
R_C = R_W1F
R_F = R_TMP
R_B = R_W1
(S_W, S_TB, S_CG, S_IA, S_T0, S_T1, S_T2, S_XW, S_WW, S_SOX, S_SOW0, S_SOW1, S_XCD, S_J, S_DT, S_FT,
 S_K1, S_K2, S_K3, S_L2E, S_SPIN, S_LW, S_LW2, S_STEP) = range(60, 84)
S_EXEC = 84
S_SOT, S_SOF, S_RS, S_CNT = 86, 87, 88, 89
S_STAMP = 90

XS0, WS0 = 0, 40960
def XS(slot): return XS0 + slot * 8192
def WSL(slot): return WS0 + slot * 24576
HS = XS(4)
W1S = WSL(4)
WPHI_L = W1S + 22 * 1024
EP = WSL(3)
EP_CS, EP_ST, EP_PK, EP_VV = EP, EP + 1024, EP + 2048, EP + 2048 + 16384
TLO = 13
TSLOTS = 20
CRED = 106496

vL, l31, hh, i16, gq, r4, c4, l3, l7 = range(144, 153)
t0, t1, t2 = 153, 154, 155
vAX, vL16, vPOLL, vPOFF = 156, 157, 158, 159
PHQ = 232
vCA_ = 248
vSTAMP = 255


class K(Asm):
    def __init__(self):
        super().__init__()
        self.pending = []
        self.nstamp = 0

    def stamp(self, rt=False):
        if not STAMPS:
            return
        slot = len(self.pending)
        assert slot < 6
        r = S_STAMP + 2 * slot
        self.I(f's_memrealtime s[{r}:{r+1}]' if rt else f's_memtime s[{r}:{r+1}]')
        self.pending.append((self.nstamp, r))
        self.nstamp += 1

    def collect(self):
        if not STAMPS or not self.pending:
            return
        self.I('s_waitcnt lgkmcnt(0)')
        for idx, r in self.pending:
            self.I(f'v_writelane_b32 v{vSTAMP}, s{r}, {idx}')
        self.pending = []


def srd(a, d, ptr, nbytes, off_sgpr=None, off_imm=0):
    a.lock()
    if off_sgpr is None and off_imm == 0:
        a.I(f's_mov_b32 s{d}, s{ptr}')
        a.I(f's_mov_b32 s{d+1}, s{ptr+1}')
    elif off_sgpr is not None:
        a.I(f's_add_u32 s{d}, s{ptr}, s{off_sgpr}')
        a.I(f's_addc_u32 s{d+1}, s{ptr+1}, 0')
        assert off_imm == 0
    else:
        a.I(f's_add_u32 s{d}, s{ptr}, {off_imm}')
        a.I(f's_addc_u32 s{d+1}, s{ptr+1}, 0')
    a.I(f's_mov_b32 s{d+2}, {nbytes}')
    a.I(f's_mov_b32 s{d+3}, 0x20000')
    a.unlock()


def S(r):
    return f's[{r}:{r+3}]'


def bf16_round(a, dst, src):
    a.I(f'v_cvt_pk_bf16_f32 v{dst}, v{src}, v{src}')
    a.I(f'v_and_b32 v{dst}, 0xffff0000, v{dst}')


def ln_scalars(a, vsum, vsq, vm, vrs, t):
    a.I(f'v_mul_f32 v{vsum}, 0x3b000000, v{vsum}')
    a.I(f'v_mul_f32 v{vsq}, 0x3b000000, v{vsq}')
    a.I(f'v_fma_f32 v{vsq}, -v{vsum}, v{vsum}, v{vsq}')
    a.I(f'v_max_f32 v{vsq}, 0, v{vsq}')
    bf16_round(a, vm, vsum)
    bf16_round(a, t, vsq)
    a.I(f'v_add_f32 v{t}, 0x3727c5ac, v{t}')
    bf16_round(a, t, t)
    a.I(f'v_sqrt_f32 v{t}, v{t}')
    bf16_round(a, t, t)
    a.I(f'v_rcp_f32 v{vrs}, v{t}')


def reduce32(a, regs, tmps):
    for ctl in ('quad_perm:[1,0,3,2]', 'quad_perm:[2,3,0,1]', 'row_half_mirror', 'row_mirror'):
        for r in regs:
            a.I(f'v_add_f32_dpp v{r}, v{r}, v{r} {ctl} row_mask:0xf bank_mask:0xf')
    for r, t in zip(regs, tmps):
        a.I(f'v_mov_b32 v{t}, v{r}')
    for r, t in zip(regs, tmps):
        a.I(f'v_permlane16_swap_b32 v{r}, v{t}')
    for r, t in zip(regs, tmps):
        a.I(f'v_add_f32 v{r}, v{r}, v{t}')


def softmax2(a, Ps, T, OUTs):
    U = [(P, T + 4 * u, O) for u, (P, O) in enumerate(zip(Ps, OUTs))]
    for step in range(4):
        for P, Tb, _ in U:
            for t, b in ((Tb, P), (Tb + 1, P + 8)):
                if step == 0:
                    a.I(f'v_max3_f32 v{t}, v{b}, v{b+1}, v{b+2}')
                elif step < 3:
                    a.I(f'v_max3_f32 v{t}, v{t}, v{b+1+2*step}, v{b+2+2*step}')
                else:
                    a.I(f'v_max_f32 v{t}, v{t}, v{b+7}')
    for P, Tb, _ in U:
        a.I(f'v_permlane32_swap_b32 v{Tb}, v{Tb+1}')
    for P, Tb, _ in U:
        a.I(f'v_max_f32 v{Tb+2}, v{Tb}, v{Tb+1}')
    for P, Tb, _ in U:
        a.I(f'v_mul_f32 v{Tb+2}, s{S_L2E}, v{Tb+2}')
    for P, Tb, _ in U:
        a.I(f'v_mov_b32 v{Tb+3}, v{Tb+2}')
    for P, Tb, _ in U:
        a.I(f'v_permlane32_swap_b32 v{Tb+2}, v{Tb+3}')
    for P, Tb, _ in U:
        for i in range(16):
            m = Tb + 2 if i < 8 else Tb + 3
            a.I(f'v_fma_f32 v{P+i}, v{P+i}, s{S_L2E}, -v{m}')
            a.I(f'v_exp_f32 v{P+i}, v{P+i}') if False else None
    for P, Tb, _ in U:
        for i in range(16):
            a.I(f'v_exp_f32 v{P+i}, v{P+i}')
    for P, Tb, O in U:
        for hlf in range(2):
            b = P + 8 * hlf
            o = O + 4 * hlf
            a.I(f'v_pk_add_f32 v[{o}:{o+1}], v[{b}:{b+1}], v[{b+2}:{b+3}]')
            a.I(f'v_pk_add_f32 v[{o+2}:{o+3}], v[{b+4}:{b+5}], v[{b+6}:{b+7}]')
    for P, Tb, O in U:
        for hlf in range(2):
            o = O + 4 * hlf
            a.I(f'v_pk_add_f32 v[{o}:{o+1}], v[{o}:{o+1}], v[{o+2}:{o+3}]')
    for P, Tb, O in U:
        for hlf in range(2):
            o = O + 4 * hlf
            a.I(f'v_add_f32 v{Tb+hlf}, v{o}, v{o+1}')
    for P, Tb, _ in U:
        a.I(f'v_permlane32_swap_b32 v{Tb}, v{Tb+1}')
    for P, Tb, _ in U:
        a.I(f'v_add_f32 v{Tb+2}, v{Tb}, v{Tb+1}')
    for P, Tb, _ in U:
        a.I(f'v_rcp_f32 v{Tb+2}, v{Tb+2}')
    for P, Tb, _ in U:
        a.I(f'v_mov_b32 v{Tb+3}, v{Tb+2}')
    for P, Tb, _ in U:
        a.I(f'v_permlane32_swap_b32 v{Tb+2}, v{Tb+3}')
    for P, Tb, _ in U:
        for i in range(8):
            sel = 'op_sel:[0,0] op_sel_hi:[1,0]' if i < 4 else 'op_sel:[0,1] op_sel_hi:[1,1]'
            a.I(f'v_pk_mul_f32 v[{P+2*i}:{P+2*i+1}], v[{P+2*i}:{P+2*i+1}], v[{Tb+2}:{Tb+3}] {sel}')
    for P, Tb, O in U:
        for i in range(8):
            a.I(f'v_cvt_pk_bf16_f32 v{O+i}, v{P+2*i}, v{P+2*i+1}')


def publish(a, soff_sgpr_or_imm, name):
    a.lock()
    a.I('s_barrier')
    a.I(f's_cmp_lg_u32 s{S_W}, 0')
    a.I(f's_cbranch_scc1 {name}')
    save = a.vm_issued
    a.I(f'v_mov_b32 v{vPOLL}, 1')
    a.I(f'v_mov_b32 v{vPOFF}, 0')
    a.I('s_mov_b64 exec, 1')
    a.I(f'buffer_atomic_add v{vPOLL}, v{vPOFF}, {S(R_DBG)}, {soff_sgpr_or_imm} offen sc1')
    a.I('s_mov_b64 exec, -1')
    a.vm_issued = save
    a.label(name)
    a.unlock()


def poll_issue(a, soff):
    return a.I(f'buffer_load_dword v{vPOLL}, v{vPOFF}, {S(R_DBG)}, {soff} offen sc1')


def poll_check(a, tok, soff, expected, name):
    a.lock()
    if tok is None:
        a.I('s_waitcnt vmcnt(0)')
    else:
        a.wait_vm(tok)
    a.I(f'v_cmp_ne_u32 vcc, {expected}, v{vPOLL}')
    a.I(f's_cbranch_vccz {name}_OK')
    a.I(f's_mov_b32 s{S_SPIN}, 0')
    a.label(name + '_SPIN')
    save = a.vm_issued
    a.I('s_sleep 1')
    a.I(f'buffer_load_dword v{vPOLL}, v{vPOFF}, {S(R_DBG)}, {soff} offen sc1')
    a.I(f's_add_u32 s{S_SPIN}, s{S_SPIN}, 1')
    a.I(f's_cmp_gt_u32 s{S_SPIN}, 0x40000')
    a.I(f's_cbranch_scc1 {name}_OK')
    a.I('s_waitcnt vmcnt(0)')
    a.I(f'v_cmp_ne_u32 vcc, {expected}, v{vPOLL}')
    a.I(f's_cbranch_vccnz {name}_SPIN')
    a.vm_issued = save
    a.label(name + '_OK')
    a.unlock()


def gen(a):
    end = 'L_END'
    a.I('s_cmp_ge_u32 s2, 256')
    a.I(f's_cbranch_scc1 {end}')
    a.I('s_load_dwordx16 s[4:19], s[0:1], 0')
    a.I('s_load_dwordx8 s[20:27], s[0:1], 64')
    a.stamp(rt=True)
    a.stamp()
    if opt('codepf', 1):
        a.raw('L_PC:')
        a.I(f's_getpc_b64 s[{R_TMP}:{R_TMP+1}]')
        a.I(f's_mov_b32 s{R_TMP+2}, L_END-L_PC')
        a.I(f's_mov_b32 s{R_TMP+3}, 0x20000')
        a.I('s_bfe_u32 s3, s2, 0x20003')
        a.I('s_lshl_b32 s3, s3, 13')
        a.I(f'v_lshlrev_b32 v{t0}, 5, v0')
        a.I(f'v_and_b32 v{t0}, 0x1f80, v{t0}')
        a.I(f'buffer_load_dword v128, v{t0}, {S(R_TMP)}, s3 offen')
    ACC, CSA, XSUM, GRAM, VONE = 0, 48, 60, 64, 68
    FR, AUXE, AUXO, PHI = 72, 104, 112, 120
    vXD0, vXD1, vWD = 129, 130, 131
    vXA, vWA, vCA, vSA = 132, 136, 139, 142
    vH = 160

    a.I(f'v_and_b32 v{vL}, 63, v0')
    a.I(f'v_lshrrev_b32 v{t0}, 6, v0')
    a.I(f'v_readfirstlane_b32 s{S_W}, v{t0}')
    a.I(f's_and_b32 s{S_XCD}, s2, 7')
    a.I(f's_lshr_b32 s{S_J}, s2, 3')
    a.I(f's_lshl_b32 s{S_IA}, s{S_XCD}, 5')
    a.I(f's_add_u32 s{S_IA}, s{S_IA}, s{S_J}')
    a.I(f's_lshr_b32 s{S_TB}, s{S_XCD}, 1')
    a.I(f's_lshl_b32 s{S_TB}, s{S_TB}, 3')
    a.I(f's_lshr_b32 s{S_T2}, s{S_J}, 2')
    a.I(f's_add_u32 s{S_TB}, s{S_TB}, s{S_T2}')
    a.I(f's_and_b32 s{S_CG}, s{S_XCD}, 1')
    a.I(f's_lshl_b32 s{S_CG}, s{S_CG}, 2')
    a.I(f's_and_b32 s{S_T2}, s{S_J}, 3')
    a.I(f's_add_u32 s{S_CG}, s{S_CG}, s{S_T2}')
    a.I(f's_lshl_b32 s{S_XW}, s{S_W}, 11')
    a.I(f's_mul_i32 s{S_WW}, s{S_W}, 6144')
    a.I(f's_mov_b32 s{S_L2E}, {LOG2E}')
    a.I(f'v_and_b32 v{l31}, 31, v{vL}')
    a.I(f'v_lshrrev_b32 v{hh}, 5, v{vL}')
    a.I(f'v_lshlrev_b32 v{vAX}, 10, v{hh}')
    a.I(f'v_lshl_add_u32 v{vAX}, v{l31}, 4, v{vAX}')
    a.I(f'v_lshlrev_b32 v{vL16}, 4, v{vL}')
    a.I(f's_mul_i32 s{S_T2}, s{S_IA}, 22016')
    a.I(f's_lshl_b32 s{S_T0}, s{S_IA}, 13')
    a.I(f's_add_u32 s{S_T0}, s{S_T0}, s{S_XW}')
    a.I(f's_lshl_b32 s{S_T1}, s{S_W}, 10')
    a.I('s_waitcnt lgkmcnt(0)')
    srd(a, R_X, P_X, 2048 * 1024)
    a.I(f'buffer_load_dwordx4 v[{vH}:{vH+3}], v{vAX}, {S(R_X)}, s{S_T0} offen')
    tokAX = a.I(f'buffer_load_dwordx4 v[{vH+4}:{vH+7}], v{vAX}, {S(R_X)}, s{S_T0} offen offset:512')
    srd(a, R_W1, P_W1, 22016, off_sgpr=S_T2)
    for j in range(5):
        a.I(f's_add_u32 m0, s{S_T1}, {W1S + j * 4096}')
        a.I(f's_add_u32 s{S_T0}, s{S_T1}, {j * 4096}')
        a.I(f'buffer_load_dwordx4 v{vL16}, {S(R_W1)}, s{S_T0} offen lds')
    a.I(f's_cmp_ge_u32 s{S_W}, 2')
    a.I(f's_cselect_b32 s{R_TMP}, s{P_WPHI}, s{R_W1}')
    a.I(f's_cselect_b32 s{R_TMP+1}, s{P_WPHI+1}, s{R_W1+1}')
    a.I(f's_cselect_b32 s{R_TMP+2}, 16384, s{R_W1+2}')
    a.I(f's_mov_b32 s{R_TMP+3}, 0x20000')
    a.I(f's_lshl_b32 s{S_T0}, s{S_CG}, 11')
    a.I(f's_sub_u32 s{S_T0}, s{S_T0}, 2048')
    a.I(f's_cmp_ge_u32 s{S_W}, 2')
    a.I(f's_cselect_b32 s{S_T0}, s{S_T0}, {20 * 1024}')
    a.I(f's_add_u32 s{S_T0}, s{S_T0}, s{S_T1}')
    a.I(f's_add_u32 m0, s{S_T1}, {W1S + 20 * 1024}')
    tokW1 = a.I(f'buffer_load_dwordx4 v{vL16}, {S(R_TMP)}, s{S_T0} offen lds')
    srd(a, R_W, P_WQKV, 512 * 3072)

    a.I(f'v_and_b32 v{i16}, 15, v{vL}')
    a.I(f'v_lshrrev_b32 v{gq}, 4, v{vL}')
    a.I(f'v_bfe_u32 v{r4}, v{vL}, 2, 2')
    a.I(f'v_and_b32 v{c4}, 3, v{vL}')
    a.I(f'v_lshrrev_b32 v{l3}, 3, v{vL}')
    a.I(f'v_and_b32 v{l7}, 7, v{vL}')

    if opt('coop', 1):
        vp = vH + 30
        a.I(f's_lshr_b32 s{S_T0}, s{S_XCD}, 1')
        a.I(f's_lshl_b32 s{S_T0}, s{S_T0}, 19')
        a.I(f's_lshl_b32 s{S_T2}, s{S_J}, 14')
        a.I(f's_add_u32 s{S_T0}, s{S_T0}, s{S_T2}')
        a.I(f'v_lshrrev_b32 v{t0}, 4, v0')
        a.I(f'v_mul_u32_u24 v{t0}, 3072, v{t0}')
        a.I(f'v_lshl_add_u32 v{t0}, v{r4}, 10, v{t0}')
        a.I(f'v_lshl_add_u32 v{t0}, v{c4}, 7, v{t0}')
        a.I(f's_mul_i32 s{S_T2}, s{S_J}, {16 * 3072}')
        a.I(f's_and_b32 s{S_SOX}, s{S_XCD}, 1')
        a.I(f's_lshl_b32 s{S_SOX}, s{S_SOX}, 9')
        a.I(f's_add_u32 s{S_T2}, s{S_T2}, s{S_SOX}')
        a.I(f'v_cmp_ne_u32 vcc, 3, v{r4}')
        a.I(f's_and_saveexec_b64 s[{S_EXEC}:{S_EXEC+1}], vcc')
        a.I(f'buffer_load_dword v{vp}, v{t0}, {S(R_W)}, s{S_T2} offen')
        a.I(f's_mov_b64 exec, s[{S_EXEC}:{S_EXEC+1}]')
        a.I(f'v_lshlrev_b32 v{t1}, 7, v{l31}')
        a.I(f's_lshl_b32 s{S_T2}, s{S_W}, 12')
        a.I(f's_add_u32 s{S_T0}, s{S_T0}, s{S_T2}')
        a.I('s_mov_b32 exec_hi, 0')
        a.I(f'buffer_load_dword v{vp+1}, v{t1}, {S(R_X)}, s{S_T0} offen')
        a.I('s_mov_b32 exec_hi, -1')

    a.I(f's_lshl_b32 s{S_T0}, s{S_TB}, 16')
    a.I(f's_lshl_b32 s{S_T1}, s{S_W}, 14')
    a.I(f's_add_u32 s{S_T0}, s{S_T0}, s{S_T1}')
    a.I(f'v_xor_b32 v{t0}, v{l7}, v{gq}')
    a.I(f'v_lshlrev_b32 v{t0}, 4, v{t0}')
    a.I(f'v_lshl_add_u32 v{t0}, v{l3}, 10, v{t0}')
    a.I(f'v_add_u32 v{vXD0}, s{S_T0}, v{t0}')
    a.I(f'v_xor_b32 v{vXD1}, 64, v{vXD0}')
    a.I(f'v_add_u32 v{vXD1}, {8192 - 1024}, v{vXD1}')
    a.I(f's_mul_i32 s{S_T0}, s{S_W}, {16 * 3072}')
    a.I(f's_lshl_b32 s{S_T1}, s{S_CG}, 7')
    a.I(f's_add_u32 s{S_T0}, s{S_T0}, s{S_T1}')
    a.I(f'v_and_b32 v{t0}, 1, v{gq}')
    a.I(f'v_lshlrev_b32 v{t0}, 2, v{t0}')
    a.I(f'v_xor_b32 v{t0}, v{l7}, v{t0}')
    a.I(f'v_lshlrev_b32 v{t0}, 4, v{t0}')
    a.I(f'v_mul_u32_u24 v{t1}, 3072, v{l3}')
    a.I(f'v_add3_u32 v{vWD}, v{t0}, v{t1}, s{S_T0}')

    stage_tok = {}

    def queue_stage(st):
        slot = st % 5

        def x_item(p):
            def f():
                a.I(f's_mov_b32 s{S_SOX}, {st * 128}')
                a.I(f's_add_u32 m0, s{S_XW}, {XS(slot)}')
                if p == 0:
                    a.I(f'buffer_load_dwordx4 v{vXD0}, {S(R_X)}, s{S_SOX} offen lds')
                else:
                    a.I(f'buffer_load_dwordx4 v{vXD1}, {S(R_X)}, s{S_SOX} offen offset:1024 lds')
            return f

        def w_item(p, seg):
            def f():
                a.I(f's_mov_b32 s{S_SOW0}, {st * 196608 + p * 24576}')
                a.I(f's_add_u32 m0, s{S_WW}, {WSL(slot) + p * 3072}')
                off = f' offset:{seg * 1024}' if seg else ''
                stage_tok[st] = a.I(f'buffer_load_dwordx4 v{vWD}, {S(R_W)}, s{S_SOW0} offen{off} lds')
            return f
        for p in range(2):
            a.bg_add(x_item(p))
        for p in range(2):
            for seg in range(3):
                a.bg_add(w_item(p, seg))

    npend = {}

    def need_stage(st):
        while len(a.bg) > npend[st]():
            a.bg_emit(1)

    total_q = [0]

    def queue_stage_tracked(st):
        queue_stage(st)
        total_q[0] += 8
        mark = total_q[0]
        npend[st] = lambda: total_q[0] - mark

    for st in range(4):
        queue_stage_tracked(st)
    a.bg_pace = opt('paceA', 70)
    a.bg_emit(opt('pre', 4))

    srd(a, R_WS, P_WS, WS_USED)
    srd(a, R_W1F, P_WS, W1F_SIZE, off_imm=W1F_OFF)
    srd(a, R_DBG, P_DBG, 256)

    a.I(f's_and_b32 s{S_T0}, s{S_W}, 1')
    a.I(f's_lshr_b32 s{S_T1}, s{S_W}, 1')
    a.I(f'v_bfe_u32 v{t0}, v{vL}, 1, 3')
    a.I(f'v_xor_b32 v{t0}, v{t0}, v{hh}')
    a.I(f'v_lshlrev_b32 v{t0}, 4, v{t0}')
    a.I(f'v_lshl_add_u32 v{t0}, v{l31}, 7, v{t0}')
    a.I(f's_lshl_b32 s{S_T2}, s{S_T0}, 12')
    a.I(f'v_add_u32 v{vXA}, s{S_T2}, v{t0}')
    for ks in range(1, 4):
        a.I(f'v_xor_b32 v{vXA+ks}, {ks * 32}, v{vXA}')
    a.I(f'v_bfe_u32 v{t0}, v{vL}, 3, 1')
    a.I(f'v_lshlrev_b32 v{t0}, 2, v{t0}')
    a.I(f'v_and_b32 v{t1}, 1, v{vL}')
    a.I(f'v_lshlrev_b32 v{t1}, 3, v{t1}')
    a.I(f'v_lshl_add_u32 v{t1}, v{r4}, 7, v{t1}')
    a.I(f'v_bfe_u32 v{t2}, v{vL}, 4, 1')
    a.I(f'v_lshlrev_b32 v{t2}, 1, v{t2}')
    a.I(f'v_bfe_u32 v{vWA}, v{vL}, 1, 1')
    a.I(f'v_add_u32 v{t2}, v{t2}, v{vWA}')
    a.I(f's_lshl_b32 s{S_T2}, s{S_T1}, 2')
    a.I(f'v_add_u32 v{t2}, s{S_T2}, v{t2}')
    a.I(f'v_xor_b32 v{t2}, v{t2}, v{t0}')
    a.I(f'v_lshl_add_u32 v{t2}, v{t2}, 4, v{t1}')
    a.I(f'v_mul_u32_u24 v{vWA}, 3072, v{hh}')
    a.I(f'v_add_u32 v{t2}, v{t2}, v{vWA}')
    for b in range(3):
        a.I(f'v_add_u32 v{vWA+b}, {WS0 + b * 49152}, v{t2}')
    a.I(f'v_bfe_u32 v{t2}, v{vL}, 1, 1')
    a.I(f's_lshl_b32 s{S_T2}, s{S_W}, 1')
    a.I(f'v_add_u32 v{t2}, s{S_T2}, v{t2}')
    a.I(f'v_xor_b32 v{t2}, v{t2}, v{t0}')
    a.I(f'v_lshl_add_u32 v{t2}, v{t2}, 4, v{t1}')
    a.I(f'v_mul_u32_u24 v{vCA}, 3072, v{gq}')
    a.I(f'v_add_u32 v{t2}, v{t2}, v{vCA}')
    for b in range(3):
        a.I(f'v_add_u32 v{vCA+b}, {WS0 + b * 49152}, v{t2}')
    a.I(f'v_bfe_u32 v{t0}, v{vL}, 1, 3')
    a.I(f'v_xor_b32 v{t0}, v{t0}, v{gq}')
    a.I(f'v_lshlrev_b32 v{t0}, 4, v{t0}')
    a.I(f'v_lshl_add_u32 v{t0}, v{i16}, 7, v{t0}')
    a.I(f'v_add_u32 v{vSA}, s{S_XW}, v{t0}')
    a.I(f'v_xor_b32 v{vSA+1}, 64, v{vSA}')
    for i in range(4):
        a.I(f'v_mov_b32 v{VONE+i}, {ONES}')

    X = vH
    sm, sq, vm, vrs, tt, tt2_ = vH + 8, vH + 9, vH + 10, vH + 11, vH + 12, vH + 13
    U = vH + 32
    aHW0, aHW1 = vH + 14, vH + 15
    aH0, aH1, aW1, aST, aPH, vSG = vH + 16, vH + 17, vH + 18, vH + 19, vH + 20, vH + 21
    a.I(f's_lshl_b32 s{S_T0}, s{S_W}, 1')
    a.I(f'v_add_u32 v{t0}, s{S_T0}, v{hh}')
    a.I(f'v_and_b32 v{t1}, 3, v{t0}')
    a.I(f'v_lshlrev_b32 v{t1}, 6, v{t1}')
    a.I(f'v_lshl_add_u32 v{t1}, v{l31}, 4, v{t1}')
    a.I(f'v_lshl_add_u32 v{aHW0}, v{t0}, 10, v{t1}')
    a.I(f'v_add_u32 v{t1}, 512, v{t1}')
    a.I(f'v_and_b32 v{t1}, 1023, v{t1}')
    a.I(f'v_lshl_add_u32 v{aHW1}, v{t0}, 10, v{t1}')
    a.I(f'v_lshlrev_b32 v{t0}, 5, v{gq}')
    a.I(f'v_lshl_add_u32 v{t0}, v{c4}, 3, v{t0}')
    a.I(f's_lshl_b32 s{S_T0}, s{S_W}, 8')
    a.I(f'v_lshl_add_u32 v{t1}, v{r4}, 6, v{t0}')
    a.I(f'v_add_u32 v{t1}, s{S_T0}, v{t1}')
    a.I(f'v_add_u32 v{t2}, 128, v{t1}')
    a.I(f'v_and_b32 v{t1}, 1023, v{t1}')
    a.I(f'v_and_b32 v{t2}, 1023, v{t2}')
    a.I(f'v_lshl_add_u32 v{aH0}, v{r4}, 10, v{t1}')
    a.I(f'v_lshl_add_u32 v{aH1}, v{r4}, 10, v{t2}')
    a.I(f'v_mul_u32_u24 v{aW1}, 2752, v{r4}')
    a.I(f's_lshl_b32 s{S_T0}, s{S_W}, 7')
    a.I(f's_add_u32 s{S_T0}, s{S_T0}, {W1S}')
    a.I(f'v_add3_u32 v{aW1}, v{aW1}, v{t0}, s{S_T0}')
    a.I(f's_and_b32 s{S_T0}, s{S_IA}, 3')
    a.I(f's_lshl_b32 s{S_T0}, s{S_T0}, 8')
    a.I(f's_lshr_b32 s{S_T1}, s{S_IA}, 2')
    a.I(f's_lshl_b32 s{S_T1}, s{S_T1}, 10')
    a.I(f's_add_u32 s{S_T0}, s{S_T0}, s{S_T1}')
    a.I(f'v_lshlrev_b32 v{aST}, 16, v{gq}')
    a.I(f'v_lshl_add_u32 v{aST}, v{i16}, 4, v{aST}')
    a.I(f'v_add_u32 v{aST}, s{S_T0}, v{aST}')
    a.I(f'v_lshl_add_u32 v{aPH}, v{hh}, 2, v{r4}')
    a.I(f'v_lshlrev_b32 v{aPH}, 5, v{aPH}')
    a.I(f'v_lshl_add_u32 v{aPH}, v{c4}, 3, v{aPH}')
    a.I(f's_lshr_b32 s{S_T0}, s{S_W}, 1')
    a.I(f's_lshl_b32 s{S_T0}, s{S_T0}, 10')
    a.I(f's_add_u32 s{S_T0}, s{S_T0}, {WPHI_L}')
    a.I(f'v_add_u32 v{aPH}, s{S_T0}, v{aPH}')
    a.I(f'v_bfe_u32 v{vSG}, v{vL}, 4, 1')
    a.I(f'v_mul_u32_u24 v{vSG}, 0x8000, v{vSG}')
    a.I(f'v_lshl_or_b32 v{vSG}, v{vSG}, 16, v{vSG}')

    a.stamp()
    a.wait_vm(tokAX)
    a.stamp()
    for rnd in range(2):
        a.I(f'v_mov_b32 v{sm}, 0')
        a.I(f'v_mov_b32 v{sq}, 0')
        for i in range(8):
            a.I(f'v_dot2c_f32_bf16 v{sm}, v{VONE}, v{X+i}')
            a.I(f'v_dot2c_f32_bf16 v{sq}, v{X+i}, v{X+i}')
        for i in range(8):
            a.I(f'v_lshlrev_b32 v{U+2*i}, 16, v{X+i}')
            a.I(f'v_and_b32 v{U+2*i+1}, 0xffff0000, v{X+i}')
        reduce32(a, [sm, sq], [tt, tt2_])
        ln_scalars(a, sm, sq, vm, vrs, tt)
        for i in range(8):
            a.I(f'v_pk_add_f32 v[{U+2*i}:{U+2*i+1}], v[{U+2*i}:{U+2*i+1}], v[{vm}:{vm+1}] op_sel_hi:[1,0] neg_lo:[0,1] neg_hi:[0,1]')
        for i in range(8):
            a.I(f'v_cvt_pk_bf16_f32 v{X+i}, v{U+2*i}, v{U+2*i+1}')
        for i in range(8):
            a.I(f'v_lshlrev_b32 v{U+2*i}, 16, v{X+i}')
            a.I(f'v_and_b32 v{U+2*i+1}, 0xffff0000, v{X+i}')
        for i in range(8):
            a.I(f'v_pk_mul_f32 v[{U+2*i}:{U+2*i+1}], v[{U+2*i}:{U+2*i+1}], v[{vm}:{vm+1}] op_sel:[0,1] op_sel_hi:[1,1]')
        for i in range(8):
            a.I(f'v_cvt_pk_bf16_f32 v{X+i}, v{U+2*i}, v{U+2*i+1}')
    a.I(f'ds_write_b128 v{aHW0}, v[{X}:{X+3}] offset:{HS}')
    a.I(f'ds_write_b128 v{aHW1}, v[{X+4}:{X+7}] offset:{HS}')
    a.stamp()
    need_stage(0)
    a.wait_vm(max(tokW1, stage_tok[0]))
    a.I('s_waitcnt lgkmcnt(0)')
    a.I('s_barrier')
    a.stamp()
    a.collect()
    TRB = 0
    for j in range(6):
        b = TRB + 8 + 4 * j
        a.I(f'ds_read_b64_tr_b16 v[{b}:{b+1}], v{aW1} offset:{j * 512}')
        a.I(f'ds_read_b64_tr_b16 v[{b+2}:{b+3}], v{aW1} offset:{j * 512 + 11008}')
    a.I(f's_lshl_b32 s{S_T0}, s{S_W}, 18')
    lt = []
    for j in range(6):
        a.I(f's_waitcnt lgkmcnt({10 - 2 * j})')
        b = TRB + 8 + 4 * j
        a.lock()
        a.I(f'buffer_store_dwordx4 v[{b}:{b+3}], v{aST}, {S(R_W1F)}, s{S_T0} offen sc1')
        if j < 5:
            a.I(f's_add_u32 s{S_T0}, s{S_T0}, {4 * 262144}')
        a.unlock()
    for u, ad in enumerate((aH0, aH1)):
        a.I(f'ds_read_b64_tr_b16 v[{TRB+4*u}:{TRB+4*u+1}], v{ad} offset:{HS}')
        a.I(f'ds_read_b64_tr_b16 v[{TRB+4*u+2}:{TRB+4*u+3}], v{ad} offset:{HS + 4096}')
    for hd in range(2):
        a.I(f'ds_read_b64_tr_b16 v[{PHI+4*hd}:{PHI+4*hd+1}], v{aPH} offset:{hd * 512}')
        a.I(f'ds_read_b64_tr_b16 v[{PHI+4*hd+2}:{PHI+4*hd+3}], v{aPH} offset:{hd * 512 + 256}')
    a.I(f's_lshl_b32 s{S_T0}, s{S_W}, 19')
    a.I(f's_add_u32 s{S_T1}, s{S_T0}, 262144')
    a.I('s_waitcnt lgkmcnt(0)')
    a.I(f'buffer_store_dwordx4 v[{TRB}:{TRB+3}], v{aST}, {S(R_WS)}, s{S_T0} offen sc1')
    tokAS = a.I(f'buffer_store_dwordx4 v[{TRB+4}:{TRB+7}], v{aST}, {S(R_WS)}, s{S_T1} offen sc1')
    for i in range(8):
        a.I(f'v_xor_b32 v{PHI+i}, v{PHI+i}, v{vSG}')
    a.stamp()

    def wbase(slot):
        return slot // 2, (slot % 2) * 24576

    def reads(n):
        st, ks = divmod(n, 4)
        slot = st % 5
        F = FR + 16 * (n & 1)
        bi, bo = wbase(slot)
        L = [f'ds_read_b128 v[{F}:{F+3}], v{vXA+ks} offset:{XS(slot)}']
        for seg in range(3):
            o = bo + ks * 6144 + seg * 1024
            W = F + 4 + 4 * seg
            L.append(f'ds_read_b64_tr_b16 v[{W}:{W+1}], v{vWA+bi} offset:{o}')
            L.append(f'ds_read_b64_tr_b16 v[{W+2}:{W+3}], v{vWA+bi} offset:{o + 512}')
        jp = ks >> 1
        if n % 2 == 0:
            L.append(f'ds_read_b128 v[{AUXE}:{AUXE+3}], v{vSA+jp} offset:{XS(slot)}')
            segs = [(0, AUXE + 4)]
        else:
            segs = [(1, AUXO), (2, AUXO + 4)]
        for seg, W in segs:
            o = bo + jp * 12288 + seg * 1024
            L.append(f'ds_read_b64_tr_b16 v[{W}:{W+1}], v{vCA+bi} offset:{o}')
            L.append(f'ds_read_b64_tr_b16 v[{W+2}:{W+3}], v{vCA+bi} offset:{o + 512}')
        return L

    def mfmas(n):
        F = FR + 16 * (n & 1)
        L = []
        for seg in range(3):
            A = ACC + 16 * seg
            W = F + 4 + 4 * seg
            c = '0' if n == 0 else f'v[{A}:{A+15}]'
            L.append((f'v_mfma_f32_32x32x16_bf16 v[{A}:{A+15}], v[{W}:{W+3}], v[{F}:{F+3}], {c}', 2 + 2 * seg))
        if n % 2 == 0:
            lst = [(XSUM, VONE, AUXE, 7), (GRAM, AUXE, AUXE, 7), (CSA, AUXE + 4, VONE, 9)]
        else:
            lst = [(CSA + 4, AUXO, VONE, 8), (CSA + 8, AUXO + 4, VONE, 10)]
        for D, A_, B_, need in lst:
            c = '0' if n < 2 else f'v[{D}:{D+3}]'
            L.append((f'v_mfma_f32_16x16x32_bf16 v[{D}:{D+3}], v[{A_}:{A_+3}], v[{B_}:{B_+3}], {c}', need))
        return L

    a.I('s_barrier')
    queue_stage_tracked(4)
    a.bg_pace = opt('paceB', 64)
    rtok = {0: [a.I(t) for t in reads(0)]}
    PUB1 = opt('pub1', 2)
    for n in range(32):
        M = mfmas(n)
        R = reads(n + 1) if n + 1 < 32 else []
        rtok[n + 1] = []
        newst = (n + 1) % 4 == 0 and n + 1 < 32
        quota = [3, 3, 3, 1, 1, 1]
        for k, (txt, need) in enumerate(M):
            a.wait_lg(rtok[n][need])
            a.I(txt)
            if k == 0 and newst:
                st = (n + 1) // 4
                need_stage(st)
                a.lock()
                a.I('s_waitcnt lgkmcnt(0)')
                if st == PUB1:
                    a.wait_vm(max(stage_tok[st], tokAS))
                    a.I(f's_lshl_b32 s{S_T0}, s{S_XCD}, 5')
                    publish(a, f's{S_T0}', 'L_PUB1')
                else:
                    a.wait_vm(stage_tok[st])
                    a.I('s_barrier')
                a.unlock()
                if st + 4 <= 7:
                    queue_stage_tracked(st + 4)
                if st in (2, 4, 6):
                    pass
            q = quota[k] if k < len(M) - 1 else 99
            while R and q > 0:
                rtok[n + 1].append(a.I(R.pop(0)))
                q -= 1
        if n == 19 and opt('pfE', 1):
            a.lock()
            srd(a, R_TMP, P_W2, 1376 * 4096)
            a.I(f's_and_b32 s{S_T0}, s{S_XCD}, 1')
            a.I(f's_mul_i32 s{S_T0}, s{S_T0}, 5504')
            a.I(f's_mul_i32 s{S_T1}, s{S_J}, 172')
            a.I(f's_add_u32 s{S_T0}, s{S_T0}, s{S_T1}')
            a.I(f's_mul_i32 s{S_T1}, s{S_W}, 43')
            a.I(f's_add_u32 s{S_T0}, s{S_T0}, s{S_T1}')
            a.I(f'v_add_u32 v{t0}, s{S_T0}, v{vL}')
            a.I(f'v_lshrrev_b32 v{t1}, 3, v{t0}')
            a.I(f'v_and_b32 v{t0}, 7, v{t0}')
            a.I(f'v_lshlrev_b32 v{t0}, 7, v{t0}')
            a.I(f'v_lshl_add_u32 v{t0}, v{t1}, 12, v{t0}')
            a.I(f's_lshr_b32 s{S_T0}, s{S_XCD}, 1')
            a.I(f's_lshl_b32 s{S_T0}, s{S_T0}, 10')
            a.I(f'v_cmp_gt_u32 vcc, 43, v{vL}')
            a.I(f's_and_saveexec_b64 s[{S_EXEC}:{S_EXEC+1}], vcc')
            a.I(f'buffer_load_dword v{vH}, v{t0}, {S(R_TMP)}, s{S_T0} offen')
            a.I(f's_mov_b64 exec, s[{S_EXEC}:{S_EXEC+1}]')
            srd(a, R_TMP, P_WO, 512 * 1024)
            a.I(f's_lshr_b32 s{S_T0}, s{S_XCD}, 1')
            a.I(f's_lshl_b32 s{S_T0}, s{S_T0}, 5')
            a.I(f's_add_u32 s{S_T0}, s{S_T0}, s{S_J}')
            a.I(f's_lshl_b32 s{S_T0}, s{S_T0}, 2')
            a.I(f's_add_u32 s{S_T0}, s{S_T0}, s{S_W}')
            a.I(f's_lshl_b32 s{S_T0}, s{S_T0}, 10')
            a.I(f's_and_b32 s{S_T1}, s{S_XCD}, 1')
            a.I(f's_lshl_b32 s{S_T1}, s{S_T1}, 9')
            a.I(f's_add_u32 s{S_T0}, s{S_T0}, s{S_T1}')
            a.I(f'v_lshlrev_b32 v{t0}, 7, v{vL}')
            a.I('s_mov_b64 exec, 15')
            a.I(f'buffer_load_dword v{vH+1}, v{t0}, {S(R_TMP)}, s{S_T0} offen')
            a.I('s_mov_b64 exec, -1')
            a.unlock()
        if n == 27:
            a.lock()
            a.I(f's_mul_i32 s{S_T0}, s{S_XCD}, 29')
            a.I(f's_add_u32 s{S_T0}, s{S_T0}, s{S_J}')
            a.I(f's_and_b32 s{S_DT}, s{S_T0}, 3')
            a.I(f's_lshr_b32 s{S_FT}, s{S_T0}, 2')
            a.I(f's_cmp_ge_u32 s{S_FT}, 29')
            a.I(f's_cselect_b32 s{S_T1}, 29, 0')
            a.I(f's_cselect_b32 s{S_T2}, 4, 0')
            a.I(f's_sub_u32 s{S_FT}, s{S_FT}, s{S_T1}')
            a.I(f's_add_u32 s{S_DT}, s{S_DT}, s{S_T2}')
            a.I(f's_lshl_b32 s{S_T0}, s{S_W}, 14')
            a.I(f's_mul_i32 s{S_T1}, s{S_FT}, {3 * 65536}')
            a.I(f's_add_u32 s{S_T1}, s{S_T1}, s{S_T0}')
            a.I(f's_add_u32 s{S_T1}, s{S_T1}, {W1F_OFF}')
            a.I(f's_lshl_b32 s{S_T2}, s{S_DT}, 18')
            a.I(f's_add_u32 s{S_T2}, s{S_T2}, s{S_T0}')
            a.I(f'v_add_u32 v{vCA_}, s{S_T1}, v{vL16}')
            a.I(f'v_add_u32 v{vCA_+3}, s{S_T2}, v{vL16}')
            for i in range(1, 3):
                a.I(f'v_add_u32 v{vCA_+i}, {i * 65536}, v{vCA_}')
            for i in range(1, 4):
                a.I(f'v_add_u32 v{vCA_+3+i}, {i * 65536}, v{vCA_+3}')
            a.I(f's_mov_b32 s{S_K1}, 4096')
            a.I(f's_mov_b32 s{S_K2}, 8192')
            a.I(f's_mov_b32 s{S_K3}, 12288')
            a.I(f's_mov_b32 s{R_C}, s{P_WS}')
            a.I(f's_mov_b32 s{R_C+1}, s{P_WS+1}')
            a.I(f's_cmp_ge_u32 s{S_J}, 29')
            a.I(f's_cselect_b32 s{R_C+2}, 0, {W1F_OFF + W1F_SIZE}')
            a.I(f'v_lshlrev_b32 v{vPOFF}, 5, v{l7}')
            tokP1 = poll_issue(a, '0')
            a.unlock()
    a.bg_drain()
    a.stamp()

    poll_check(a, tokP1, '0', 32, 'L_F1')
    a.stamp()
    RC = 9
    ctok = {}

    def c_item(n, i):
        def f():
            base = 28 * (n % RC)
            so = ['0', f's{S_K1}', f's{S_K2}', f's{S_K3}'][n >> 2]
            off = f' offset:{(n & 3) * 1024}' if n & 3 else ''
            r = base + 4 * i
            ctok[n] = a.I(f'buffer_load_dwordx4 a[{r}:{r+3}], v{vCA_+i}, {S(R_C)}, {so} offen{off} sc1')
        return f

    for n in range(RC):
        for i in range(7):
            a.bg_add(c_item(n, i))
    a.bg_pace = opt('paceC', 80)
    a.bg_emit(opt('preC', 6))

    e0 = FR
    aC, aS, g0, g1 = e0, e0 + 1, e0 + 2, e0 + 3
    a.I(f's_lshl_b32 s{S_T0}, s{S_W}, 6')
    a.I(f's_add_u32 s{S_T0}, s{S_T0}, {EP_CS}')
    a.I(f'v_lshlrev_b32 v{aC}, 4, v{gq}')
    a.I(f'v_add_u32 v{aC}, s{S_T0}, v{aC}')
    a.I(f's_lshl_b32 s{S_T0}, s{S_W}, 7')
    a.I(f's_add_u32 s{S_T0}, s{S_T0}, {EP_ST}')
    a.I(f'v_lshlrev_b32 v{aS}, 3, v{i16}')
    a.I(f'v_add_u32 v{aS}, s{S_T0}, v{aS}')
    a.I(f'v_cmp_eq_u32 vcc, 1, v{c4}')
    a.I(f'v_cndmask_b32 v{g1}, v{GRAM}, v{GRAM+1}, vcc')
    a.I(f'v_cmp_eq_u32 vcc, 2, v{c4}')
    a.I(f'v_cndmask_b32 v{g1}, v{g1}, v{GRAM+2}, vcc')
    a.I(f'v_cmp_eq_u32 vcc, 3, v{c4}')
    a.I(f'v_cndmask_b32 v{g1}, v{g1}, v{GRAM+3}, vcc')
    a.I(f'v_mov_b32 v{g0}, v{XSUM}')
    a.lock()
    a.I(f'v_cmp_eq_u32 vcc, v{r4}, v{gq}')
    a.I(f's_and_saveexec_b64 s[{S_EXEC}:{S_EXEC+1}], vcc')
    a.I(f'ds_write_b64 v{aS}, v[{g0}:{g1}]')
    a.I(f's_mov_b64 exec, s[{S_EXEC}:{S_EXEC+1}]')
    a.I(f'v_cmp_eq_u32 vcc, 0, v{i16}')
    a.I(f's_and_saveexec_b64 s[{S_EXEC}:{S_EXEC+1}], vcc')
    for seg in range(3):
        a.I(f'ds_write_b128 v{aC}, v[{CSA+4*seg}:{CSA+4*seg+3}] offset:{seg * 256}')
    a.I(f's_mov_b64 exec, s[{S_EXEC}:{S_EXEC+1}]')
    a.unlock()
    a.I(f's_and_b32 s{S_T0}, s{S_W}, 1')
    a.I(f's_lshr_b32 s{S_T1}, s{S_W}, 1')
    a.I(f's_lshl_b32 s{S_T2}, s{S_T0}, 8')
    a.I(f's_add_u32 s{S_T2}, s{S_T2}, {EP_ST}')
    a.I(f'v_lshlrev_b32 v{aS}, 3, v{l31}')
    a.I(f'v_add_u32 v{aS}, s{S_T2}, v{aS}')
    a.I(f's_lshl_b32 s{S_T2}, s{S_T1}, 7')
    a.I(f's_add_u32 s{S_T2}, s{S_T2}, {EP_CS}')
    a.I(f'v_lshlrev_b32 v{aC}, 4, v{hh}')
    a.I(f'v_add_u32 v{aC}, s{S_T2}, v{aC}')
    aV, aK, swv, swk = e0 + 8, e0 + 9, e0 + 10, e0 + 11
    aV2, aK1, aK2, aK3 = e0 + 12, e0 + 13, e0 + 14, e0 + 15
    a.I(f's_lshl_b32 s{S_T2}, s{S_T1}, 12')
    a.I(f's_lshl_b32 s{S_SOX}, s{S_T0}, 10')
    a.I(f's_add_u32 s{S_T2}, s{S_T2}, s{S_SOX}')
    a.I(f's_add_u32 s{S_T2}, s{S_T2}, {EP_VV}')
    a.I(f'v_xor_b32 v{swv}, v{r4}, v{hh}')
    a.I(f'v_lshlrev_b32 v{swv}, 3, v{swv}')
    a.I(f'v_lshl_add_u32 v{aV}, v{l31}, 5, v{swv}')
    a.I(f'v_add_u32 v{aV}, s{S_T2}, v{aV}')
    a.I(f'v_xor_b32 v{aV2}, 16, v{aV}')
    a.I(f's_lshl_b32 s{S_T2}, s{S_T1}, 13')
    a.I(f's_lshl_b32 s{S_SOX}, s{S_T0}, 11')
    a.I(f's_add_u32 s{S_T2}, s{S_T2}, s{S_SOX}')
    a.I(f's_add_u32 s{S_T2}, s{S_T2}, {EP_PK}')
    a.I(f'v_bfe_u32 v{swk}, v{vL}, 1, 3')
    a.I(f'v_xor_b32 v{swk}, v{swk}, v{hh}')
    a.I(f'v_lshlrev_b32 v{swk}, 3, v{swk}')
    a.I(f'v_lshl_add_u32 v{aK}, v{l31}, 6, v{swk}')
    a.I(f'v_add_u32 v{aK}, s{S_T2}, v{aK}')
    a.I(f'v_xor_b32 v{aK1}, 16, v{aK}')
    a.I(f'v_xor_b32 v{aK2}, 32, v{aK}')
    a.I(f'v_xor_b32 v{aK3}, 48, v{aK}')
    a.I('s_waitcnt lgkmcnt(0)')
    a.I('s_barrier')
    a.collect()
    CSR = 160
    a.I(f'ds_read_b64 v[{g0}:{g1}], v{aS}')
    for seg in (1, 2, 0):
        for q4 in range(4):
            b = CSR + 16 * seg + 4 * q4
            a.I(f'ds_read_b128 v[{b}:{b+3}], v{aC} offset:{seg * 256 + q4 * 32}')
    rK0, rK1, rV0, rV1 = e0 + 24, e0 + 25, e0 + 26, e0 + 27
    tk = e0 + 28
    a.I(f'v_lshl_add_u32 v{tk}, v{hh}, 3, v{r4}')
    a.I(f'v_bfe_u32 v{rK0}, v{vL}, 4, 1')
    a.I(f'v_lshl_add_u32 v{rK0}, v{rK0}, 2, v{c4}')
    a.I(f'v_lshrrev_b32 v{rK1}, 1, v{tk}')
    a.I(f'v_xor_b32 v{rK0}, v{rK0}, v{rK1}')
    a.I(f'v_lshlrev_b32 v{rK0}, 3, v{rK0}')
    a.I(f'v_lshl_add_u32 v{rK0}, v{tk}, 6, v{rK0}')
    a.I(f's_lshl_b32 s{S_T2}, s{S_W}, 12')
    a.I(f's_add_u32 s{S_T2}, s{S_T2}, {EP_PK}')
    a.I(f'v_add_u32 v{rK0}, s{S_T2}, v{rK0}')
    a.I(f'v_xor_b32 v{rK1}, 16, v{rK0}')
    a.I(f'v_add_u32 v{rK1}, 256, v{rK1}')
    a.I(f'v_lshrrev_b32 v{rV0}, 2, v{tk}')
    a.I(f'v_xor_b32 v{rV0}, v{rV0}, v{c4}')
    a.I(f'v_lshlrev_b32 v{rV0}, 3, v{rV0}')
    a.I(f'v_lshl_add_u32 v{rV0}, v{tk}, 5, v{rV0}')
    a.I(f's_lshl_b32 s{S_T2}, s{S_W}, 11')
    a.I(f's_add_u32 s{S_T2}, s{S_T2}, {EP_VV}')
    a.I(f'v_add_u32 v{rV0}, s{S_T2}, v{rV0}')
    a.I(f'v_xor_b32 v{rV1}, 8, v{rV0}')
    a.I(f'v_add_u32 v{rV1}, 128, v{rV1}')
    vm2, vrs2, tt2 = e0 + 4, e0 + 5, e0 + 6
    a.I('s_waitcnt lgkmcnt(12)')
    ln_scalars(a, g0, g1, vm2, vrs2, tt2)
    PKD = 208

    def fix_seg(seg):
        for i in range(8):
            r = ACC + 16 * seg + 2 * i
            c = CSR + 16 * seg + 2 * i
            a.I(f'v_pk_fma_f32 v[{r}:{r+1}], v[{c}:{c+1}], v[{vm2}:{vm2+1}], v[{r}:{r+1}] op_sel_hi:[1,0,1] neg_lo:[0,1,0] neg_hi:[0,1,0]')
        for i in range(8):
            r = ACC + 16 * seg + 2 * i
            a.I(f'v_pk_mul_f32 v[{r}:{r+1}], v[{r}:{r+1}], v[{vm2}:{vm2+1}] op_sel:[0,1] op_sel_hi:[1,1]')
        for i in range(8):
            r = ACC + 16 * seg + 2 * i
            a.I(f'v_cvt_pk_bf16_f32 v{PKD+8*seg+i}, v{r}, v{r+1}')

    a.I('s_waitcnt lgkmcnt(8)')
    fix_seg(1)
    a.I('s_waitcnt lgkmcnt(4)')
    fix_seg(2)
    a.I('s_waitcnt lgkmcnt(0)')
    fix_seg(0)
    PD = {2: 16, 3: 32, 0: 0, 1: 48}
    for u in (2, 3, 0, 1):
        hd = u & 1
        B_ = PKD + 4 * u
        D = PD[u]
        a.I(f'v_mfma_f32_32x32x16_bf16 v[{D}:{D+15}], v[{PHI+4*hd}:{PHI+4*hd+3}], v[{B_}:{B_+3}], 0')
    for hd in range(2):
        b = PKD + 16 + 4 * hd
        a.I(f'ds_write_b64 v{aV}, v[{b}:{b+1}] offset:{hd * 2048}')
        a.I(f'ds_write_b64 v{aV2}, v[{b+2}:{b+3}] offset:{hd * 2048}')
    SMT = e0 + 16
    PHK = 160
    a.stamp()
    softmax2(a, [16, 32], SMT, [PHK, PHK + 8])
    for hd in range(2):
        for c, ad in enumerate((aK, aK1, aK2, aK3)):
            b = PHK + 8 * hd + 2 * c
            a.I(f'ds_write_b64 v{ad}, v[{b}:{b+1}] offset:{hd * 4096}')
    a.I('s_waitcnt lgkmcnt(0)')
    a.I('s_barrier')
    a.stamp()
    KA, KB, KD = 176, 192, 16
    for s in range(4):
        a.I(f'ds_read_b64_tr_b16 v[{KA+4*s}:{KA+4*s+1}], v{rK0} offset:{s * 1024}')
        a.I(f'ds_read_b64_tr_b16 v[{KA+4*s+2}:{KA+4*s+3}], v{rK1} offset:{s * 1024}')
    for s in range(4):
        a.I(f'ds_read_b64_tr_b16 v[{KB+4*s}:{KB+4*s+1}], v{rV0} offset:{s * 512}')
        a.I(f'ds_read_b64_tr_b16 v[{KB+4*s+2}:{KB+4*s+3}], v{rV1} offset:{s * 512}')
    aP = e0 + 30
    a.I(f's_lshl_b32 s{S_T2}, s{S_CG}, 2')
    a.I(f's_add_u32 s{S_T2}, s{S_T2}, s{S_W}')
    a.I(f's_lshl_b32 s{S_T2}, s{S_T2}, 5')
    a.I(f's_add_u32 s{S_T2}, s{S_T2}, s{S_TB}')
    a.I(f's_mul_i32 s{S_T2}, s{S_T2}, {KVP_STRIDE}')
    a.I(f's_add_u32 s{S_T2}, s{S_T2}, {KVP_OFF}')
    a.I(f'v_mul_u32_u24 v{aP}, 17, v{hh}')
    a.I(f'v_add_lshl_u32 v{aP}, v{aP}, v{l31}, 4')
    a.I(f'v_cmp_le_u32 vcc, 16, v{l31}')
    a.I('s_waitcnt lgkmcnt(0)')
    for i in range(16):
        a.I(f'v_cndmask_b32 v{KB+i}, v{KB+i}, v{VONE}, vcc')
    for s in range(4):
        c = '0' if s == 0 else f'v[{KD}:{KD+15}]'
        a.I(f'v_mfma_f32_32x32x16_bf16 v[{KD}:{KD+15}], v[{KA+4*s}:{KA+4*s+3}], v[{KB+4*s}:{KB+4*s+3}], {c}')
    a.lock()
    a.I(f'v_cmp_ge_u32 vcc, 16, v{l31}')
    a.I(f's_and_saveexec_b64 s[{S_EXEC}:{S_EXEC+1}], vcc')
    for q in range(4):
        tokKV = a.I(f'buffer_store_dwordx4 v[{KD+4*q}:{KD+4*q+3}], v{aP}, {S(R_WS)}, s{S_T2} offen offset:{q * 544} sc1')
    a.I(f's_mov_b64 exec, s[{S_EXEC}:{S_EXEC+1}]')
    a.unlock()
    a.stamp()
    softmax2(a, [0, 48], SMT, [PHQ, PHQ + 8])
    a.stamp()
    a.wait_vm(tokKV)
    a.I(f's_lshl_b32 s{S_T0}, s{S_CG}, 5')
    a.I(f's_add_u32 s{S_T0}, s{S_T0}, 4')
    publish(a, f's{S_T0}', 'L_PUB2')
    a.collect()

    vTD0, vTD1, vR0, vR1, vR2, vR3 = 112, 113, 114, 115, 116, 117
    vXO, vBO, aR = 118, 119, 120
    XR, BR = 122, 130
    S_KB0 = S_SOW1

    def e_setup():
        a.lock()
        a.I(f's_mul_i32 s{S_LW}, s{S_W}, {TLO * 2048}')
        a.I(f's_mul_i32 s{S_LW2}, s{S_W}, {(TSLOTS - TLO) * 2048}')
        a.I(f's_add_u32 s{S_LW2}, s{S_LW2}, {CRED}')
        a.I(f's_sub_u32 s{S_KB0}, s{S_W}, 1')
        a.I(f's_mul_i32 s{S_KB0}, s{S_KB0}, 29')
        a.I(f's_cmp_eq_u32 s{S_W}, 3')
        a.I(f's_cselect_b32 s{S_CNT}, 28, 29')
        a.I(f's_cmp_eq_u32 s{S_W}, 0')
        a.I(f's_cselect_b32 s{S_CNT}, 32, s{S_CNT}')
        a.I(f's_cselect_b32 s{S_RS}, 1, 4')
        a.I(f's_lshl_b32 s{S_RS}, s{S_RS}, 10')
        a.I(f's_lshl_b32 s{S_STEP}, s{S_RS}, 4')
        a.I(f's_lshl_b32 s{S_T0}, s{S_TB}, 16')
        a.I(f's_add_u32 s{S_T0}, s{S_T0}, {OF_OFF}')
        a.I(f's_mul_i32 s{S_T1}, s{S_CG}, {UF_DT}')
        a.I(f's_lshl_b32 s{S_T2}, s{S_KB0}, 11')
        a.I(f's_add_u32 s{S_T1}, s{S_T1}, s{S_T2}')
        a.I(f's_add_u32 s{S_T1}, s{S_T1}, {UF_OFF}')
        a.I(f's_cmp_eq_u32 s{S_W}, 0')
        a.I(f's_cselect_b32 s{S_T0}, s{S_T0}, s{S_T1}')
        a.I(f's_add_u32 s{R_F}, s{P_WS}, s{S_T0}')
        a.I(f's_addc_u32 s{R_F+1}, s{P_WS+1}, 0')
        a.I(f's_lshl_b32 s{R_F+2}, s{S_CNT}, 11')
        a.I(f's_mov_b32 s{R_F+3}, 0x20000')
        a.I(f's_lshl_b32 s{S_T1}, s{S_CG}, 7')
        a.I(f's_lshl_b32 s{S_T2}, s{S_TB}, 7')
        a.I(f's_lshl_b32 s{S_SOT}, s{S_KB0}, 16')
        a.I(f's_add_u32 s{S_T2}, s{S_T2}, s{S_SOT}')
        a.I(f's_cmp_eq_u32 s{S_W}, 0')
        a.I(f's_cselect_b32 s{S_T1}, s{S_T1}, s{S_T2}')
        a.I(f's_cselect_b32 s{R_T}, s{P_WO}, s{P_W2}')
        a.I(f's_cselect_b32 s{R_T+1}, s{P_WO+1}, s{P_W2+1}')
        a.I(f's_add_u32 s{R_T}, s{R_T}, s{S_T1}')
        a.I(f's_addc_u32 s{R_T+1}, s{R_T+1}, 0')
        a.I(f's_mul_i32 s{R_T+2}, s{S_CNT}, s{S_STEP}')
        a.I(f's_sub_u32 s{R_T+2}, s{R_T+2}, s{S_RS}')
        a.I(f's_add_u32 s{R_T+2}, s{R_T+2}, 128')
        a.I(f's_mov_b32 s{R_T+3}, 0x20000')
        a.I(f's_mov_b32 s{S_SOT}, 0')
        a.I(f's_mov_b32 s{S_SOF}, 0')
        a.unlock()
        a.I(f'v_bfe_u32 v{t0}, v{vL}, 4, 1')
        a.I(f'v_lshlrev_b32 v{t0}, 2, v{t0}')
        a.I(f'v_xor_b32 v{t0}, v{t0}, v{l7}')
        a.I(f'v_lshlrev_b32 v{t0}, 4, v{t0}')
        a.I(f'v_mul_u32_u24 v{t1}, s{S_RS}, v{l3}')
        a.I(f'v_add_u32 v{vTD0}, v{t0}, v{t1}')
        a.I(f's_lshl_b32 s{S_T2}, s{S_RS}, 3')
        a.I(f's_sub_u32 s{S_T2}, s{S_T2}, 1024')
        a.I(f'v_add_u32 v{vTD1}, s{S_T2}, v{vTD0}')
        a.I(f'v_bfe_u32 v{t0}, v{vL}, 3, 1')
        a.I(f'v_lshlrev_b32 v{t0}, 2, v{t0}')
        a.I(f'v_bfe_u32 v{t1}, v{vL}, 4, 1')
        a.I(f'v_lshlrev_b32 v{t1}, 1, v{t1}')
        a.I(f'v_bfe_u32 v{vR0}, v{vL}, 1, 1')
        a.I(f'v_add_u32 v{t1}, v{t1}, v{vR0}')
        a.I(f'v_xor_b32 v{t1}, v{t1}, v{t0}')
        a.I(f'v_lshlrev_b32 v{t1}, 4, v{t1}')
        a.I(f'v_and_b32 v{t0}, 1, v{vL}')
        a.I(f'v_lshl_add_u32 v{t1}, v{t0}, 3, v{t1}')
        a.I(f'v_lshl_add_u32 v{t0}, v{hh}, 2, v{r4}')
        a.I(f'v_lshl_add_u32 v{t1}, v{t0}, 7, v{t1}')
        a.I(f'v_add_u32 v{vR0}, s{S_LW}, v{t1}')
        a.I(f'v_xor_b32 v{vR1}, 64, v{vR0}')
        a.I(f'v_add_u32 v{vR2}, s{S_LW2}, v{t1}')
        a.I(f'v_xor_b32 v{vR3}, 64, v{vR2}')
        a.I(f's_lshl_b32 s{S_T0}, s{S_W}, 3')
        a.I(f'v_add_u32 v{t0}, s{S_T0}, v{l3}')
        a.I(f'v_lshlrev_b32 v{vBO}, 1, v{t0}')
        a.I(f'v_mul_u32_u24 v{aR}, 272, v{t0}')
        a.I(f'v_lshl_add_u32 v{aR}, v{l7}, 5, v{aR}')
        a.I(f'v_lshlrev_b32 v{vXO}, 10, v{t0}')
        a.I(f'v_lshl_add_u32 v{vXO}, v{l7}, 4, v{vXO}')
        a.I(f's_lshl_b32 s{S_T0}, s{S_TB}, 16')
        a.I(f's_lshl_b32 s{S_T1}, s{S_CG}, 7')
        a.I(f's_add_u32 s{S_T0}, s{S_T0}, s{S_T1}')
        a.I(f'v_add_u32 v{vXO}, s{S_T0}, v{vXO}')

    tT, tF = {}, {}

    def t_issue(n):
        sl = n % TSLOTS
        a.lock()
        if sl < TLO:
            a.I(f's_add_u32 m0, s{S_LW}, {sl * 2048}')
        else:
            a.I(f's_add_u32 m0, s{S_LW2}, {(sl - TLO) * 2048}')
        a.I(f'buffer_load_dwordx4 v{vTD0}, {S(R_T)}, s{S_SOT} offen lds')
        tT[n] = a.I(f'buffer_load_dwordx4 v{vTD1}, {S(R_T)}, s{S_SOT} offen offset:1024 lds')
        a.I(f's_add_u32 s{S_SOT}, s{S_SOT}, s{S_STEP}')
        a.unlock()

    e_setup()
    a.bg_drain()
    a.stamp()
    a.I(f's_cmp_ge_u32 s{S_J}, 29')
    a.I('s_cbranch_scc1 L_RED')
    vm_at_branch = a.vm_issued

    vBi, BI = 81, 82
    for n in range(16):
        a.wait_vm(ctok[n])
        base = 28 * (n % RC)
        k = 0
        for fb in range(3):
            for db in range(4):
                D = 4 * (fb * 4 + db)
                A_ = base + 4 * fb
                B_ = base + 12 + 4 * db
                c = '0' if n == 0 else f'v[{D}:{D+3}]'
                a.I(f'v_mfma_f32_16x16x32_bf16 v[{D}:{D+3}], a[{A_}:{A_+3}], a[{B_}:{B_+3}], {c}')
        if n + RC < 16:
            for i in range(7):
                c_item(n + RC, i)()
        if n == 6:
            srd(a, R_B, P_B1, 2752)
            a.I(f's_and_b32 s{S_T0}, s{S_W}, 1')
            a.I(f's_lshl_b32 s{S_T0}, s{S_T0}, 3')
            a.I(f's_mul_i32 s{S_T1}, s{S_FT}, 96')
            a.I(f's_add_u32 s{S_T0}, s{S_T0}, s{S_T1}')
            a.I(f'v_and_b32 v{vBi}, 1, v{vL}')
            a.I(f'v_lshlrev_b32 v{vBi}, 4, v{vBi}')
            for jj in range(3):
                tokB = a.I(f'buffer_load_dwordx2 v[{BI+2*jj}:{BI+2*jj+1}], v{vBi}, {S(R_B)}, s{S_T0} offen offset:{jj * 32}')
            for m in range(TLO):
                a.bg_add(lambda m=m: t_issue(m))
            a.bg_pace = opt('paceT', 190)
    a.stamp()
    aW, aRd, aSt = 88, 89, 90
    a.I(f's_mul_i32 s{S_T0}, s{S_W}, 13312')
    a.I(f's_add_u32 s{S_T0}, s{S_T0}, {CRED}')
    a.I(f'v_mul_u32_u24 v{aW}, 208, v{i16}')
    a.I(f'v_lshl_add_u32 v{aW}, v{gq}, 4, v{aW}')
    a.I(f'v_add_u32 v{aW}, s{S_T0}, v{aW}')
    for fb in range(3):
        for db in range(4):
            D = 4 * (fb * 4 + db)
            a.I(f'ds_write_b128 v{aW}, v[{D}:{D+3}] offset:{db * 3328 + fb * 64}')
    a.I(f's_lshr_b32 s{S_T0}, s{S_W}, 1')
    a.I(f's_and_b32 s{S_T1}, s{S_W}, 1')
    a.I(f's_mul_i32 s{S_T2}, s{S_T0}, {32 * 208}')
    a.I(f's_lshl_b32 s{S_K1}, s{S_T1}, 4')
    a.I(f's_add_u32 s{S_T2}, s{S_T2}, s{S_K1}')
    a.I(f's_add_u32 s{S_T2}, s{S_T2}, {CRED}')
    a.I(f'v_lshrrev_b32 v{aRd}, 1, v{vL}')
    a.I(f'v_mul_u32_u24 v{aRd}, 208, v{aRd}')
    a.I(f'v_and_b32 v{t0}, 1, v{vL}')
    a.I(f'v_lshl_add_u32 v{aRd}, v{t0}, 5, v{aRd}')
    a.I(f'v_add_u32 v{aRd}, s{S_T2}, v{aRd}')
    a.I(f'v_lshlrev_b32 v{aSt}, 3, v{vL}')
    a.I(f's_mul_i32 s{S_K1}, s{S_DT}, {UF_DT}')
    a.I(f's_mul_i32 s{S_K2}, s{S_FT}, 6144')
    a.I(f's_add_u32 s{S_K1}, s{S_K1}, s{S_K2}')
    a.I(f's_lshl_b32 s{S_K2}, s{S_W}, 9')
    a.I(f's_add_u32 s{S_K1}, s{S_K1}, s{S_K2}')
    a.I(f's_add_u32 s{S_K1}, s{S_K1}, {UF_OFF}')
    a.I(f's_add_u32 s{S_T0}, s{S_K1}, 4096')
    a.I(f's_mov_b32 s{S_K3}, {GK2}')
    TG = 92
    a.I(f'v_mov_b32 v{TG}, {GK1}')
    a.I('s_waitcnt lgkmcnt(0)')
    a.I('s_barrier')
    a.stamp()
    a.collect()
    RD = 0
    for p in range(4):
        for jj in range(3):
            b = RD + 16 * jj + 4 * p
            a.I(f'ds_read_b128 v[{b}:{b+3}], v{aRd} offset:{p * 13312 + jj * 64}')
    a.wait_vm(tokB)
    BU = 48
    for jj in range(3):
        for k in range(2):
            a.I(f'v_lshlrev_b32 v{BU+4*jj+2*k}, 16, v{BI+2*jj+k}')
            a.I(f'v_and_b32 v{BU+4*jj+2*k+1}, 0xffff0000, v{BI+2*jj+k}')
    J3 = range(3)
    a.I('s_waitcnt lgkmcnt(6)')
    for jj in J3:
        b = RD + 16 * jj
        for k in range(2):
            a.I(f'v_pk_add_f32 v[{b+2*k}:{b+2*k+1}], v[{b+2*k}:{b+2*k+1}], v[{b+4+2*k}:{b+4+2*k+1}]')
    a.I('s_waitcnt lgkmcnt(0)')
    for jj in J3:
        b = RD + 16 * jj
        for k in range(2):
            a.I(f'v_pk_add_f32 v[{b+8+2*k}:{b+8+2*k+1}], v[{b+8+2*k}:{b+8+2*k+1}], v[{b+12+2*k}:{b+12+2*k+1}]')
    for jj in J3:
        b = RD + 16 * jj
        for k in range(2):
            a.I(f'v_pk_add_f32 v[{b+2*k}:{b+2*k+1}], v[{b+2*k}:{b+2*k+1}], v[{b+8+2*k}:{b+8+2*k+1}]')

    def round4():
        for jj in J3:
            b = RD + 16 * jj
            a.I(f'v_cvt_pk_bf16_f32 v{b+4}, v{b}, v{b+1}')
            a.I(f'v_cvt_pk_bf16_f32 v{b+5}, v{b+2}, v{b+3}')
        for jj in J3:
            b = RD + 16 * jj
            for k in range(2):
                a.I(f'v_lshlrev_b32 v{b+2*k}, 16, v{b+4+k}')
                a.I(f'v_and_b32 v{b+2*k+1}, 0xffff0000, v{b+4+k}')
    round4()
    for jj in J3:
        b = RD + 16 * jj
        for k in range(2):
            a.I(f'v_pk_add_f32 v[{b+2*k}:{b+2*k+1}], v[{b+2*k}:{b+2*k+1}], v[{BU+4*jj+2*k}:{BU+4*jj+2*k+1}]')
    round4()
    for jj in J3:
        b = RD + 16 * jj
        for k in range(2):
            a.I(f'v_pk_mul_f32 v[{b+4+2*k}:{b+4+2*k+1}], v[{b+2*k}:{b+2*k+1}], v[{b+2*k}:{b+2*k+1}]')
    for jj in J3:
        b = RD + 16 * jj
        for i in range(4):
            a.I(f'v_fma_f32 v{b+4+i}, v{b+4+i}, s{S_K3}, v{TG}')
    for jj in J3:
        b = RD + 16 * jj
        for k in range(2):
            a.I(f'v_pk_mul_f32 v[{b+4+2*k}:{b+4+2*k+1}], v[{b+4+2*k}:{b+4+2*k+1}], v[{b+2*k}:{b+2*k+1}]')
    for jj in J3:
        b = RD + 16 * jj
        for i in range(4):
            a.I(f'v_exp_f32 v{b+4+i}, v{b+4+i}')
    for jj in J3:
        b = RD + 16 * jj
        for i in range(4):
            a.I(f'v_add_f32 v{b+4+i}, 1.0, v{b+4+i}')
    for jj in J3:
        b = RD + 16 * jj
        for i in range(4):
            a.I(f'v_rcp_f32 v{b+4+i}, v{b+4+i}')
    for jj in J3:
        b = RD + 16 * jj
        for k in range(2):
            a.I(f'v_pk_mul_f32 v[{b+2*k}:{b+2*k+1}], v[{b+2*k}:{b+2*k+1}], v[{b+4+2*k}:{b+4+2*k+1}]')
    a.lock()
    for jj in J3:
        b = RD + 16 * jj
        a.I(f'v_cvt_pk_bf16_f32 v{b+8}, v{b}, v{b+1}')
        a.I(f'v_cvt_pk_bf16_f32 v{b+9}, v{b+2}, v{b+3}')
    for jj in J3:
        b = RD + 16 * jj
        so = f's{S_K1} offen' + (' offset:2048' if jj == 1 else '') if jj < 2 else f's{S_T0} offen'
        tokU = a.I(f'buffer_store_dwordx2 v[{b+8}:{b+9}], v{aSt}, {S(R_WS)}, {so} sc1')
    a.stamp()
    a.wait_vm(tokU)
    a.I(f's_lshl_b32 s{S_T0}, s{S_DT}, 5')
    a.I(f's_add_u32 s{S_T0}, s{S_T0}, 12')
    publish(a, f's{S_T0}', 'L_PUB4')
    a.unlock()
    a.stamp()
    a.bg_drain()
    a.I('s_branch L_JOIN')

    a.label('L_RED')
    a.vm_issued = vm_at_branch
    nst_save, pend_save = a.nstamp, list(a.pending)
    a.I(f's_sub_u32 s{S_T1}, s{S_J}, 29')
    a.I(f's_lshl_b32 s{S_T1}, s{S_T1}, 3')
    a.I(f's_add_u32 s{S_T1}, s{S_T1}, s{S_XCD}')
    a.I(f's_cmp_ge_u32 s{S_T1}, 16')
    a.I('s_cbranch_scc1 L_RED_DONE')
    a.I(f's_lshr_b32 s{S_K3}, s{S_T1}, 1')
    a.I(f's_lshl_b32 s{S_K3}, s{S_K3}, 5')
    a.I(f's_add_u32 s{S_K3}, s{S_K3}, 4')
    a.I(f'v_mov_b32 v{vPOFF}, 0')
    poll_issue(a, f's{S_K3}')
    a.I(f's_lshl_b32 s{S_T1}, s{S_T1}, 2')
    a.I(f's_add_u32 s{S_T1}, s{S_T1}, s{S_W}')
    a.I(f's_lshr_b32 s{S_T2}, s{S_T1}, 1')
    a.I(f's_and_b32 s{S_K1}, s{S_T1}, 1')
    a.I(f's_mul_i32 s{S_K2}, s{S_T2}, {32 * KVP_STRIDE}')
    a.I(f's_mul_i32 s{S_K1}, s{S_K1}, 1088')
    a.I(f's_add_u32 s{S_K2}, s{S_K2}, s{S_K1}')
    a.I(f's_add_u32 s{S_K2}, s{S_K2}, {KVP_OFF}')
    vP = 66
    a.I(f'v_min_u32 v{vP}, 16, v{l31}')
    a.I(f'v_mul_u32_u24 v{t0}, 17, v{hh}')
    a.I(f'v_add_lshl_u32 v{vP}, v{vP}, v{t0}, 4')
    poll_check(a, None, f's{S_K3}', 32, 'L_F2')
    rt = {}
    NRB = 16
    LB = 160

    def rissue(i):
        b = LB + 4 * (i % NRB)
        off = ' offset:544' if i & 1 else ''
        rt[i] = a.I(f'buffer_load_dwordx4 v[{b}:{b+3}], v{vP}, {S(R_WS)}, s{S_K2} offen{off} sc1')
        if i & 1:
            a.I(f's_add_u32 s{S_K2}, s{S_K2}, {KVP_STRIDE}')

    for i in range(NRB):
        rissue(i)
    for i in range(64):
        a.wait_vm(rt[i])
        b = LB + 4 * (i % NRB)
        acc = 4 * (i & 1)
        for k in range(2):
            if i < 2:
                a.I(f'v_mov_b32 v{acc+2*k}, v{b+2*k}')
                a.I(f'v_mov_b32 v{acc+2*k+1}, v{b+2*k+1}')
            else:
                a.I(f'v_pk_add_f32 v[{acc+2*k}:{acc+2*k+1}], v[{acc+2*k}:{acc+2*k+1}], v[{b+2*k}:{b+2*k+1}]')
        if i + NRB < 64:
            rissue(i + NRB)
    for k in range(4):
        a.I(f'v_cvt_pk_bf16_f32 v{8+k}, v{2*k}, v{2*k+1}')
    a.I(f's_lshl_b32 s{S_T1}, s{S_T1}, 10')
    a.I(f's_add_u32 s{S_T1}, s{S_T1}, {KVF_OFF}')
    a.I(f'buffer_store_dwordx4 v[8:11], v{vL16}, {S(R_WS)}, s{S_T1} offen sc1')
    a.I('s_waitcnt vmcnt(0)')
    a.I(f's_add_u32 s{S_K3}, s{S_K3}, 4')
    publish(a, f's{S_K3}', 'L_PUB3')
    a.label('L_RED_DONE')
    for m in range(TLO):
        t_issue(m)

    a.label('L_JOIN')
    for m in range(TLO, TSLOTS):
        t_issue(m)
    srd(a, R_OUT, P_OUT, 2048 * 1024)
    srd(a, R_B, P_B2, 4096)
    a.I(f's_lshl_b32 s{S_T2}, s{S_TB}, 7')
    a.I(f's_mov_b32 s{S_K1}, 32768')
    a.I(f'buffer_load_dwordx4 v[{XR}:{XR+3}], v{vXO}, {S(R_X)}, 0 offen')
    a.I(f'buffer_load_dwordx4 v[{XR+4}:{XR+7}], v{vXO}, {S(R_X)}, s{S_K1} offen')
    a.I(f'buffer_load_ushort v{BR}, v{vBO}, {S(R_B)}, s{S_T2} offen')
    a.I(f'buffer_load_ushort v{BR+1}, v{vBO}, {S(R_B)}, s{S_T2} offen offset:64')
    a.I(f's_lshl_b32 s{S_K3}, s{S_CG}, 5')
    a.I(f's_add_u32 s{S_K3}, s{S_K3}, 8')
    a.I(f'v_mov_b32 v{vPOFF}, 0')
    poll_issue(a, f's{S_K3}')
    a.I(f's_lshr_b32 s{S_T1}, s{S_W}, 1')
    a.I(f's_lshl_b32 s{S_T1}, s{S_T1}, 1')
    a.I(f's_lshl_b32 s{S_T2}, s{S_CG}, 2')
    a.I(f's_add_u32 s{S_T1}, s{S_T1}, s{S_T2}')
    a.I(f's_lshl_b32 s{S_T0}, s{S_T1}, 11')
    a.I(f's_add_u32 s{S_T0}, s{S_T0}, {KVF_OFF}')
    a.stamp()
    poll_check(a, None, f's{S_K3}', 2, 'L_F3')
    a.stamp()
    a.vm_issued = 0
    for k in list(tT):
        tT[k] = -1000
    KV = 48
    for q in range(4):
        a.I(f'buffer_load_dwordx4 v[{KV+4*q}:{KV+4*q+3}], v{vL16}, {S(R_WS)}, s{S_T0} offen offset:{q * 1024} sc1')
    a.I(f's_lshl_b32 s{S_T0}, s{S_TB}, 5')
    a.I(f's_add_u32 s{S_T0}, s{S_T0}, s{S_T1}')
    a.I(f's_lshl_b32 s{S_T0}, s{S_T0}, 11')
    a.I(f's_and_b32 s{S_T2}, s{S_W}, 1')
    a.I(f's_lshl_b32 s{S_T2}, s{S_T2}, 10')
    a.I(f's_add_u32 s{S_T0}, s{S_T0}, s{S_T2}')
    a.I(f's_add_u32 s{S_T0}, s{S_T0}, {OF_OFF}')
    a.I('s_waitcnt vmcnt(0)')
    for hd in range(2):
        D = 16 * hd
        a.I(f'v_mfma_f32_32x32x16_bf16 v[{D}:{D+15}], v[{KV+8*hd}:{KV+8*hd+3}], v[{PHQ+8*hd}:{PHQ+8*hd+3}], 0')
        a.I(f'v_mfma_f32_32x32x16_bf16 v[{D}:{D+15}], v[{KV+8*hd+4}:{KV+8*hd+7}], v[{PHQ+8*hd+4}:{PHQ+8*hd+7}], v[{D}:{D+15}]')
    for hd in range(2):
        D = 16 * hd
        a.I(f'v_add_f32 v{D+8}, 0x358637bd, v{D+8}')
        a.I(f'v_rcp_f32 v{D+8}, v{D+8}')
        for i in range(4):
            a.I(f'v_pk_mul_f32 v[{D+2*i}:{D+2*i+1}], v[{D+2*i}:{D+2*i+1}], v[{D+8}:{D+9}] op_sel_hi:[1,0]')
        for i in range(4):
            a.I(f'v_cvt_pk_bf16_f32 v{D+12+i}, v{D+2*i}, v{D+2*i+1}')
        a.I(f'buffer_store_dwordx4 v[{D+12}:{D+15}], v{vL16}, {S(R_WS)}, s{S_T0} offen offset:{hd * 2048} sc1')
    a.I(f's_lshr_b32 s{S_T0}, s{S_TB}, 2')
    a.I(f's_lshl_b32 s{S_T0}, s{S_T0}, 5')
    a.I(f's_and_b32 s{S_T1}, s{S_TB}, 3')
    a.I(f's_lshl_b32 s{S_T1}, s{S_T1}, 2')
    a.I(f's_add_u32 s{S_T0}, s{S_T0}, s{S_T1}')
    a.I(f's_add_u32 s{S_T0}, s{S_T0}, 16')
    a.I('s_waitcnt vmcnt(0)')
    publish(a, f's{S_T0}', 'L_PUB5')
    a.stamp()
    a.collect()
    a.I(f's_lshl_b32 s{S_T1}, s{S_CG}, 5')
    a.I(f's_add_u32 s{S_T1}, s{S_T1}, 12')
    a.I(f's_cmp_eq_u32 s{S_W}, 0')
    a.I(f's_cselect_b32 s{S_K3}, s{S_T0}, s{S_T1}')
    a.I(f's_cselect_b32 s{S_K2}, 8, 29')
    a.I(f'v_mov_b32 v{vPOFF}, 0')
    poll_issue(a, f's{S_K3}')
    poll_check(a, None, f's{S_K3}', f's{S_K2}', 'L_F45')
    a.stamp()

    NS, DEP = 32, 16
    TB_ = 96

    def f_issue(n):
        r = 8 * (n % DEP)
        o = (n & 1) * 2048
        a.I(f'buffer_load_dwordx4 a[{r}:{r+3}], v{vL16}, {S(R_F)}, s{S_SOF} offen offset:{o} sc1')
        tF[n] = a.I(f'buffer_load_dwordx4 a[{r+4}:{r+7}], v{vL16}, {S(R_F)}, s{S_SOF} offen offset:{o + 1024} sc1')
        if n & 1:
            a.I(f's_add_u32 s{S_SOF}, s{S_SOF}, 4096')

    def treads(n):
        b = TB_ + 8 * (n & 1)
        sl = n % TSLOTS
        regs, o = ((vR0, vR1), sl * 2048) if sl < TLO else ((vR2, vR3), (sl - TLO) * 2048)
        L = []
        for cb, ad in enumerate(regs):
            L.append(f'ds_read_b64_tr_b16 v[{b+4*cb}:{b+4*cb+1}], v{ad} offset:{o}')
            L.append(f'ds_read_b64_tr_b16 v[{b+4*cb+2}:{b+4*cb+3}], v{ad} offset:{o + 1024}')
        return L

    PRE = opt('preF', 6)
    for t in treads(0):
        a.I(t)
    for n in range(PRE):
        f_issue(n)
    nf = PRE
    for n in range(NS):
        if n == 16:
            a.stamp()
        w = tF[n]
        if n + 1 < NS:
            w = max(w, tT[n + 1])
        a.wait_vm(w)
        a.I('s_waitcnt lgkmcnt(0)')
        R = treads(n + 1) if n + 1 < NS else []
        b = TB_ + 8 * (n & 1)
        r = 8 * (n % DEP)
        k = 0
        for cb in range(2):
            for fb in range(2):
                D = 16 * (2 * fb + cb)
                c = '0' if n == 0 else f'v[{D}:{D+15}]'
                a.I(f'v_mfma_f32_32x32x16_bf16 v[{D}:{D+15}], a[{r+4*fb}:{r+4*fb+3}], v[{b+4*cb}:{b+4*cb+3}], {c}')
                if k < 2:
                    for t in R[2 * k:2 * k + 2]:
                        a.I(t)
                if k == 1:
                    cnt = 2 if nf - n < DEP - 2 else 1
                    while cnt > 0 and nf < NS and nf - n < DEP:
                        f_issue(nf)
                        nf += 1
                        cnt -= 1
                if k == 2 and n + TSLOTS < NS:
                    t_issue(n + TSLOTS)
                k += 1
    a.stamp()
    aW = 64
    a.I('s_barrier')
    a.I(f's_cmp_eq_u32 s{S_W}, 0')
    a.I('s_cbranch_scc1 L_E_W0')
    a.I(f's_mul_i32 s{S_T0}, s{S_W}, 17408')
    a.I(f'v_mul_u32_u24 v{aW}, 272, v{l31}')
    a.I(f'v_lshl_add_u32 v{aW}, v{hh}, 4, v{aW}')
    a.I(f'v_add_u32 v{aW}, s{S_T0}, v{aW}')
    for fb in range(2):
        for cb in range(2):
            D = 16 * (2 * fb + cb)
            for q in range(4):
                a.I(f'ds_write_b128 v{aW}, v[{D+4*q}:{D+4*q+3}] offset:{cb * 32 * 272 + fb * 128 + q * 32}')
    a.I('s_branch L_E_JOIN')
    a.label('L_E_W0')
    a.I(f'v_mul_u32_u24 v{aW}, 1088, v{hh}')
    a.I(f'v_lshl_add_u32 v{aW}, v{l31}, 2, v{aW}')
    for fb in range(2):
        for cb in range(2):
            D = 16 * (2 * fb + cb)
            for r in range(16):
                row = 32 * fb + (r & 3) + 8 * (r >> 2)
                a.I(f'ds_write_b32 v{aW}, v{D+r} offset:{row * 272 + cb * 128}')
    a.label('L_E_JOIN')
    a.I('s_waitcnt lgkmcnt(0)')
    a.I('s_barrier')
    a.stamp()
    a.collect()
    for ps in range(2):
        for p in range(4):
            for hf in range(2):
                b = 32 * ps + 8 * p + 4 * hf
                a.I(f'ds_read_b128 v[{b}:{b+3}], v{aR} offset:{p * 17408 + ps * 8704 + hf * 16}')
    XU = 64
    for ps in range(2):
        a.I(f'v_lshlrev_b32 v{BR+ps}, 16, v{BR+ps}')
        for k in range(4):
            x = XR + 4 * ps + k
            a.I(f'v_lshlrev_b32 v{XU+8*ps+2*k}, 16, v{x}')
            a.I(f'v_and_b32 v{XU+8*ps+2*k+1}, 0xffff0000, v{x}')
    for ps in range(2):
        sel = 'op_sel_hi:[1,0]' if ps == 0 else 'op_sel:[0,1] op_sel_hi:[1,1]'
        for k in range(4):
            r = XU + 8 * ps + 2 * k
            a.I(f'v_pk_add_f32 v[{r}:{r+1}], v[{r}:{r+1}], v[{BR}:{BR+1}] {sel}')
    for ps in range(2):
        a.I(f's_waitcnt lgkmcnt({8 - 8 * ps})')
        b = 32 * ps
        for k in range(4):
            a.I(f'v_pk_add_f32 v[{b+2*k}:{b+2*k+1}], v[{b+2*k}:{b+2*k+1}], v[{b+8+2*k}:{b+8+2*k+1}]')
            a.I(f'v_pk_add_f32 v[{b+16+2*k}:{b+16+2*k+1}], v[{b+16+2*k}:{b+16+2*k+1}], v[{b+24+2*k}:{b+24+2*k+1}]')
        for k in range(4):
            a.I(f'v_pk_add_f32 v[{b+2*k}:{b+2*k+1}], v[{b+2*k}:{b+2*k+1}], v[{b+16+2*k}:{b+16+2*k+1}]')
        for k in range(4):
            r = XU + 8 * ps + 2 * k
            a.I(f'v_pk_add_f32 v[{b+2*k}:{b+2*k+1}], v[{b+2*k}:{b+2*k+1}], v[{r}:{r+1}]')
        for k in range(4):
            a.I(f'v_cvt_pk_bf16_f32 v{b+16+k}, v{b+2*k}, v{b+2*k+1}')
        so = '0' if ps == 0 else f's{S_K1}'
        a.I(f'buffer_store_dwordx4 v[{b+16}:{b+19}], v{vXO}, {S(R_OUT)}, {so} offen')
    if STAMPS:
        a.stamp()
        a.I('s_waitcnt vmcnt(0)')
        a.stamp()
        a.stamp(rt=True)
        a.collect()
        a.I('s_lshl_b32 s3, s2, 2')
        a.I(f's_add_u32 s3, s3, s{S_W}')
        a.I('s_lshl_b32 s3, s3, 8')
        a.I(f's_add_u32 s3, s3, {STAMP_OFF}')
        a.I(f'v_lshlrev_b32 v{t0}, 2, v{vL}')
        a.I(f'buffer_store_dword v{vSTAMP}, v{t0}, {S(R_WS)}, s3 offen')
        print('stamps:', a.nstamp)
    a.label(end)
    a.I('s_endpgm')


HEADER = """; Kernarg layout for this problem (96 bytes, ptrs only, base s[0:1]):
; @launch grid=(256,1,1) block=(256,1,1) lds=163840
.amdgcn_target "amdgcn-amd-amdhsa--gfx950"
"""


def main():
    out = sys.argv[1] if len(sys.argv) > 1 else f'cdna_kernels/{NAME}.s'
    a = K()
    gen(a)
    name = NAME + '_kernel'
    pad = '    s_nop 0\n' * 0
    txt = HEADER + f""".text
.globl {name}
.p2align 8
.type {name},@function
{name}:
{a.text()}{pad}.section .rodata,"a"
.p2align 6
.amdhsa_kernel {name}
  .amdhsa_next_free_vgpr 512
  .amdhsa_next_free_sgpr 102
  .amdhsa_accum_offset 256
  .amdhsa_group_segment_fixed_size 0
  .amdhsa_kernarg_size 96
  .amdhsa_user_sgpr_count 2
  .amdhsa_user_sgpr_kernarg_segment_ptr 1
  .amdhsa_system_sgpr_workgroup_id_x 1
  .amdhsa_float_denorm_mode_32 3
.end_amdhsa_kernel
"""
    open(out, 'w').write(txt)
    print('wrote', out, len(txt), 'bytes')


if __name__ == '__main__':
    main()
```

```python
import sys
import os
import math
import struct
sys.path.insert(0, os.path.dirname(os.path.abspath(__file__)))
from asmlib import Asm

NAME = 'parallel_sum__linear_kernel_hedgehog__mixer_token_mlp__prompt'
OPT = dict(kv.split('=') for kv in os.environ.get('OPT', '').split(',') if kv)


def opt(k, d):
    return int(OPT.get(k, d))


def f32bits(x):
    return struct.unpack('<I', struct.pack('<f', x))[0]


MB = 1 << 20
HF_OFF = 0
W1F_OFF = 2 * MB
W1F_SIZE = 86 * 65536
KVP_OFF = 8 * MB
KVP_STRIDE = 2176
KVF_OFF = 11 * MB
UF_OFF = 12 * MB
UF_DT = 88 * 2048
OF_OFF = 14 * MB
FL4_OFF = 11 * MB + 131072
FL5_OFF = 11 * MB + 196608
STAMP_OFF = 20 * MB
WS_USED = 24 * MB

LOG2E = 0x3fb8aa3b
ONES = 0x3f803f80
GK1 = f32bits(-2.0 * math.sqrt(2.0 / math.pi) * math.log2(math.e))
GK2 = f32bits(-2.0 * math.sqrt(2.0 / math.pi) * math.log2(math.e) * 0.044715)
STAMPS = os.environ.get('STAMPS', '0') == '1'

P_X, P_WQKV, P_WPHI, P_WO, P_BX, P_W1, P_B1, P_W2, P_B2, P_OUT, P_DBG, P_WS = [4 + 2 * i for i in range(12)]
R_X, R_W, R_W1, R_WS, R_W1F, R_TMP, R_DBG, R_OUT = 28, 32, 36, 40, 44, 48, 52, 56
R_T = R_W
R_C = R_W1F
R_F = R_TMP
R_B = R_W1
(S_W, S_TB, S_CG, S_IA, S_T0, S_T1, S_T2, S_XW, S_WW, S_SOX, S_SOW0, S_SOW1, S_XCD, S_J, S_DT, S_FT,
 S_K1, S_K2, S_K3, S_L2E, S_SPIN, S_LW, S_LW2, S_STEP) = range(60, 84)
S_EXEC = 84
S_SOT, S_SOF, S_KP, S_CNT = 86, 87, 88, 89
S_HD0, S_KF = S_IA, S_XW
S_OD = S_WW
S_F4, S_F5 = S_STEP, 3
S_STAMP = 90

XS0, WS0 = 0, 40960
def XS(slot): return XS0 + slot * 8192
def WSL(slot): return WS0 + slot * 24576
HS = XS(4)
W1S = WSL(4)
WPHI_L = W1S + 22 * 1024
EP = WSL(3)
EP_CS, EP_ST, EP_PK, EP_VV = 155648, 156672, EP + 2048, EP + 2048 + 16384
TLO = 13
TSLOTS = 20
CRED = 106496

vL, l31, hh, i16, gq, r4, c4, l3, l7 = range(144, 153)
t0, t1, t2 = 153, 154, 155
vAX, vL16, vPOLL, vPOFF = 156, 157, 158, 159
PHQ = 232
vCA_ = 248
vSTAMP = 255
vKP = 156


class K(Asm):
    def __init__(self):
        super().__init__()
        self.pending = []
        self.nstamp = 0

    def stamp(self, rt=False):
        if not STAMPS:
            return
        slot = len(self.pending)
        assert slot < 6
        r = S_STAMP + 2 * slot
        self.I(f's_memrealtime s[{r}:{r+1}]' if rt else f's_memtime s[{r}:{r+1}]')
        self.pending.append((self.nstamp, r))
        self.nstamp += 1

    def stamp_at(self, idx):
        if not STAMPS:
            return
        self.I('s_memtime s[100:101]')
        self.I('s_waitcnt lgkmcnt(0)')
        self.I(f'v_writelane_b32 v{vSTAMP}, s100, {idx}')

    def collect(self):
        if not STAMPS or not self.pending:
            return
        self.I('s_waitcnt lgkmcnt(0)')
        for idx, r in self.pending:
            self.I(f'v_writelane_b32 v{vSTAMP}, s{r}, {idx}')
        self.pending = []


def srd(a, d, ptr, nbytes, off_sgpr=None, off_imm=0):
    a.lock()
    if off_sgpr is None and off_imm == 0:
        a.I(f's_mov_b32 s{d}, s{ptr}')
        a.I(f's_mov_b32 s{d+1}, s{ptr+1}')
    elif off_sgpr is not None:
        a.I(f's_add_u32 s{d}, s{ptr}, s{off_sgpr}')
        a.I(f's_addc_u32 s{d+1}, s{ptr+1}, 0')
        assert off_imm == 0
    else:
        a.I(f's_add_u32 s{d}, s{ptr}, {off_imm}')
        a.I(f's_addc_u32 s{d+1}, s{ptr+1}, 0')
    a.I(f's_mov_b32 s{d+2}, {nbytes}')
    a.I(f's_mov_b32 s{d+3}, 0x20000')
    a.unlock()


def S(r):
    return f's[{r}:{r+3}]'


def bf16_round(a, dst, src):
    a.I(f'v_cvt_pk_bf16_f32 v{dst}, v{src}, v{src}')
    a.I(f'v_and_b32 v{dst}, 0xffff0000, v{dst}')


def ln_scalars(a, vsum, vsq, vm, vrs, t):
    a.I(f'v_mul_f32 v{vsum}, 0x3b000000, v{vsum}')
    a.I(f'v_mul_f32 v{vsq}, 0x3b000000, v{vsq}')
    a.I(f'v_fma_f32 v{vsq}, -v{vsum}, v{vsum}, v{vsq}')
    a.I(f'v_max_f32 v{vsq}, 0, v{vsq}')
    bf16_round(a, vm, vsum)
    bf16_round(a, t, vsq)
    a.I(f'v_add_f32 v{t}, 0x3727c5ac, v{t}')
    bf16_round(a, t, t)
    a.I(f'v_sqrt_f32 v{t}, v{t}')
    bf16_round(a, t, t)
    a.I(f'v_rcp_f32 v{vrs}, v{t}')


def reduce32(a, regs, tmps):
    for ctl in ('quad_perm:[1,0,3,2]', 'quad_perm:[2,3,0,1]', 'row_half_mirror', 'row_mirror'):
        for r in regs:
            a.I(f'v_add_f32_dpp v{r}, v{r}, v{r} {ctl} row_mask:0xf bank_mask:0xf')
    for r, t in zip(regs, tmps):
        a.I(f'v_mov_b32 v{t}, v{r}')
    for r, t in zip(regs, tmps):
        a.I(f'v_permlane16_swap_b32 v{r}, v{t}')
    for r, t in zip(regs, tmps):
        a.I(f'v_add_f32 v{r}, v{r}, v{t}')


def softmax2(a, Ps, T, OUTs):
    U = [(P, T + 4 * u, O) for u, (P, O) in enumerate(zip(Ps, OUTs))]
    for step in range(4):
        for P, Tb, _ in U:
            for t, b in ((Tb, P), (Tb + 1, P + 8)):
                if step == 0:
                    a.I(f'v_max3_f32 v{t}, v{b}, v{b+1}, v{b+2}')
                elif step < 3:
                    a.I(f'v_max3_f32 v{t}, v{t}, v{b+1+2*step}, v{b+2+2*step}')
                else:
                    a.I(f'v_max_f32 v{t}, v{t}, v{b+7}')
    for P, Tb, _ in U:
        a.I(f'v_permlane32_swap_b32 v{Tb}, v{Tb+1}')
    for P, Tb, _ in U:
        a.I(f'v_max_f32 v{Tb+2}, v{Tb}, v{Tb+1}')
    for P, Tb, _ in U:
        a.I(f'v_mul_f32 v{Tb+2}, s{S_L2E}, v{Tb+2}')
    for P, Tb, _ in U:
        a.I(f'v_mov_b32 v{Tb+3}, v{Tb+2}')
    for P, Tb, _ in U:
        a.I(f'v_permlane32_swap_b32 v{Tb+2}, v{Tb+3}')
    for P, Tb, _ in U:
        for i in range(16):
            m = Tb + 2 if i < 8 else Tb + 3
            a.I(f'v_fma_f32 v{P+i}, v{P+i}, s{S_L2E}, -v{m}')
            a.I(f'v_exp_f32 v{P+i}, v{P+i}') if False else None
    for P, Tb, _ in U:
        for i in range(16):
            a.I(f'v_exp_f32 v{P+i}, v{P+i}')
    for P, Tb, O in U:
        for hlf in range(2):
            b = P + 8 * hlf
            o = O + 4 * hlf
            a.I(f'v_pk_add_f32 v[{o}:{o+1}], v[{b}:{b+1}], v[{b+2}:{b+3}]')
            a.I(f'v_pk_add_f32 v[{o+2}:{o+3}], v[{b+4}:{b+5}], v[{b+6}:{b+7}]')
    for P, Tb, O in U:
        for hlf in range(2):
            o = O + 4 * hlf
            a.I(f'v_pk_add_f32 v[{o}:{o+1}], v[{o}:{o+1}], v[{o+2}:{o+3}]')
    for P, Tb, O in U:
        for hlf in range(2):
            o = O + 4 * hlf
            a.I(f'v_add_f32 v{Tb+hlf}, v{o}, v{o+1}')
    for P, Tb, _ in U:
        a.I(f'v_permlane32_swap_b32 v{Tb}, v{Tb+1}')
    for P, Tb, _ in U:
        a.I(f'v_add_f32 v{Tb+2}, v{Tb}, v{Tb+1}')
    for P, Tb, _ in U:
        a.I(f'v_rcp_f32 v{Tb+2}, v{Tb+2}')
    for P, Tb, _ in U:
        a.I(f'v_mov_b32 v{Tb+3}, v{Tb+2}')
    for P, Tb, _ in U:
        a.I(f'v_permlane32_swap_b32 v{Tb+2}, v{Tb+3}')
    for P, Tb, _ in U:
        for i in range(8):
            sel = 'op_sel:[0,0] op_sel_hi:[1,0]' if i < 4 else 'op_sel:[0,1] op_sel_hi:[1,1]'
            a.I(f'v_pk_mul_f32 v[{P+2*i}:{P+2*i+1}], v[{P+2*i}:{P+2*i+1}], v[{Tb+2}:{Tb+3}] {sel}')
    for P, Tb, O in U:
        for i in range(8):
            a.I(f'v_cvt_pk_bf16_f32 v{O+i}, v{P+2*i}, v{P+2*i+1}')


def publish(a, soff_sgpr_or_imm, name):
    a.lock()
    a.I('s_barrier')
    a.I(f's_cmp_lg_u32 s{S_W}, 0')
    a.I(f's_cbranch_scc1 {name}')
    save = a.vm_issued
    a.I(f'v_mov_b32 v{vPOLL}, 1')
    a.I(f'v_mov_b32 v{vPOFF}, 0')
    a.I('s_mov_b64 exec, 1')
    a.I(f'buffer_atomic_add v{vPOLL}, v{vPOFF}, {S(R_DBG)}, {soff_sgpr_or_imm} offen sc1')
    a.I('s_mov_b64 exec, -1')
    a.vm_issued = save
    a.label(name)
    a.unlock()


def poll_issue(a, soff):
    return a.I(f'buffer_load_dword v{vPOLL}, v{vPOFF}, {S(R_DBG)}, {soff} offen sc1')


def poll_check(a, tok, soff, expected, name, sleep=4):
    a.lock()
    if tok is None:
        a.I('s_waitcnt vmcnt(0)')
    else:
        a.wait_vm(tok)
    a.I(f'v_cmp_gt_u32 vcc, {expected}, v{vPOLL}')
    a.I(f's_cbranch_vccz {name}_OK')
    a.I(f's_mov_b32 s{S_SPIN}, 0')
    a.label(name + '_SPIN')
    save = a.vm_issued
    a.I(f's_sleep {sleep}')
    a.I(f'buffer_load_dword v{vPOLL}, v{vPOFF}, {S(R_DBG)}, {soff} offen sc1')
    a.I(f's_add_u32 s{S_SPIN}, s{S_SPIN}, 1')
    a.I(f's_cmp_gt_u32 s{S_SPIN}, 0x20000')
    a.I(f's_cbranch_scc1 {name}_OK')
    a.I('s_waitcnt vmcnt(0)')
    a.I(f'v_cmp_gt_u32 vcc, {expected}, v{vPOLL}')
    a.I(f's_cbranch_vccnz {name}_SPIN')
    a.vm_issued = save
    a.label(name + '_OK')
    a.unlock()


def wg_wait(a, soff, expected, name, voff_expr=None, sleep=4):
    a.lock()
    a.I(f's_cmp_lg_u32 s{S_W}, 0')
    a.I(f's_cbranch_scc1 {name}_B')
    save = a.vm_issued
    a.I(voff_expr if voff_expr else f'v_mov_b32 v{vPOFF}, 0')
    poll_issue(a, soff)
    poll_check(a, None, soff, expected, name, sleep)
    a.vm_issued = save
    a.label(name + '_B')
    a.I('s_barrier')
    a.unlock()


def flag_set(a, soff):
    a.lock()
    a.I(f'v_mov_b32 v{vPOLL}, 0')
    a.I('s_mov_b64 exec, 1')
    a.I(f'buffer_store_dword v{vPOLL}, v{vL16}, {S(R_WS)}, s{soff} offen sc1')
    a.I('s_mov_b64 exec, -1')
    a.unlock()


def flag_wait(a, soff, width, name, sleep=4):
    a.lock()
    save = a.vm_issued
    a.I(f's_mov_b32 s{S_SPIN}, 0')
    a.label(name)
    if width == 1:
        a.I(f'buffer_load_dword v{t0}, v{vPOFF}, {S(R_WS)}, s{soff} offen sc1')
    else:
        a.I(f'buffer_load_dwordx2 v[{t1}:{t2}], v{vPOFF}, {S(R_WS)}, s{soff} offen sc1')
    a.I(f's_add_u32 s{S_SPIN}, s{S_SPIN}, 1')
    a.I(f's_cmp_gt_u32 s{S_SPIN}, 0x20000')
    a.I(f's_cbranch_scc1 {name}_OK')
    a.I('s_waitcnt vmcnt(0)')
    if width == 2:
        a.I(f'v_or_b32 v{t0}, v{t1}, v{t2}')
    a.I(f'v_cmp_ne_u32 vcc, 0, v{t0}')
    a.I(f's_cbranch_vccz {name}_OK')
    a.I(f's_sleep {sleep}')
    a.I(f's_branch {name}')
    a.vm_issued = save
    a.label(name + '_OK')
    a.unlock()


def gen(a):
    NSH = opt('nsh', 8)
    end = 'L_END'
    a.I('s_cmp_ge_u32 s2, 256')
    a.I(f's_cbranch_scc1 {end}')
    a.I('s_load_dwordx16 s[4:19], s[0:1], 0')
    a.I('s_load_dwordx8 s[20:27], s[0:1], 64')
    a.stamp(rt=True)
    a.stamp()
    if opt('codepf', 1):
        a.raw('L_PC:')
        a.I(f's_getpc_b64 s[{R_TMP}:{R_TMP+1}]')
        a.I(f's_mov_b32 s{R_TMP+2}, L_END-L_PC')
        a.I(f's_mov_b32 s{R_TMP+3}, 0x20000')
        a.I('s_bfe_u32 s3, s2, 0x20003')
        a.I('s_lshl_b32 s3, s3, 13')
        a.I(f'v_lshlrev_b32 v{t0}, 5, v0')
        a.I(f'v_and_b32 v{t0}, 0x1f80, v{t0}')
        a.I(f'buffer_load_dword v128, v{t0}, {S(R_TMP)}, s3 offen')
    ACC, CSA, XSUM, GRAM, VONE = 0, 48, 60, 64, 68
    FR, AUXE, AUXO, PHI = 72, 104, 112, 120
    vXD0, vXD1, vWD = 129, 130, 131
    vXA, vWA, vCA, vSA = 132, 136, 139, 142
    vH = 160

    a.I(f'v_and_b32 v{vL}, 63, v0')
    a.I(f'v_lshrrev_b32 v{t0}, 6, v0')
    a.I(f'v_readfirstlane_b32 s{S_W}, v{t0}')
    a.I(f's_and_b32 s{S_XCD}, s2, 7')
    a.I(f's_lshr_b32 s{S_J}, s2, 3')
    a.I(f's_lshl_b32 s{S_IA}, s{S_XCD}, 5')
    a.I(f's_add_u32 s{S_IA}, s{S_IA}, s{S_J}')
    a.I(f's_lshr_b32 s{S_TB}, s{S_XCD}, 1')
    a.I(f's_lshl_b32 s{S_TB}, s{S_TB}, 3')
    a.I(f's_lshr_b32 s{S_T2}, s{S_J}, 2')
    a.I(f's_add_u32 s{S_TB}, s{S_TB}, s{S_T2}')
    a.I(f's_and_b32 s{S_CG}, s{S_XCD}, 1')
    a.I(f's_lshl_b32 s{S_CG}, s{S_CG}, 2')
    a.I(f's_and_b32 s{S_T2}, s{S_J}, 3')
    a.I(f's_add_u32 s{S_CG}, s{S_CG}, s{S_T2}')
    a.I(f's_lshl_b32 s{S_XW}, s{S_W}, 11')
    a.I(f's_mul_i32 s{S_WW}, s{S_W}, 6144')
    a.I(f's_mov_b32 s{S_L2E}, {LOG2E}')
    a.I(f'v_and_b32 v{l31}, 31, v{vL}')
    a.I(f'v_lshrrev_b32 v{hh}, 5, v{vL}')
    a.I(f'v_lshlrev_b32 v{vAX}, 10, v{hh}')
    a.I(f'v_lshl_add_u32 v{vAX}, v{l31}, 4, v{vAX}')
    a.I(f'v_lshlrev_b32 v{vL16}, 4, v{vL}')
    a.I(f's_mul_i32 s{S_T2}, s{S_IA}, 22016')
    a.I(f's_lshl_b32 s{S_T0}, s{S_IA}, 13')
    a.I(f's_add_u32 s{S_T0}, s{S_T0}, s{S_XW}')
    a.I(f's_lshl_b32 s{S_T1}, s{S_W}, 10')
    a.I('s_waitcnt lgkmcnt(0)')
    srd(a, R_X, P_X, 2048 * 1024)
    a.I(f'buffer_load_dwordx4 v[{vH}:{vH+3}], v{vAX}, {S(R_X)}, s{S_T0} offen')
    tokAX = a.I(f'buffer_load_dwordx4 v[{vH+4}:{vH+7}], v{vAX}, {S(R_X)}, s{S_T0} offen offset:512')
    srd(a, R_W1, P_W1, 22016, off_sgpr=S_T2)
    for j in range(5):
        a.I(f's_add_u32 m0, s{S_T1}, {W1S + j * 4096}')
        a.I(f's_add_u32 s{S_T0}, s{S_T1}, {j * 4096}')
        a.I(f'buffer_load_dwordx4 v{vL16}, {S(R_W1)}, s{S_T0} offen lds')
    a.I(f's_cmp_ge_u32 s{S_W}, 2')
    a.I(f's_cselect_b32 s{R_TMP}, s{P_WPHI}, s{R_W1}')
    a.I(f's_cselect_b32 s{R_TMP+1}, s{P_WPHI+1}, s{R_W1+1}')
    a.I(f's_cselect_b32 s{R_TMP+2}, 16384, s{R_W1+2}')
    a.I(f's_mov_b32 s{R_TMP+3}, 0x20000')
    a.I(f's_lshl_b32 s{S_T0}, s{S_CG}, 11')
    a.I(f's_sub_u32 s{S_T0}, s{S_T0}, 2048')
    a.I(f's_cmp_ge_u32 s{S_W}, 2')
    a.I(f's_cselect_b32 s{S_T0}, s{S_T0}, {20 * 1024}')
    a.I(f's_add_u32 s{S_T0}, s{S_T0}, s{S_T1}')
    a.I(f's_add_u32 m0, s{S_T1}, {W1S + 20 * 1024}')
    tokW1 = a.I(f'buffer_load_dwordx4 v{vL16}, {S(R_TMP)}, s{S_T0} offen lds')
    srd(a, R_W, P_WQKV, 512 * 3072)
    srd(a, R_WS, P_WS, WS_USED)
    srd(a, R_W1F, P_WS, W1F_SIZE, off_imm=W1F_OFF)
    srd(a, R_DBG, P_DBG, 256)

    a.I(f'v_and_b32 v{i16}, 15, v{vL}')
    a.I(f'v_lshrrev_b32 v{gq}, 4, v{vL}')
    a.I(f'v_bfe_u32 v{r4}, v{vL}, 2, 2')
    a.I(f'v_and_b32 v{c4}, 3, v{vL}')
    a.I(f'v_lshrrev_b32 v{l3}, 3, v{vL}')
    a.I(f'v_and_b32 v{l7}, 7, v{vL}')

    vpW, vpX, vpD = vH + 28, vH + 29, 128
    S_PX, S_PW = S_K1, S_K2
    a.I(f's_lshr_b32 s{S_PX}, s{S_XCD}, 1')
    a.I(f's_lshl_b32 s{S_PX}, s{S_PX}, 19')
    a.I(f's_lshl_b32 s{S_T2}, s{S_J}, 14')
    a.I(f's_add_u32 s{S_PX}, s{S_PX}, s{S_T2}')
    a.I(f's_lshl_b32 s{S_T2}, s{S_W}, 12')
    a.I(f's_add_u32 s{S_PX}, s{S_PX}, s{S_T2}')
    a.I(f'v_lshlrev_b32 v{vpX}, 10, v{r4}')
    a.I(f'v_lshl_add_u32 v{vpX}, v{c4}, 7, v{vpX}')
    a.I(f'v_and_b32 v{vpW}, 1, v{gq}')
    a.I(f'v_mul_u32_u24 v{vpW}, 3072, v{vpW}')
    a.I(f'v_min_u32 v{t0}, 2, v{r4}')
    a.I(f'v_lshl_add_u32 v{vpW}, v{t0}, 10, v{vpW}')
    a.I(f'v_lshl_add_u32 v{vpW}, v{c4}, 7, v{vpW}')
    a.I(f's_mul_i32 s{S_PW}, s{S_J}, {8 * 3072}')
    a.I(f's_add_u32 s{S_PW}, s{S_PW}, s{S_WW}')
    a.I(f's_and_b32 s{S_T2}, s{S_XCD}, 1')
    a.I(f's_lshl_b32 s{S_T2}, s{S_T2}, 9')
    a.I(f's_add_u32 s{S_PW}, s{S_PW}, s{S_T2}')
    a.I(f's_add_u32 s{S_K3}, s{S_PW}, {256 * 3072}')

    def coop(hf):
        a.I(f'buffer_load_dword v{vpD}, v{vpW}, {S(R_W)}, s{S_PW if hf == 0 else S_K3} offen')
        a.I(f'buffer_load_dword v{vpD}, v{vpX}, {S(R_X)}, s{S_PX} offen' + (' offset:512' if hf else ''))

    COOP = opt('coop', 1)
    if COOP in (1, 3):
        coop(0)
    if COOP == 3:
        coop(1)

    a.I(f's_lshl_b32 s{S_T0}, s{S_TB}, 16')
    a.I(f's_lshl_b32 s{S_T1}, s{S_W}, 14')
    a.I(f's_add_u32 s{S_T0}, s{S_T0}, s{S_T1}')
    a.I(f'v_xor_b32 v{t0}, v{l7}, v{gq}')
    a.I(f'v_lshlrev_b32 v{t0}, 4, v{t0}')
    a.I(f'v_lshl_add_u32 v{t0}, v{l3}, 10, v{t0}')
    a.I(f'v_add_u32 v{vXD0}, s{S_T0}, v{t0}')
    a.I(f'v_xor_b32 v{vXD1}, 64, v{vXD0}')
    a.I(f'v_add_u32 v{vXD1}, {8192 - 1024}, v{vXD1}')
    a.I(f's_mul_i32 s{S_T0}, s{S_W}, {16 * 3072}')
    a.I(f's_lshl_b32 s{S_T1}, s{S_CG}, 7')
    a.I(f's_add_u32 s{S_T0}, s{S_T0}, s{S_T1}')
    a.I(f'v_and_b32 v{t0}, 1, v{gq}')
    a.I(f'v_lshlrev_b32 v{t0}, 2, v{t0}')
    a.I(f'v_xor_b32 v{t0}, v{l7}, v{t0}')
    a.I(f'v_lshlrev_b32 v{t0}, 4, v{t0}')
    a.I(f'v_mul_u32_u24 v{t1}, 3072, v{l3}')
    a.I(f'v_add3_u32 v{vWD}, v{t0}, v{t1}, s{S_T0}')

    stage_tok = {}
    npend = {}
    total_q = [0]

    def queue_stage(st, extra=None):
        slot = st % 4

        def x_item(p):
            def f():
                a.I(f's_mov_b32 s{S_SOX}, {st * 128}')
                a.I(f's_add_u32 m0, s{S_XW}, {XS(slot)}')
                if p == 0:
                    a.I(f'buffer_load_dwordx4 v{vXD0}, {S(R_X)}, s{S_SOX} offen lds')
                else:
                    a.I(f'buffer_load_dwordx4 v{vXD1}, {S(R_X)}, s{S_SOX} offen offset:1024 lds')
            return f

        def w_item(p, seg):
            def f():
                a.I(f's_mov_b32 s{S_SOW0}, {st * 196608 + p * 24576}')
                a.I(f's_add_u32 m0, s{S_WW}, {WSL(slot) + p * 3072}')
                off = f' offset:{seg * 1024}' if seg else ''
                stage_tok[st] = a.I(f'buffer_load_dwordx4 v{vWD}, {S(R_W)}, s{S_SOW0} offen{off} lds')
            return f
        items = [x_item(0), x_item(1)] + [w_item(p, seg) for p in range(2) for seg in range(3)]
        for k, it in enumerate(items):
            bgq(it)
            if extra and k % 2 == 1:
                bgq(extra.pop(0))
        mark = total_q[0]
        npend[st] = lambda: total_q[0] - mark

    def bgq(it):
        a.bg_add(it)
        total_q[0] += 1

    def need_stage(st):
        while len(a.bg) > npend[st]():
            a.bg_emit(1)

    a.I(f's_and_b32 s{S_T0}, s{S_W}, 1')
    a.I(f's_lshr_b32 s{S_T1}, s{S_W}, 1')
    a.I(f'v_bfe_u32 v{t0}, v{vL}, 1, 3')
    a.I(f'v_xor_b32 v{t0}, v{t0}, v{hh}')
    a.I(f'v_lshlrev_b32 v{t0}, 4, v{t0}')
    a.I(f'v_lshl_add_u32 v{t0}, v{l31}, 7, v{t0}')
    a.I(f's_lshl_b32 s{S_T2}, s{S_T0}, 12')
    a.I(f'v_add_u32 v{vXA}, s{S_T2}, v{t0}')
    for ks in range(1, 4):
        a.I(f'v_xor_b32 v{vXA+ks}, {ks * 32}, v{vXA}')
    a.I(f'v_bfe_u32 v{t0}, v{vL}, 3, 1')
    a.I(f'v_lshlrev_b32 v{t0}, 2, v{t0}')
    a.I(f'v_and_b32 v{t1}, 1, v{vL}')
    a.I(f'v_lshlrev_b32 v{t1}, 3, v{t1}')
    a.I(f'v_lshl_add_u32 v{t1}, v{r4}, 7, v{t1}')
    a.I(f'v_bfe_u32 v{t2}, v{vL}, 4, 1')
    a.I(f'v_lshlrev_b32 v{t2}, 1, v{t2}')
    a.I(f'v_bfe_u32 v{vWA}, v{vL}, 1, 1')
    a.I(f'v_add_u32 v{t2}, v{t2}, v{vWA}')
    a.I(f's_lshl_b32 s{S_T2}, s{S_T1}, 2')
    a.I(f'v_add_u32 v{t2}, s{S_T2}, v{t2}')
    a.I(f'v_xor_b32 v{t2}, v{t2}, v{t0}')
    a.I(f'v_lshl_add_u32 v{t2}, v{t2}, 4, v{t1}')
    a.I(f'v_mul_u32_u24 v{vWA}, 3072, v{hh}')
    a.I(f'v_add_u32 v{t2}, v{t2}, v{vWA}')
    for b in range(3):
        a.I(f'v_add_u32 v{vWA+b}, {WS0 + b * 49152}, v{t2}')
    a.I(f'v_bfe_u32 v{t2}, v{vL}, 1, 1')
    a.I(f's_lshl_b32 s{S_T2}, s{S_W}, 1')
    a.I(f'v_add_u32 v{t2}, s{S_T2}, v{t2}')
    a.I(f'v_xor_b32 v{t2}, v{t2}, v{t0}')
    a.I(f'v_lshl_add_u32 v{t2}, v{t2}, 4, v{t1}')
    a.I(f'v_mul_u32_u24 v{vCA}, 3072, v{gq}')
    a.I(f'v_add_u32 v{t2}, v{t2}, v{vCA}')
    for b in range(3):
        a.I(f'v_add_u32 v{vCA+b}, {WS0 + b * 49152}, v{t2}')
    a.I(f'v_bfe_u32 v{t0}, v{vL}, 1, 3')
    a.I(f'v_xor_b32 v{t0}, v{t0}, v{gq}')
    a.I(f'v_lshlrev_b32 v{t0}, 4, v{t0}')
    a.I(f'v_lshl_add_u32 v{t0}, v{i16}, 7, v{t0}')
    a.I(f'v_add_u32 v{vSA}, s{S_XW}, v{t0}')
    a.I(f'v_xor_b32 v{vSA+1}, 64, v{vSA}')
    for i in range(4):
        a.I(f'v_mov_b32 v{VONE+i}, {ONES}')

    X = vH
    sm, sq, vm, vrs, tt, tt2_ = vH + 8, vH + 9, vH + 10, vH + 11, vH + 12, vH + 13
    U = vH + 32
    aHW0, aHW1 = vH + 14, vH + 15
    aH0, aH1, aW1, aST, aPH, vSG = vH + 16, vH + 17, vH + 18, vH + 19, vH + 20, vH + 21
    a.I(f's_lshl_b32 s{S_T0}, s{S_W}, 1')
    a.I(f'v_add_u32 v{t0}, s{S_T0}, v{hh}')
    a.I(f'v_and_b32 v{t1}, 3, v{t0}')
    a.I(f'v_lshlrev_b32 v{t1}, 6, v{t1}')
    a.I(f'v_lshl_add_u32 v{t1}, v{l31}, 4, v{t1}')
    a.I(f'v_lshl_add_u32 v{aHW0}, v{t0}, 10, v{t1}')
    a.I(f'v_add_u32 v{t1}, 512, v{t1}')
    a.I(f'v_and_b32 v{t1}, 1023, v{t1}')
    a.I(f'v_lshl_add_u32 v{aHW1}, v{t0}, 10, v{t1}')
    a.I(f'v_lshlrev_b32 v{t0}, 5, v{gq}')
    a.I(f'v_lshl_add_u32 v{t0}, v{c4}, 3, v{t0}')
    a.I(f's_lshl_b32 s{S_T0}, s{S_W}, 8')
    a.I(f'v_lshl_add_u32 v{t1}, v{r4}, 6, v{t0}')
    a.I(f'v_add_u32 v{t1}, s{S_T0}, v{t1}')
    a.I(f'v_add_u32 v{t2}, 128, v{t1}')
    a.I(f'v_and_b32 v{t1}, 1023, v{t1}')
    a.I(f'v_and_b32 v{t2}, 1023, v{t2}')
    a.I(f'v_lshl_add_u32 v{aH0}, v{r4}, 10, v{t1}')
    a.I(f'v_lshl_add_u32 v{aH1}, v{r4}, 10, v{t2}')
    a.I(f'v_mul_u32_u24 v{aW1}, 2752, v{r4}')
    a.I(f's_lshl_b32 s{S_T0}, s{S_W}, 7')
    a.I(f's_add_u32 s{S_T0}, s{S_T0}, {W1S}')
    a.I(f'v_add3_u32 v{aW1}, v{aW1}, v{t0}, s{S_T0}')
    a.I(f's_and_b32 s{S_T0}, s{S_IA}, 3')
    a.I(f's_lshl_b32 s{S_T0}, s{S_T0}, 8')
    a.I(f's_lshr_b32 s{S_T1}, s{S_IA}, 2')
    a.I(f's_lshl_b32 s{S_T1}, s{S_T1}, 10')
    a.I(f's_add_u32 s{S_T0}, s{S_T0}, s{S_T1}')
    a.I(f'v_lshlrev_b32 v{aST}, 16, v{gq}')
    a.I(f'v_lshl_add_u32 v{aST}, v{i16}, 4, v{aST}')
    a.I(f'v_add_u32 v{aST}, s{S_T0}, v{aST}')
    a.I(f'v_lshl_add_u32 v{aPH}, v{hh}, 2, v{r4}')
    a.I(f'v_lshlrev_b32 v{aPH}, 5, v{aPH}')
    a.I(f'v_lshl_add_u32 v{aPH}, v{c4}, 3, v{aPH}')
    a.I(f's_lshr_b32 s{S_T0}, s{S_W}, 1')
    a.I(f's_lshl_b32 s{S_T0}, s{S_T0}, 10')
    a.I(f's_add_u32 s{S_T0}, s{S_T0}, {WPHI_L}')
    a.I(f'v_add_u32 v{aPH}, s{S_T0}, v{aPH}')
    a.I(f'v_bfe_u32 v{vSG}, v{vL}, 4, 1')
    a.I(f'v_mul_u32_u24 v{vSG}, 0x8000, v{vSG}')
    a.I(f'v_lshl_or_b32 v{vSG}, v{vSG}, 16, v{vSG}')
    a.I(f's_lshl_b32 s{S_KP}, s{S_CG}, 2')
    a.I(f's_add_u32 s{S_KP}, s{S_KP}, s{S_W}')
    a.I(f's_lshl_b32 s{S_T0}, s{S_TB}, 5')
    a.I(f's_add_u32 s{S_KP}, s{S_KP}, s{S_T0}')
    a.I(f's_mul_i32 s{S_KP}, s{S_KP}, {KVP_STRIDE}')
    a.I(f's_add_u32 s{S_KP}, s{S_KP}, {KVP_OFF}')
    a.I(f'v_mul_u32_u24 v{vKP}, 17, v{hh}')
    a.I(f'v_add_lshl_u32 v{vKP}, v{vKP}, v{l31}, 4')
    SEN = vH + 24
    for i in range(4):
        a.I(f'v_mov_b32 v{SEN+i}, -1')

    def ln_round():
        a.I(f'v_mov_b32 v{sm}, 0')
        a.I(f'v_mov_b32 v{sq}, 0')
        for i in range(8):
            a.I(f'v_dot2c_f32_bf16 v{sm}, v{VONE}, v{X+i}')
            a.I(f'v_dot2c_f32_bf16 v{sq}, v{X+i}, v{X+i}')
        for i in range(8):
            a.I(f'v_lshlrev_b32 v{U+2*i}, 16, v{X+i}')
            a.I(f'v_and_b32 v{U+2*i+1}, 0xffff0000, v{X+i}')
        reduce32(a, [sm, sq], [tt, tt2_])
        ln_scalars(a, sm, sq, vm, vrs, tt)
        for i in range(8):
            a.I(f'v_pk_add_f32 v[{U+2*i}:{U+2*i+1}], v[{U+2*i}:{U+2*i+1}], v[{vm}:{vm+1}] op_sel_hi:[1,0] neg_lo:[0,1] neg_hi:[0,1]')
        for i in range(8):
            a.I(f'v_cvt_pk_bf16_f32 v{X+i}, v{U+2*i}, v{U+2*i+1}')
        for i in range(8):
            a.I(f'v_lshlrev_b32 v{U+2*i}, 16, v{X+i}')
            a.I(f'v_and_b32 v{U+2*i+1}, 0xffff0000, v{X+i}')
        for i in range(8):
            a.I(f'v_pk_mul_f32 v[{U+2*i}:{U+2*i+1}], v[{U+2*i}:{U+2*i+1}], v[{vm}:{vm+1}] op_sel:[0,1] op_sel_hi:[1,1]')
        for i in range(8):
            a.I(f'v_cvt_pk_bf16_f32 v{X+i}, v{U+2*i}, v{U+2*i+1}')

    def c_decode():
        a.lock()
        a.I(f's_mul_i32 s{S_T0}, s{S_XCD}, 29')
        a.I(f's_add_u32 s{S_T0}, s{S_T0}, s{S_J}')
        a.I(f's_and_b32 s{S_DT}, s{S_T0}, 3')
        a.I(f's_lshr_b32 s{S_FT}, s{S_T0}, 2')
        a.I(f's_cmp_ge_u32 s{S_FT}, 29')
        a.I(f's_cselect_b32 s{S_T1}, 29, 0')
        a.I(f's_cselect_b32 s{S_T2}, 4, 0')
        a.I(f's_sub_u32 s{S_FT}, s{S_FT}, s{S_T1}')
        a.I(f's_add_u32 s{S_DT}, s{S_DT}, s{S_T2}')
        a.I(f's_lshl_b32 s{S_F4}, s{S_DT}, 7')
        a.I(f's_lshl_b32 s{S_T0}, s{S_FT}, 2')
        a.I(f's_add_u32 s{S_F4}, s{S_F4}, s{S_T0}')
        a.I(f's_add_u32 s{S_F4}, s{S_F4}, s{S_W}')
        a.I(f's_cmp_ge_u32 s{S_J}, 29')
        a.I(f's_cselect_b32 s{S_F4}, 2048, s{S_F4}')
        a.I(f's_lshl_b32 s{S_F4}, s{S_F4}, 2')
        a.I(f's_add_u32 s{S_F4}, s{S_F4}, {FL4_OFF}')
        a.I(f's_lshl_b32 s{S_F5}, s{S_TB}, 5')
        a.I(f's_lshl_b32 s{S_T0}, s{S_CG}, 2')
        a.I(f's_add_u32 s{S_F5}, s{S_F5}, s{S_T0}')
        a.I(f's_add_u32 s{S_F5}, s{S_F5}, s{S_W}')
        a.I(f's_lshl_b32 s{S_F5}, s{S_F5}, 2')
        a.I(f's_add_u32 s{S_F5}, s{S_F5}, {FL5_OFF}')
        a.unlock()

    c_decode()
    a.I(f's_lshl_b32 s{S_LW}, s{S_W}, 19')
    a.I(f's_add_u32 s{S_LW2}, s{S_LW}, 262144')
    a.I(f's_lshl_b32 s{S_SOT}, s{S_W}, 18')
    a.I(f's_lshl_b32 s{S_SOF}, s2, 8')
    a.I(f's_lshl_b32 s{S_T0}, s{S_W}, 6')
    a.I(f's_add_u32 s{S_SOF}, s{S_SOF}, s{S_T0}')
    a.I(f's_add_u32 s{S_SOF}, s{S_SOF}, {KVF_OFF}')
    a.stamp()
    a.wait_vm(tokAX)
    a.stamp()
    ln_round()
    ln_round()
    a.I(f'ds_write_b128 v{aHW0}, v[{X}:{X+3}] offset:{HS}')
    a.I(f'ds_write_b128 v{aHW1}, v[{X+4}:{X+7}] offset:{HS}')
    a.stamp()
    a.bg_pace = 1 << 30
    a.wait_vm(tokW1)
    a.I('s_waitcnt lgkmcnt(0)')
    a.I('s_barrier')
    a.stamp()
    a.collect()
    TRB = 200
    for u, ad in enumerate((aH0, aH1)):
        a.I(f'ds_read_b64_tr_b16 v[{TRB+4*u}:{TRB+4*u+1}], v{ad} offset:{HS}')
        a.I(f'ds_read_b64_tr_b16 v[{TRB+4*u+2}:{TRB+4*u+3}], v{ad} offset:{HS + 4096}')
    for j in range(6):
        b = TRB + 8 + 4 * j
        a.I(f'ds_read_b64_tr_b16 v[{b}:{b+1}], v{aW1} offset:{j * 512}')
        a.I(f'ds_read_b64_tr_b16 v[{b+2}:{b+3}], v{aW1} offset:{j * 512 + 11008}')
    for hd in range(2):
        a.I(f'ds_read_b64_tr_b16 v[{PHI+4*hd}:{PHI+4*hd+1}], v{aPH} offset:{hd * 512}')
        a.I(f'ds_read_b64_tr_b16 v[{PHI+4*hd+2}:{PHI+4*hd+3}], v{aPH} offset:{hd * 512 + 256}')
    tokAS = [0]

    def st_h(u):
        def f():
            tokAS[0] = a.I(f'buffer_store_dwordx4 v[{TRB+4*u}:{TRB+4*u+3}], v{aST}, {S(R_WS)}, s{S_LW if u == 0 else S_LW2} offen sc1')
        return f

    def st_w(j):
        def f():
            b = TRB + 8 + 4 * j
            tokAS[0] = a.I(f'buffer_store_dwordx4 v[{b}:{b+3}], v{aST}, {S(R_W1F)}, s{S_SOT} offen sc1')
            a.I(f's_add_u32 s{S_SOT}, s{S_SOT}, {4 * 262144}')
        return f

    def st_sen():
        a.I(f's_mov_b32 exec_lo, 0x1ffff')
        a.I(f's_mov_b32 exec_hi, 0x1ffff')
        for q in range(4):
            a.I(f'buffer_store_dwordx4 v[{SEN}:{SEN+3}], v{vKP}, {S(R_WS)}, s{S_KP} offen offset:{q * 544} sc1')
        a.I('s_mov_b64 exec, 15')
        a.I(f'buffer_store_dwordx4 v[{SEN}:{SEN+3}], v{vL16}, {S(R_WS)}, s{S_SOF} offen sc1')
        a.I('s_mov_b64 exec, 1')
        a.I(f'buffer_store_dword v{SEN}, v{vL16}, {S(R_WS)}, s{S_F4} offen sc1')
        tokAS[0] = a.I(f'buffer_store_dword v{SEN}, v{vL16}, {S(R_WS)}, s{S_F5} offen sc1')
        a.I('s_mov_b64 exec, -1')

    a.I('s_waitcnt lgkmcnt(15)')
    a.I('s_waitcnt lgkmcnt(14)')
    st_sen()
    st_h(0)()
    st_h(1)()
    for j in range(6):
        a.I(f's_waitcnt lgkmcnt({14 - 2 * j})')
        st_w(j)()
    a.stamp()
    if COOP == 2:
        coop(0)
    if COOP in (1, 2):
        coop(1)
    for st in range(4):
        queue_stage(st)
    a.bg_emit(8 + opt('preB', 16))
    a.I('s_waitcnt lgkmcnt(0)')
    for i in range(8):
        a.I(f'v_xor_b32 v{PHI+i}, v{PHI+i}, v{vSG}')
    a.stamp()
    a.wait_vm(stage_tok[0])
    a.I(f's_and_b32 s{S_T0}, s2, {NSH - 1}')
    a.I(f's_mul_i32 s{S_T0}, s{S_T0}, {256 // NSH}')
    publish(a, f's{S_T0}', 'L_PUB1')
    a.stamp()
    a.collect()
    a.bg_acc = 0

    def wbase(slot):
        return slot // 2, (slot % 2) * 24576

    def reads(n):
        st, ks = divmod(n, 4)
        slot = st % 4
        F = FR + 16 * (n & 1)
        bi, bo = wbase(slot)
        L = [f'ds_read_b128 v[{F}:{F+3}], v{vXA+ks} offset:{XS(slot)}']
        for seg in range(3):
            o = bo + ks * 6144 + seg * 1024
            W = F + 4 + 4 * seg
            L.append(f'ds_read_b64_tr_b16 v[{W}:{W+1}], v{vWA+bi} offset:{o}')
            L.append(f'ds_read_b64_tr_b16 v[{W+2}:{W+3}], v{vWA+bi} offset:{o + 512}')
        jp = ks >> 1
        if n % 2 == 0:
            L.append(f'ds_read_b128 v[{AUXE}:{AUXE+3}], v{vSA+jp} offset:{XS(slot)}')
            segs = [(0, AUXE + 4)]
        else:
            segs = [(1, AUXO), (2, AUXO + 4)]
        for seg, W in segs:
            o = bo + jp * 12288 + seg * 1024
            L.append(f'ds_read_b64_tr_b16 v[{W}:{W+1}], v{vCA+bi} offset:{o}')
            L.append(f'ds_read_b64_tr_b16 v[{W+2}:{W+3}], v{vCA+bi} offset:{o + 512}')
        return L

    def mfmas(n):
        F = FR + 16 * (n & 1)
        L = []
        for seg in range(3):
            A = ACC + 16 * seg
            W = F + 4 + 4 * seg
            c = '0' if n == 0 else f'v[{A}:{A+15}]'
            L.append((f'v_mfma_f32_32x32x16_bf16 v[{A}:{A+15}], v[{W}:{W+3}], v[{F}:{F+3}], {c}', 2 + 2 * seg))
        if n % 2 == 0:
            lst = [(XSUM, VONE, AUXE, 7), (GRAM, AUXE, AUXE, 7), (CSA, AUXE + 4, VONE, 9)]
        else:
            lst = [(CSA + 4, AUXO, VONE, 8), (CSA + 8, AUXO + 4, VONE, 10)]
        for D, A_, B_, need in lst:
            c = '0' if n < 2 else f'v[{D}:{D+3}]'
            L.append((f'v_mfma_f32_16x16x32_bf16 v[{D}:{D+3}], v[{A_}:{A_+3}], v[{B_}:{B_+3}], {c}', need))
        return L

    a.bg_pace = opt('paceB', 60)
    rtok = {0: [a.I(t) for t in reads(0)]}
    PUB1 = -1
    print('bg items pending at B start:', len(a.bg))
    for n in range(32):
        if n in (8, 16, 24) and opt('stB', 0):
            a.stamp()
        M = mfmas(n)
        R = reads(n + 1) if n + 1 < 32 else []
        rtok[n + 1] = []
        newst = (n + 1) % 4 == 0 and n + 1 < 32
        quota = [3, 3, 3, 1, 1, 1]
        for k, (txt, need) in enumerate(M):
            a.wait_lg(rtok[n][need])
            a.I(txt)
            if k == 0 and newst:
                st = (n + 1) // 4
                need_stage(st)
                a.lock()
                a.I('s_waitcnt lgkmcnt(0)')
                if st == PUB1:
                    assert len(a.bg) <= total_q[0] - stores_mark
                    a.wait_vm(max(stage_tok[st], tokAS[0]))
                    a.I(f's_and_b32 s{S_T0}, s2, {NSH - 1}')
                    a.I(f's_mul_i32 s{S_T0}, s{S_T0}, {256 // NSH}')
                    publish(a, f's{S_T0}', 'L_PUB1')
                else:
                    a.wait_vm(stage_tok[st])
                    a.I('s_barrier')
                a.unlock()
                if st + 3 <= 7:
                    queue_stage(st + 3)
            q = quota[k] if k < len(M) - 1 else 99
            while R and q > 0:
                rtok[n + 1].append(a.I(R.pop(0)))
                q -= 1
        if n == opt('pfEn', 21) and opt('pfE', 1):
            a.lock()
            srd(a, R_TMP, P_W2, 1376 * 4096)
            a.I(f's_and_b32 s{S_T0}, s{S_XCD}, 1')
            a.I(f's_mul_i32 s{S_T0}, s{S_T0}, 5504')
            a.I(f's_mul_i32 s{S_T1}, s{S_J}, 172')
            a.I(f's_add_u32 s{S_T0}, s{S_T0}, s{S_T1}')
            a.I(f's_mul_i32 s{S_T1}, s{S_W}, 43')
            a.I(f's_add_u32 s{S_T0}, s{S_T0}, s{S_T1}')
            a.I(f'v_min_u32 v{t0}, 42, v{vL}')
            a.I(f'v_add_u32 v{t0}, s{S_T0}, v{t0}')
            a.I(f'v_lshrrev_b32 v{t1}, 3, v{t0}')
            a.I(f'v_and_b32 v{t0}, 7, v{t0}')
            a.I(f'v_lshlrev_b32 v{t0}, 7, v{t0}')
            a.I(f'v_lshl_add_u32 v{t0}, v{t1}, 12, v{t0}')
            a.I(f's_lshr_b32 s{S_T0}, s{S_XCD}, 1')
            a.I(f's_lshl_b32 s{S_T0}, s{S_T0}, 10')
            a.I(f'buffer_load_dword v128, v{t0}, {S(R_TMP)}, s{S_T0} offen')
            srd(a, R_TMP, P_WO, 512 * 1024)
            a.I(f's_lshr_b32 s{S_T0}, s{S_XCD}, 1')
            a.I(f's_lshl_b32 s{S_T0}, s{S_T0}, 5')
            a.I(f's_add_u32 s{S_T0}, s{S_T0}, s{S_J}')
            a.I(f's_lshl_b32 s{S_T0}, s{S_T0}, 2')
            a.I(f's_add_u32 s{S_T0}, s{S_T0}, s{S_W}')
            a.I(f's_lshl_b32 s{S_T0}, s{S_T0}, 10')
            a.I(f's_and_b32 s{S_T1}, s{S_XCD}, 1')
            a.I(f's_lshl_b32 s{S_T1}, s{S_T1}, 9')
            a.I(f's_add_u32 s{S_T0}, s{S_T0}, s{S_T1}')
            a.I(f'v_lshlrev_b32 v{t0}, 7, v{c4}')
            a.I(f'buffer_load_dword v128, v{t0}, {S(R_TMP)}, s{S_T0} offen')
            a.unlock()
    a.bg_drain()
    a.stamp()

    vTD0, vTD1, vTE0, vTE1 = 129, 130, 131, 132
    vR0, vR1, vR2, vR3 = 133, 134, 135, 136
    vXO, vBO, aR = 137, 138, 139
    R_T1, R_T2 = R_W, R_W1
    R_F1, R_F2 = R_TMP, R_OUT
    S_KB0 = S_SOW1

    def e_setup():
        a.lock()
        a.I(f's_mul_i32 s{S_LW}, s{S_W}, {TLO * 2048}')
        a.I(f's_mul_i32 s{S_LW2}, s{S_W}, {(TSLOTS - TLO) * 2048}')
        a.I(f's_add_u32 s{S_LW2}, s{S_LW2}, {CRED}')
        a.I(f's_mul_i32 s{S_KB0}, s{S_W}, 22')
        a.I(f's_cmp_eq_u32 s{S_W}, 3')
        a.I(f's_cselect_b32 s{S_KB0}, 65, s{S_KB0}')
        a.I(f's_cmp_ge_u32 s{S_W}, 2')
        a.I(f's_cselect_b32 s{S_CNT}, 21, 22')
        a.I(f's_lshl_b32 s{S_T0}, s{S_TB}, 16')
        a.I(f's_lshl_b32 s{S_T1}, s{S_W}, 14')
        a.I(f's_add_u32 s{S_T0}, s{S_T0}, s{S_T1}')
        a.I(f's_add_u32 s{S_T0}, s{S_T0}, {OF_OFF}')
        srd(a, R_F1, P_WS, 16384, off_sgpr=S_T0)
        a.I(f's_mul_i32 s{S_T1}, s{S_CG}, {UF_DT}')
        a.I(f's_lshl_b32 s{S_T2}, s{S_KB0}, 11')
        a.I(f's_add_u32 s{S_T1}, s{S_T1}, s{S_T2}')
        a.I(f's_add_u32 s{S_T1}, s{S_T1}, {UF_OFF}')
        srd(a, R_F2, P_WS, 0, off_sgpr=S_T1)
        a.I(f's_lshl_b32 s{R_F2+2}, s{S_CNT}, 11')
        a.I(f's_lshl_b32 s{S_T1}, s{S_CG}, 7')
        a.I(f's_lshl_b32 s{S_T2}, s{S_W}, 17')
        a.I(f's_add_u32 s{S_T1}, s{S_T1}, s{S_T2}')
        srd(a, R_T1, P_WO, 127 * 1024 + 128, off_sgpr=S_T1)
        a.I(f's_lshl_b32 s{S_T1}, s{S_TB}, 7')
        a.I(f's_lshl_b32 s{S_T2}, s{S_KB0}, 16')
        a.I(f's_add_u32 s{S_T1}, s{S_T1}, s{S_T2}')
        srd(a, R_T2, P_W2, 0, off_sgpr=S_T1)
        a.I(f's_lshl_b32 s{R_T2+2}, s{S_CNT}, 16')
        a.I(f's_sub_u32 s{R_T2+2}, s{R_T2+2}, {4096 - 128}')
        a.unlock()
        a.I(f'v_bfe_u32 v{t0}, v{vL}, 4, 1')
        a.I(f'v_lshlrev_b32 v{t0}, 2, v{t0}')
        a.I(f'v_xor_b32 v{t0}, v{t0}, v{l7}')
        a.I(f'v_lshlrev_b32 v{t0}, 4, v{t0}')
        a.I(f'v_lshl_add_u32 v{vTD0}, v{l3}, 10, v{t0}')
        a.I(f'v_add_u32 v{vTD1}, {8 * 1024 - 1024}, v{vTD0}')
        a.I(f'v_lshl_add_u32 v{vTE0}, v{l3}, 12, v{t0}')
        a.I(f'v_add_u32 v{vTE1}, {8 * 4096 - 1024}, v{vTE0}')
        a.I(f'v_bfe_u32 v{t0}, v{vL}, 3, 1')
        a.I(f'v_lshlrev_b32 v{t0}, 2, v{t0}')
        a.I(f'v_bfe_u32 v{t1}, v{vL}, 4, 1')
        a.I(f'v_lshlrev_b32 v{t1}, 1, v{t1}')
        a.I(f'v_bfe_u32 v{vR0}, v{vL}, 1, 1')
        a.I(f'v_add_u32 v{t1}, v{t1}, v{vR0}')
        a.I(f'v_xor_b32 v{t1}, v{t1}, v{t0}')
        a.I(f'v_lshlrev_b32 v{t1}, 4, v{t1}')
        a.I(f'v_and_b32 v{t0}, 1, v{vL}')
        a.I(f'v_lshl_add_u32 v{t1}, v{t0}, 3, v{t1}')
        a.I(f'v_lshl_add_u32 v{t0}, v{hh}, 2, v{r4}')
        a.I(f'v_lshl_add_u32 v{t1}, v{t0}, 7, v{t1}')
        a.I(f'v_add_u32 v{vR0}, s{S_LW}, v{t1}')
        a.I(f'v_xor_b32 v{vR1}, 64, v{vR0}')
        a.I(f'v_add_u32 v{vR2}, s{S_LW2}, v{t1}')
        a.I(f'v_xor_b32 v{vR3}, 64, v{vR2}')
        a.I(f's_lshl_b32 s{S_T0}, s{S_W}, 3')
        a.I(f'v_add_u32 v{t0}, s{S_T0}, v{l3}')
        a.I(f'v_lshlrev_b32 v{vBO}, 1, v{t0}')
        a.I(f'v_mul_u32_u24 v{aR}, 272, v{t0}')
        a.I(f'v_lshl_add_u32 v{aR}, v{l7}, 5, v{aR}')
        a.I(f'v_lshlrev_b32 v{vXO}, 10, v{t0}')
        a.I(f'v_lshl_add_u32 v{vXO}, v{l7}, 4, v{vXO}')
        a.I(f's_lshl_b32 s{S_T0}, s{S_TB}, 16')
        a.I(f's_lshl_b32 s{S_T1}, s{S_CG}, 7')
        a.I(f's_add_u32 s{S_T0}, s{S_T0}, s{S_T1}')
        a.I(f'v_add_u32 v{vXO}, s{S_T0}, v{vXO}')

    def c_setup():
        a.lock()
        a.I(f's_lshl_b32 s{S_T0}, s{S_W}, 14')
        a.I(f's_mul_i32 s{S_T1}, s{S_FT}, {3 * 65536}')
        a.I(f's_add_u32 s{S_T1}, s{S_T1}, s{S_T0}')
        a.I(f's_add_u32 s{S_T1}, s{S_T1}, {W1F_OFF}')
        a.I(f's_lshl_b32 s{S_T2}, s{S_DT}, 18')
        a.I(f's_add_u32 s{S_T2}, s{S_T2}, s{S_T0}')
        a.I(f'v_add_u32 v{vCA_}, s{S_T1}, v{vL16}')
        a.I(f'v_add_u32 v{vCA_+3}, s{S_T2}, v{vL16}')
        for i in range(1, 3):
            a.I(f'v_add_u32 v{vCA_+i}, {i * 65536}, v{vCA_}')
        for i in range(1, 4):
            a.I(f'v_add_u32 v{vCA_+3+i}, {i * 65536}, v{vCA_+3}')
        a.I(f's_mov_b32 s{S_K1}, 4096')
        a.I(f's_mov_b32 s{S_K2}, 8192')
        a.I(f's_mov_b32 s{S_K3}, 12288')
        a.I(f's_mov_b32 s{R_C}, s{P_WS}')
        a.I(f's_mov_b32 s{R_C+1}, s{P_WS+1}')
        a.I(f's_cmp_ge_u32 s{S_J}, 29')
        a.I(f's_cselect_b32 s{R_C+2}, 0, {W1F_OFF + W1F_SIZE}')
        a.unlock()

    NP1, NP2 = 8, 22
    NS = NP1 + NP2
    tT, tF = {}, {}

    def t_issue(n):
        sl = n % TSLOTS
        a.lock()
        if n < NP1:
            so, v0_, v1_, R_ = n * 16384, vTD0, vTD1, R_T1
        else:
            so, v0_, v1_, R_ = (n - NP1) * 65536, vTE0, vTE1, R_T2
        a.I(f's_mov_b32 s{S_SOT}, {so}')
        if sl < TLO:
            a.I(f's_add_u32 m0, s{S_LW}, {sl * 2048}')
        else:
            a.I(f's_add_u32 m0, s{S_LW2}, {(sl - TLO) * 2048}')
        a.I(f'buffer_load_dwordx4 v{v0_}, {S(R_)}, s{S_SOT} offen lds')
        tT[n] = a.I(f'buffer_load_dwordx4 v{v1_}, {S(R_)}, s{S_SOT} offen offset:1024 lds')
        a.unlock()

    a.I(f'v_and_b32 v{t0}, {NSH - 1}, v{vL}')
    a.I(f'v_mul_u32_u24 v{vPOFF}, {256 // NSH}, v{t0}')
    c_setup()
    RC = opt('rc', 9)
    ctok = {}

    def c_load(n, i):
        base = 28 * (n % RC)
        so = ['0', f's{S_K1}', f's{S_K2}', f's{S_K3}'][n >> 2]
        off = f' offset:{(n & 3) * 1024}' if n & 3 else ''
        r = base + 4 * i
        ctok[n] = a.I(f'buffer_load_dwordx4 a[{r}:{r+3}], v{vCA_+i}, {S(R_C)}, {so} offen{off} sc1')

    e0 = FR
    aC, aS, g0, g1 = e0, e0 + 1, e0 + 2, e0 + 3
    a.I(f's_lshl_b32 s{S_T0}, s{S_W}, 6')
    a.I(f's_add_u32 s{S_T0}, s{S_T0}, {EP_CS}')
    a.I(f'v_lshlrev_b32 v{aC}, 4, v{gq}')
    a.I(f'v_add_u32 v{aC}, s{S_T0}, v{aC}')
    a.I(f's_lshl_b32 s{S_T0}, s{S_W}, 7')
    a.I(f's_add_u32 s{S_T0}, s{S_T0}, {EP_ST}')
    a.I(f'v_lshlrev_b32 v{aS}, 3, v{i16}')
    a.I(f'v_add_u32 v{aS}, s{S_T0}, v{aS}')
    a.I(f'v_cmp_eq_u32 vcc, 1, v{c4}')
    a.I(f'v_cndmask_b32 v{g1}, v{GRAM}, v{GRAM+1}, vcc')
    a.I(f'v_cmp_eq_u32 vcc, 2, v{c4}')
    a.I(f'v_cndmask_b32 v{g1}, v{g1}, v{GRAM+2}, vcc')
    a.I(f'v_cmp_eq_u32 vcc, 3, v{c4}')
    a.I(f'v_cndmask_b32 v{g1}, v{g1}, v{GRAM+3}, vcc')
    a.I(f'v_mov_b32 v{g0}, v{XSUM}')
    a.lock()
    a.I(f'v_cmp_eq_u32 vcc, v{r4}, v{gq}')
    a.I(f's_and_saveexec_b64 s[{S_EXEC}:{S_EXEC+1}], vcc')
    a.I(f'ds_write_b64 v{aS}, v[{g0}:{g1}]')
    a.I(f's_mov_b64 exec, s[{S_EXEC}:{S_EXEC+1}]')
    a.I(f'v_cmp_eq_u32 vcc, 0, v{i16}')
    a.I(f's_and_saveexec_b64 s[{S_EXEC}:{S_EXEC+1}], vcc')
    for seg in range(3):
        a.I(f'ds_write_b128 v{aC}, v[{CSA+4*seg}:{CSA+4*seg+3}] offset:{seg * 256}')
    a.I(f's_mov_b64 exec, s[{S_EXEC}:{S_EXEC+1}]')
    a.unlock()
    e_setup()
    a.I(f's_and_b32 s{S_T0}, s{S_W}, 1')
    a.I(f's_lshr_b32 s{S_T1}, s{S_W}, 1')
    a.I(f's_lshl_b32 s{S_T2}, s{S_T0}, 8')
    a.I(f's_add_u32 s{S_T2}, s{S_T2}, {EP_ST}')
    a.I(f'v_lshlrev_b32 v{aS}, 3, v{l31}')
    a.I(f'v_add_u32 v{aS}, s{S_T2}, v{aS}')
    a.I(f's_lshl_b32 s{S_T2}, s{S_T1}, 7')
    a.I(f's_add_u32 s{S_T2}, s{S_T2}, {EP_CS}')
    a.I(f'v_lshlrev_b32 v{aC}, 4, v{hh}')
    a.I(f'v_add_u32 v{aC}, s{S_T2}, v{aC}')
    a.I('s_waitcnt lgkmcnt(0)')
    wg_wait(a, '0', 256 // NSH, 'L_F1', voff_expr='s_nop 0', sleep=2)
    a.stamp()
    a.collect()
    CSR = 160
    a.I(f'ds_read_b64 v[{g0}:{g1}], v{aS}')
    for seg in (1, 2, 0):
        for q4 in range(4):
            b = CSR + 16 * seg + 4 * q4
            a.I(f'ds_read_b128 v[{b}:{b+3}], v{aC} offset:{seg * 256 + q4 * 32}')
    NT0 = 0
    for n in range(RC):
        for i in range(7):
            a.bg_add(lambda n=n, i=i: c_load(n, i))
    a.bg_pace = opt('paceC', 64)
    a.bg_acc = 0
    a.bg_emit(opt('preC', 4))
    aV, aK, swv, swk = e0 + 8, e0 + 9, e0 + 10, e0 + 11
    aV2, aK1, aK2, aK3 = e0 + 12, e0 + 13, e0 + 14, e0 + 15
    a.I(f's_lshl_b32 s{S_T2}, s{S_T1}, 12')
    a.I(f's_lshl_b32 s{S_SOX}, s{S_T0}, 10')
    a.I(f's_add_u32 s{S_T2}, s{S_T2}, s{S_SOX}')
    a.I(f's_add_u32 s{S_T2}, s{S_T2}, {EP_VV}')
    a.I(f'v_xor_b32 v{swv}, v{r4}, v{hh}')
    a.I(f'v_lshlrev_b32 v{swv}, 3, v{swv}')
    a.I(f'v_lshl_add_u32 v{aV}, v{l31}, 5, v{swv}')
    a.I(f'v_add_u32 v{aV}, s{S_T2}, v{aV}')
    a.I(f'v_xor_b32 v{aV2}, 16, v{aV}')
    a.I(f's_lshl_b32 s{S_T2}, s{S_T1}, 13')
    a.I(f's_lshl_b32 s{S_SOX}, s{S_T0}, 11')
    a.I(f's_add_u32 s{S_T2}, s{S_T2}, s{S_SOX}')
    a.I(f's_add_u32 s{S_T2}, s{S_T2}, {EP_PK}')
    a.I(f'v_bfe_u32 v{swk}, v{vL}, 1, 3')
    a.I(f'v_xor_b32 v{swk}, v{swk}, v{hh}')
    a.I(f'v_lshlrev_b32 v{swk}, 3, v{swk}')
    a.I(f'v_lshl_add_u32 v{aK}, v{l31}, 6, v{swk}')
    a.I(f'v_add_u32 v{aK}, s{S_T2}, v{aK}')
    a.I(f'v_xor_b32 v{aK1}, 16, v{aK}')
    a.I(f'v_xor_b32 v{aK2}, 32, v{aK}')
    a.I(f'v_xor_b32 v{aK3}, 48, v{aK}')
    vm2, vrs2, tt2 = e0 + 4, e0 + 5, e0 + 6
    a.I('s_waitcnt lgkmcnt(12)')
    ln_scalars(a, g0, g1, vm2, vrs2, tt2)
    PKD = 208

    def fix_seg(seg):
        for i in range(8):
            r = ACC + 16 * seg + 2 * i
            c = CSR + 16 * seg + 2 * i
            a.I(f'v_pk_fma_f32 v[{r}:{r+1}], v[{c}:{c+1}], v[{vm2}:{vm2+1}], v[{r}:{r+1}] op_sel_hi:[1,0,1] neg_lo:[0,1,0] neg_hi:[0,1,0]')
        for i in range(8):
            r = ACC + 16 * seg + 2 * i
            a.I(f'v_pk_mul_f32 v[{r}:{r+1}], v[{r}:{r+1}], v[{vm2}:{vm2+1}] op_sel:[0,1] op_sel_hi:[1,1]')
        for i in range(8):
            r = ACC + 16 * seg + 2 * i
            a.I(f'v_cvt_pk_bf16_f32 v{PKD+8*seg+i}, v{r}, v{r+1}')

    def phi(u, D):
        hd = u & 1
        B_ = PKD + 4 * u
        a.I(f'v_mfma_f32_32x32x16_bf16 v[{D}:{D+15}], v[{PHI+4*hd}:{PHI+4*hd+3}], v[{B_}:{B_+3}], 0')

    a.I('s_waitcnt lgkmcnt(8)')
    fix_seg(1)
    phi(2, 16)
    phi(3, 48)
    a.I('s_waitcnt lgkmcnt(4)')
    fix_seg(2)
    for hd in range(2):
        b = PKD + 16 + 4 * hd
        a.I(f'ds_write_b64 v{aV}, v[{b}:{b+1}] offset:{hd * 2048}')
        a.I(f'ds_write_b64 v{aV2}, v[{b+2}:{b+3}] offset:{hd * 2048}')
    SMT = e0 + 16
    PHK = 176
    a.stamp()
    softmax2(a, [16, 48], SMT, [PHK, PHK + 8])
    for hd in range(2):
        for c, ad in enumerate((aK, aK1, aK2, aK3)):
            b = PHK + 8 * hd + 2 * c
            a.I(f'ds_write_b64 v{ad}, v[{b}:{b+1}] offset:{hd * 4096}')
    rK0, rK1, rV0, rV1 = e0 + 24, e0 + 25, e0 + 26, e0 + 27
    tk = e0 + 28
    a.I(f'v_lshl_add_u32 v{tk}, v{hh}, 3, v{r4}')
    a.I(f'v_bfe_u32 v{rK0}, v{vL}, 4, 1')
    a.I(f'v_lshl_add_u32 v{rK0}, v{rK0}, 2, v{c4}')
    a.I(f'v_lshrrev_b32 v{rK1}, 1, v{tk}')
    a.I(f'v_xor_b32 v{rK0}, v{rK0}, v{rK1}')
    a.I(f'v_lshlrev_b32 v{rK0}, 3, v{rK0}')
    a.I(f'v_lshl_add_u32 v{rK0}, v{tk}, 6, v{rK0}')
    a.I(f's_lshl_b32 s{S_T2}, s{S_W}, 12')
    a.I(f's_add_u32 s{S_T2}, s{S_T2}, {EP_PK}')
    a.I(f'v_add_u32 v{rK0}, s{S_T2}, v{rK0}')
    a.I(f'v_xor_b32 v{rK1}, 16, v{rK0}')
    a.I(f'v_add_u32 v{rK1}, 256, v{rK1}')
    a.I(f'v_lshrrev_b32 v{rV0}, 2, v{tk}')
    a.I(f'v_xor_b32 v{rV0}, v{rV0}, v{c4}')
    a.I(f'v_lshlrev_b32 v{rV0}, 3, v{rV0}')
    a.I(f'v_lshl_add_u32 v{rV0}, v{tk}, 5, v{rV0}')
    a.I(f's_lshl_b32 s{S_T2}, s{S_W}, 11')
    a.I(f's_add_u32 s{S_T2}, s{S_T2}, {EP_VV}')
    a.I(f'v_add_u32 v{rV0}, s{S_T2}, v{rV0}')
    a.I(f'v_xor_b32 v{rV1}, 8, v{rV0}')
    a.I(f'v_add_u32 v{rV1}, 128, v{rV1}')
    a.I('s_waitcnt lgkmcnt(0)')
    a.I('s_barrier')
    a.stamp()
    KA, KB, KD = 32, 192, 16
    for s_ in range(4):
        a.I(f'ds_read_b64_tr_b16 v[{KA+4*s_}:{KA+4*s_+1}], v{rK0} offset:{s_ * 1024}')
        a.I(f'ds_read_b64_tr_b16 v[{KA+4*s_+2}:{KA+4*s_+3}], v{rK1} offset:{s_ * 1024}')
    for s_ in range(4):
        a.I(f'ds_read_b64_tr_b16 v[{KB+4*s_}:{KB+4*s_+1}], v{rV0} offset:{s_ * 512}')
        a.I(f'ds_read_b64_tr_b16 v[{KB+4*s_+2}:{KB+4*s_+3}], v{rV1} offset:{s_ * 512}')
    a.I(f'v_cmp_le_u32 vcc, 16, v{l31}')
    a.I('s_waitcnt lgkmcnt(0)')
    for i in range(16):
        a.I(f'v_cndmask_b32 v{KB+i}, v{KB+i}, v{VONE}, vcc')
    for s_ in range(4):
        c = '0' if s_ == 0 else f'v[{KD}:{KD+15}]'
        a.I(f'v_mfma_f32_32x32x16_bf16 v[{KD}:{KD+15}], v[{KA+4*s_}:{KA+4*s_+3}], v[{KB+4*s_}:{KB+4*s_+3}], {c}')
    fix_seg(0)
    a.lock()
    a.I(f'v_cmp_ge_u32 vcc, 16, v{l31}')
    a.I(f's_and_saveexec_b64 s[{S_EXEC}:{S_EXEC+1}], vcc')
    for q in range(4):
        a.I(f'buffer_store_dwordx4 v[{KD+4*q}:{KD+4*q+3}], v{vKP}, {S(R_WS)}, s{S_KP} offen offset:{q * 544} sc1')
    a.I(f's_mov_b64 exec, s[{S_EXEC}:{S_EXEC+1}]')
    a.unlock()
    a.stamp()
    phi(0, 0)
    phi(1, 32)
    softmax2(a, [0, 32], SMT, [PHQ, PHQ + 8])
    a.stamp()
    a.collect()
    a.I('s_barrier')
    a.I(f's_mov_b32 s{S_OD}, 0')
    if STAMPS:
        a.I(f'v_writelane_b32 v{vSTAMP}, 0, 44')
    left = list(a.bg)
    a.bg = []
    a.I(f's_cmp_ge_u32 s{S_J}, 29')
    a.I('s_cbranch_scc1 L_RED')
    vm_at_branch = a.vm_issued

    pend = [(n, i) for n in range(16) for i in range(7)][7 * RC - len(left):]
    vBi, BI = 81, 82
    KV = 48
    OD = 160
    LEAD = opt('lead', 3)
    vKF = 64

    def kvf_loads():
        for hd in range(2):
            for q in range(4):
                b = KV + 8 * hd + 2 * q
                tok = a.I(f'buffer_load_dwordx2 v[{b}:{b+1}], v{vKF}, {S(R_WS)}, s{S_KF} offen offset:{hd * 1088 + q * 272} sc1')
        return tok

    def o_part1():
        a.I(f's_lshr_b32 s{S_T1}, s{S_W}, 1')
        a.I(f's_lshl_b32 s{S_T1}, s{S_T1}, 1')
        a.I(f's_lshl_b32 s{S_T2}, s{S_CG}, 2')
        a.I(f's_add_u32 s{S_HD0}, s{S_T1}, s{S_T2}')
        a.I(f's_mul_i32 s{S_KF}, s{S_HD0}, 1088')
        a.I(f's_add_u32 s{S_KF}, s{S_KF}, {KVF_OFF}')
        a.I(f'v_min_u32 v{vKF}, 16, v{l31}')
        a.I(f'v_mul_u32_u24 v{t0}, 17, v{hh}')
        a.I(f'v_add_lshl_u32 v{vKF}, v{vKF}, v{t0}, 3')
        return kvf_loads()

    def kvf_check():
        a.I(f'v_max3_u32 v{t0}, v{KV}, v{KV+1}, v{KV+2}')
        a.I(f'v_max3_u32 v{t1}, v{KV+3}, v{KV+4}, v{KV+5}')
        a.I(f'v_max3_u32 v{t0}, v{t0}, v{KV+6}, v{KV+7}')
        a.I(f'v_max3_u32 v{t1}, v{t1}, v{KV+8}, v{KV+9}')
        a.I(f'v_max3_u32 v{t0}, v{t0}, v{KV+10}, v{KV+11}')
        a.I(f'v_max3_u32 v{t1}, v{t1}, v{KV+12}, v{KV+13}')
        a.I(f'v_max3_u32 v{t0}, v{t0}, v{KV+14}, v{KV+15}')
        a.I(f'v_max_u32 v{t0}, v{t0}, v{t1}')
        a.I(f'v_cmp_eq_u32 vcc, -1, v{t0}')

    def o_compute():
        for hd in range(2):
            D = OD + 16 * hd
            a.I(f'v_mfma_f32_32x32x16_bf16 v[{D}:{D+15}], v[{KV+8*hd}:{KV+8*hd+3}], v[{PHQ+8*hd}:{PHQ+8*hd+3}], 0')
            a.I(f'v_mfma_f32_32x32x16_bf16 v[{D}:{D+15}], v[{KV+8*hd+4}:{KV+8*hd+7}], v[{PHQ+8*hd+4}:{PHQ+8*hd+7}], v[{D}:{D+15}]')
        a.I(f's_lshl_b32 s{S_T0}, s{S_TB}, 5')
        a.I(f's_add_u32 s{S_T0}, s{S_T0}, s{S_HD0}')
        a.I(f's_lshl_b32 s{S_T0}, s{S_T0}, 11')
        a.I(f's_and_b32 s{S_T2}, s{S_W}, 1')
        a.I(f's_lshl_b32 s{S_T2}, s{S_T2}, 10')
        a.I(f's_add_u32 s{S_T0}, s{S_T0}, s{S_T2}')
        a.I(f's_add_u32 s{S_T0}, s{S_T0}, {OF_OFF}')
        for hd in range(2):
            D = OD + 16 * hd
            a.I(f'v_add_f32 v{D+8}, 0x358637bd, v{D+8}')
        for hd in range(2):
            D = OD + 16 * hd
            a.I(f'v_rcp_f32 v{D+8}, v{D+8}')
        for hd in range(2):
            D = OD + 16 * hd
            for i in range(4):
                a.I(f'v_pk_mul_f32 v[{D+2*i}:{D+2*i+1}], v[{D+2*i}:{D+2*i+1}], v[{D+8}:{D+9}] op_sel_hi:[1,0]')
            for i in range(4):
                a.I(f'v_cvt_pk_bf16_f32 v{D+12+i}, v{D+2*i}, v{D+2*i+1}')
            a.I(f'buffer_store_dwordx4 v[{D+12}:{D+15}], v{vL16}, {S(R_WS)}, s{S_T0} offen offset:{hd * 2048} sc1')

    def o_try(tok):
        a.lock()
        a.wait_vm(tok)
        save = a.vm_issued
        kvf_check()
        a.I('s_cbranch_vccnz L_OTRY')
        o_compute()
        a.I(f's_mov_b32 s{S_OD}, 1')
        a.vm_issued = save
        a.label('L_OTRY')
        a.unlock()

    def o_flag_if_done(name):
        a.lock()
        save = a.vm_issued
        a.I(f's_cmp_eq_u32 s{S_OD}, 0')
        a.I(f's_cbranch_scc1 {name}')
        a.I('s_waitcnt vmcnt(0)')
        flag_set(a, S_F5)
        a.vm_issued = save
        a.label(name)
        a.unlock()

    def o_blocking():
        a.lock()
        save = a.vm_issued
        a.I(f's_cmp_lg_u32 s{S_OD}, 0')
        a.I('s_cbranch_scc1 L_OB_DONE')
        a.I(f's_mov_b32 s{S_SPIN}, 0')
        a.label('L_OB')
        kvf_loads()
        a.I(f's_add_u32 s{S_SPIN}, s{S_SPIN}, 1')
        a.I('s_waitcnt vmcnt(0)')
        kvf_check()
        a.I('s_cbranch_vccz L_OB_OK')
        a.I(f's_cmp_gt_u32 s{S_SPIN}, 0x8000')
        a.I('s_cbranch_scc1 L_OB_OK')
        a.I('s_sleep 6')
        a.I('s_branch L_OB')
        a.label('L_OB_OK')
        if STAMPS:
            a.I(f'v_writelane_b32 v{vSTAMP}, s{S_SPIN}, 44')
        o_compute()
        a.I('s_waitcnt vmcnt(0)')
        flag_set(a, S_F5)
        a.vm_issued = save
        a.label('L_OB_DONE')
        a.unlock()


    def issue_upto(nmax):
        while pend and pend[0][0] <= nmax:
            n_, i_ = pend.pop(0)
            c_load(n_, i_)

    issue_upto(LEAD - 1)
    npend0 = len(pend)
    print('C loads pending at C main start:', npend0)
    nslots = 12 * (16 - LEAD)
    done_slots = 0
    for n in range(16):
        a.wait_vm(ctok[n])
        base = 28 * (n % RC)
        for fb in range(3):
            for db in range(4):
                D = 4 * (fb * 4 + db)
                A_ = base + 4 * fb
                B_ = base + 12 + 4 * db
                c = '0' if n == 0 else f'v[{D}:{D+3}]'
                a.I(f'v_mfma_f32_16x16x32_bf16 v[{D}:{D+3}], a[{A_}:{A_+3}], a[{B_}:{B_+3}], {c}')
                done_slots += 1
                want = min(npend0, (npend0 * done_slots + nslots - 1) // nslots)
                while pend and npend0 - len(pend) < want and pend[0][0] < n + RC:
                    n_, i_ = pend.pop(0)
                    c_load(n_, i_)
        issue_upto(n + LEAD)
        if n == 16 - LEAD - 1:
            srd(a, R_C, P_B1, 2752)
            a.I(f's_and_b32 s{S_T0}, s{S_W}, 1')
            a.I(f's_lshl_b32 s{S_T0}, s{S_T0}, 3')
            a.I(f's_mul_i32 s{S_T1}, s{S_FT}, 96')
            a.I(f's_add_u32 s{S_T0}, s{S_T0}, s{S_T1}')
            a.I(f'v_and_b32 v{vBi}, 1, v{vL}')
            a.I(f'v_lshlrev_b32 v{vBi}, 4, v{vBi}')
            for jj in range(3):
                tokB = a.I(f'buffer_load_dwordx2 v[{BI+2*jj}:{BI+2*jj+1}], v{vBi}, {S(R_C)}, s{S_T0} offen offset:{jj * 32}')
        if n == 14:
            tokKF = o_part1()
    NT0 = opt('nt0', TLO)
    a.stamp()

    o_try(tokKF)
    a.stamp()
    NTB = opt('ntb', 6)
    for m in range(NTB):
        a.bg_add(lambda m=m: t_issue(m))
    a.bg_pace = opt('paceT', 150)
    a.bg_acc = 0
    aW, aRd, aSt = 88, 89, 90
    a.I(f's_mul_i32 s{S_T0}, s{S_W}, 13312')
    a.I(f's_add_u32 s{S_T0}, s{S_T0}, {CRED}')
    a.I(f'v_mul_u32_u24 v{aW}, 208, v{i16}')
    a.I(f'v_lshl_add_u32 v{aW}, v{gq}, 4, v{aW}')
    a.I(f'v_add_u32 v{aW}, s{S_T0}, v{aW}')
    for fb in range(3):
        for db in range(4):
            D = 4 * (fb * 4 + db)
            a.I(f'ds_write_b128 v{aW}, v[{D}:{D+3}] offset:{db * 3328 + fb * 64}')
    a.I(f's_lshr_b32 s{S_T0}, s{S_W}, 1')
    a.I(f's_and_b32 s{S_T1}, s{S_W}, 1')
    a.I(f's_mul_i32 s{S_T2}, s{S_T0}, {32 * 208}')
    a.I(f's_lshl_b32 s{S_K1}, s{S_T1}, 4')
    a.I(f's_add_u32 s{S_T2}, s{S_T2}, s{S_K1}')
    a.I(f's_add_u32 s{S_T2}, s{S_T2}, {CRED}')
    a.I(f'v_lshrrev_b32 v{aRd}, 1, v{vL}')
    a.I(f'v_mul_u32_u24 v{aRd}, 208, v{aRd}')
    a.I(f'v_and_b32 v{t0}, 1, v{vL}')
    a.I(f'v_lshl_add_u32 v{aRd}, v{t0}, 5, v{aRd}')
    a.I(f'v_add_u32 v{aRd}, s{S_T2}, v{aRd}')
    a.I(f'v_lshlrev_b32 v{aSt}, 3, v{vL}')
    a.I(f's_mul_i32 s{S_K1}, s{S_DT}, {UF_DT}')
    a.I(f's_mul_i32 s{S_K2}, s{S_FT}, 6144')
    a.I(f's_add_u32 s{S_K1}, s{S_K1}, s{S_K2}')
    a.I(f's_lshl_b32 s{S_K2}, s{S_W}, 9')
    a.I(f's_add_u32 s{S_K1}, s{S_K1}, s{S_K2}')
    a.I(f's_add_u32 s{S_K1}, s{S_K1}, {UF_OFF}')
    a.I(f's_add_u32 s{S_K2}, s{S_K1}, 4096')
    a.I(f's_mov_b32 s{S_K3}, {GK2}')
    TG = 92
    a.I(f'v_mov_b32 v{TG}, {GK1}')
    a.I('s_waitcnt lgkmcnt(0)')
    a.I('s_barrier')
    a.stamp()
    a.collect()
    RD = 0
    for p in range(4):
        for jj in range(3):
            b = RD + 16 * jj + 4 * p
            a.I(f'ds_read_b128 v[{b}:{b+3}], v{aRd} offset:{p * 13312 + jj * 64}')
    a.wait_vm(tokB)
    BU = 96
    for jj in range(3):
        for k in range(2):
            a.I(f'v_lshlrev_b32 v{BU+4*jj+2*k}, 16, v{BI+2*jj+k}')
            a.I(f'v_and_b32 v{BU+4*jj+2*k+1}, 0xffff0000, v{BI+2*jj+k}')
    J3 = range(3)
    a.I('s_waitcnt lgkmcnt(6)')
    for jj in J3:
        b = RD + 16 * jj
        for k in range(2):
            a.I(f'v_pk_add_f32 v[{b+2*k}:{b+2*k+1}], v[{b+2*k}:{b+2*k+1}], v[{b+4+2*k}:{b+4+2*k+1}]')
    a.I('s_waitcnt lgkmcnt(0)')
    for jj in J3:
        b = RD + 16 * jj
        for k in range(2):
            a.I(f'v_pk_add_f32 v[{b+8+2*k}:{b+8+2*k+1}], v[{b+8+2*k}:{b+8+2*k+1}], v[{b+12+2*k}:{b+12+2*k+1}]')
    for jj in J3:
        b = RD + 16 * jj
        for k in range(2):
            a.I(f'v_pk_add_f32 v[{b+2*k}:{b+2*k+1}], v[{b+2*k}:{b+2*k+1}], v[{b+8+2*k}:{b+8+2*k+1}]')

    def round4():
        for jj in J3:
            b = RD + 16 * jj
            a.I(f'v_cvt_pk_bf16_f32 v{b+4}, v{b}, v{b+1}')
            a.I(f'v_cvt_pk_bf16_f32 v{b+5}, v{b+2}, v{b+3}')
        for jj in J3:
            b = RD + 16 * jj
            for k in range(2):
                a.I(f'v_lshlrev_b32 v{b+2*k}, 16, v{b+4+k}')
                a.I(f'v_and_b32 v{b+2*k+1}, 0xffff0000, v{b+4+k}')
    round4()
    for jj in J3:
        b = RD + 16 * jj
        for k in range(2):
            a.I(f'v_pk_add_f32 v[{b+2*k}:{b+2*k+1}], v[{b+2*k}:{b+2*k+1}], v[{BU+4*jj+2*k}:{BU+4*jj+2*k+1}]')
    round4()
    for jj in J3:
        b = RD + 16 * jj
        for k in range(2):
            a.I(f'v_pk_mul_f32 v[{b+4+2*k}:{b+4+2*k+1}], v[{b+2*k}:{b+2*k+1}], v[{b+2*k}:{b+2*k+1}]')
    for jj in J3:
        b = RD + 16 * jj
        for i in range(4):
            a.I(f'v_fma_f32 v{b+4+i}, v{b+4+i}, s{S_K3}, v{TG}')
    for jj in J3:
        b = RD + 16 * jj
        for k in range(2):
            a.I(f'v_pk_mul_f32 v[{b+4+2*k}:{b+4+2*k+1}], v[{b+4+2*k}:{b+4+2*k+1}], v[{b+2*k}:{b+2*k+1}]')
    for jj in J3:
        b = RD + 16 * jj
        for i in range(4):
            a.I(f'v_exp_f32 v{b+4+i}, v{b+4+i}')
    for jj in J3:
        b = RD + 16 * jj
        for i in range(4):
            a.I(f'v_add_f32 v{b+4+i}, 1.0, v{b+4+i}')
    for jj in J3:
        b = RD + 16 * jj
        for i in range(4):
            a.I(f'v_rcp_f32 v{b+4+i}, v{b+4+i}')
    for jj in J3:
        b = RD + 16 * jj
        for k in range(2):
            a.I(f'v_pk_mul_f32 v[{b+2*k}:{b+2*k+1}], v[{b+2*k}:{b+2*k+1}], v[{b+4+2*k}:{b+4+2*k+1}]')
    for jj in J3:
        b = RD + 16 * jj
        a.I(f'v_cvt_pk_bf16_f32 v{b+8}, v{b}, v{b+1}')
        a.I(f'v_cvt_pk_bf16_f32 v{b+9}, v{b+2}, v{b+3}')
    a.bg_drain()
    o_flag_if_done('L_OF1')
    for jj in J3:
        b = RD + 16 * jj
        so = f's{S_K1} offen' + (' offset:2048' if jj == 1 else '') if jj < 2 else f's{S_K2} offen'
        tokU = a.I(f'buffer_store_dwordx2 v[{b+8}:{b+9}], v{aSt}, {S(R_WS)}, {so} sc1')
    a.stamp()
    if opt('ufirst', 1):
        a.wait_vm(tokU)
        flag_set(a, S_F4)
        a.I('s_barrier')
    a.stamp()
    a.I('s_branch L_JOIN')

    a.label('L_RED')
    a.vm_issued = vm_at_branch
    a.I(f's_sub_u32 s{S_T1}, s{S_J}, 29')
    a.I(f's_lshl_b32 s{S_T1}, s{S_T1}, 3')
    a.I(f's_add_u32 s{S_T1}, s{S_T1}, s{S_XCD}')
    a.I(f's_mul_i32 s{S_T2}, s{S_W}, 24')
    a.I(f's_add_u32 s{S_T1}, s{S_T1}, s{S_T2}')
    a.I(f's_cmp_ge_u32 s{S_T1}, 68')
    a.I('s_cbranch_scc1 L_RED_DONE')
    a.I(f's_lshl_b32 s{S_K3}, s{S_T1}, 10')
    a.I(f's_add_u32 s{S_K3}, s{S_K3}, {KVP_OFF}')
    vQ = 67
    a.I(f's_mov_b32 s{S_T0}, 69632')
    a.I(f'v_mul_u32_u24 v{vQ}, s{S_T0}, v{l31}')
    a.I(f'v_mul_u32_u24 v{t0}, 1020, v{hh}')
    a.I(f'v_add_u32 v{vQ}, v{vQ}, v{t0}')
    a.I(f's_mov_b32 s{S_SPIN}, 0')
    a.stamp_at(40)
    a.label('L_RPOLL')
    a.I(f'buffer_load_dword v{vPOLL}, v{vQ}, {S(R_WS)}, s{S_K3} offen sc1')
    a.I(f's_add_u32 s{S_SPIN}, s{S_SPIN}, 1')
    a.I(f's_cmp_gt_u32 s{S_SPIN}, 0x8000')
    a.I('s_cbranch_scc1 L_RPASS')
    a.I('s_waitcnt vmcnt(0)')
    a.I(f'v_cmp_eq_u32 vcc, -1, v{vPOLL}')
    a.I('s_cbranch_vccz L_RPASS')
    a.I('s_sleep 2')
    a.I('s_branch L_RPOLL')
    a.label('L_RPASS')
    a.I('s_waitcnt vmcnt(0)')
    a.stamp_at(41)
    a.vm_issued = 0
    a.I(f's_mov_b32 s{S_K2}, s{S_K3}')
    rt = {}
    NRB = 16
    LB = 160

    def rissue(i):
        b = LB + 4 * (i % NRB)
        rt[i] = a.I(f'buffer_load_dwordx4 v[{b}:{b+3}], v{vL16}, {S(R_WS)}, s{S_K2} offen sc1')
        a.I(f's_add_u32 s{S_K2}, s{S_K2}, 69632')

    for i in range(NRB):
        rissue(i)
    for i in range(32):
        a.wait_vm(rt[i])
        b = LB + 4 * (i % NRB)
        for k in range(2):
            if i < 1:
                a.I(f'v_mov_b32 v{2*k}, v{b+2*k}')
                a.I(f'v_mov_b32 v{2*k+1}, v{b+2*k+1}')
            else:
                a.I(f'v_pk_add_f32 v[{2*k}:{2*k+1}], v[{2*k}:{2*k+1}], v[{b+2*k}:{b+2*k+1}]')
        if i + NRB < 32:
            rissue(i + NRB)
    a.I('v_add_f32 v8, v0, v1')
    a.I('v_add_f32 v9, v2, v3')
    a.I('v_cmp_u_f32 vcc, v8, v9')
    a.I('s_cbranch_vccz L_RGOOD')
    a.I(f's_add_u32 s{S_SPIN}, s{S_SPIN}, 0x400')
    a.I(f's_cmp_gt_u32 s{S_SPIN}, 0x8000')
    a.I('s_cbranch_scc0 L_RPASS')
    a.label('L_RGOOD')
    a.stamp_at(42)
    if STAMPS:
        a.I(f'v_writelane_b32 v{vSTAMP}, s{S_SPIN}, 43')
    a.I('v_cvt_pk_bf16_f32 v8, v0, v1')
    a.I('v_cvt_pk_bf16_f32 v9, v2, v3')
    a.I(f's_lshl_b32 s{S_T1}, s{S_T1}, 9')
    a.I(f's_add_u32 s{S_T1}, s{S_T1}, {KVF_OFF}')
    a.I(f'v_lshlrev_b32 v{t0}, 3, v{vL}')
    a.I(f'buffer_store_dwordx2 v[8:9], v{t0}, {S(R_WS)}, s{S_T1} offen sc1')
    a.label('L_RED_DONE')
    for m in range(NTB):
        t_issue(m)
    o_part1()
    a.I('s_waitcnt vmcnt(0)')

    a.label('L_JOIN')
    a.vm_issued = 0
    for k in list(tT):
        tT[k] = -1000
    o_blocking()
    a.stamp()
    for m in range(NTB, TSLOTS):
        t_issue(m)
    XR, BR = 104, 112
    srd(a, R_C, P_B2, 4096)
    a.I(f's_lshl_b32 s{S_T2}, s{S_TB}, 7')
    a.I(f's_mov_b32 s{S_K1}, 32768')
    a.I(f'buffer_load_dwordx4 v[{XR}:{XR+3}], v{vXO}, {S(R_X)}, 0 offen')
    a.I(f'buffer_load_dwordx4 v[{XR+4}:{XR+7}], v{vXO}, {S(R_X)}, s{S_K1} offen')
    a.I(f'buffer_load_ushort v{BR}, v{vBO}, {S(R_C)}, s{S_T2} offen')
    a.I(f'buffer_load_ushort v{BR+1}, v{vBO}, {S(R_C)}, s{S_T2} offen offset:64')
    a.stamp()
    a.collect()

    DEP = 16
    TB_ = 80

    def f_issue(n):
        r = 8 * (n % DEP)
        m = n if n < NP1 else n - NP1
        R_ = R_F1 if n < NP1 else R_F2
        o = (m & 1) * 2048
        a.I(f's_mov_b32 s{S_SOF}, {(m >> 1) * 4096}')
        a.I(f'buffer_load_dwordx4 a[{r}:{r+3}], v{vL16}, {S(R_)}, s{S_SOF} offen offset:{o} sc1')
        tF[n] = a.I(f'buffer_load_dwordx4 a[{r+4}:{r+7}], v{vL16}, {S(R_)}, s{S_SOF} offen offset:{o + 1024} sc1')

    def treads(n):
        b = TB_ + 8 * (n & 1)
        sl = n % TSLOTS
        regs, o = ((vR0, vR1), sl * 2048) if sl < TLO else ((vR2, vR3), (sl - TLO) * 2048)
        L = []
        for cb, ad in enumerate(regs):
            L.append(f'ds_read_b64_tr_b16 v[{b+4*cb}:{b+4*cb+1}], v{ad} offset:{o}')
            L.append(f'ds_read_b64_tr_b16 v[{b+4*cb+2}:{b+4*cb+3}], v{ad} offset:{o + 1024}')
        return L

    FLEAD = opt('flead', 5)

    def e_steps(n0, n1):
        nf = n0
        while nf < min(n1, n0 + FLEAD):
            f_issue(nf)
            nf += 1
        for n in range(n0, n1):
            w = tF[n]
            if n + 1 < NS:
                w = max(w, tT[n + 1])
            a.wait_vm(w)
            a.I('s_waitcnt lgkmcnt(0)')
            R = treads(n + 1) if n + 1 < NS else []
            b = TB_ + 8 * (n & 1)
            r = 8 * (n % DEP)
            k = 0
            for i in range(2):
                for j in range(2):
                    c_first = n == 0
                    if n < NP1:
                        D = 16 * (2 * i + j)
                        c = '0' if c_first else f'v[{D}:{D+15}]'
                        a.I(f'v_mfma_f32_32x32x16_bf16 v[{D}:{D+15}], v[{b+4*i}:{b+4*i+3}], a[{r+4*j}:{r+4*j+3}], {c}')
                    else:
                        D = 16 * (2 * j + i)
                        a.I(f'v_mfma_f32_32x32x16_bf16 v[{D}:{D+15}], a[{r+4*j}:{r+4*j+3}], v[{b+4*i}:{b+4*i+3}], v[{D}:{D+15}]')
                    if k < 2:
                        for t in R[2 * k:2 * k + 2]:
                            a.I(t)
                    if k == 1 and nf < n1:
                        f_issue(nf)
                        nf += 1
                    if k == 2 and n + TSLOTS < NS:
                        t_issue(n + TSLOTS)
                    k += 1

    for t in treads(0):
        a.I(t)
    a.I(f's_lshl_b32 s{S_T1}, s{S_TB}, 7')
    a.I(f's_lshl_b32 s{S_T0}, s{S_W}, 5')
    a.I(f's_add_u32 s{S_T1}, s{S_T1}, s{S_T0}')
    a.I(f's_add_u32 s{S_T1}, s{S_T1}, {FL5_OFF}')
    a.I(f'v_lshlrev_b32 v{vPOFF}, 2, v{l7}')
    flag_wait(a, S_T1, 1, 'L_F5', sleep=opt('slp', 4))
    a.stamp()
    e_steps(0, NP1)
    a.stamp()
    a.I(f's_mul_i32 s{S_T0}, s{S_W}, 7')
    a.I(f's_lshl_b32 s{S_T0}, s{S_T0}, 4')
    a.I(f's_lshl_b32 s{S_T1}, s{S_CG}, 9')
    a.I(f's_add_u32 s{S_T1}, s{S_T1}, s{S_T0}')
    a.I(f's_add_u32 s{S_T1}, s{S_T1}, {FL4_OFF}')
    a.I(f'v_lshlrev_b32 v{vPOFF}, 2, v{l31}')
    flag_wait(a, S_T1, 1, 'L_F4', sleep=opt('slp', 4))
    a.stamp()
    e_steps(NP1, NS)
    a.stamp()
    aW = 64
    srd(a, R_OUT, P_OUT, 2048 * 1024)
    a.I(f's_mul_i32 s{S_T0}, s{S_W}, 17408')
    a.I(f'v_mul_u32_u24 v{aW}, 272, v{l31}')
    a.I(f'v_lshl_add_u32 v{aW}, v{hh}, 4, v{aW}')
    a.I(f'v_add_u32 v{aW}, s{S_T0}, v{aW}')
    a.I('s_barrier')
    for fb in range(2):
        for cb in range(2):
            D = 16 * (2 * fb + cb)
            for q in range(4):
                a.I(f'ds_write_b128 v{aW}, v[{D+4*q}:{D+4*q+3}] offset:{cb * 32 * 272 + fb * 128 + q * 32}')
    XU = 66
    for ps in range(2):
        a.I(f'v_lshlrev_b32 v{BR+ps}, 16, v{BR+ps}')
        for k in range(4):
            x = XR + 4 * ps + k
            a.I(f'v_lshlrev_b32 v{XU+8*ps+2*k}, 16, v{x}')
            a.I(f'v_and_b32 v{XU+8*ps+2*k+1}, 0xffff0000, v{x}')
    for ps in range(2):
        sel = 'op_sel_hi:[1,0]' if ps == 0 else 'op_sel:[0,1] op_sel_hi:[1,1]'
        for k in range(4):
            r = XU + 8 * ps + 2 * k
            a.I(f'v_pk_add_f32 v[{r}:{r+1}], v[{r}:{r+1}], v[{BR}:{BR+1}] {sel}')
    a.I('s_waitcnt lgkmcnt(0)')
    a.I('s_barrier')
    a.stamp()
    a.collect()
    for ps in range(2):
        for p in range(4):
            for hf in range(2):
                b = 32 * ps + 8 * p + 4 * hf
                a.I(f'ds_read_b128 v[{b}:{b+3}], v{aR} offset:{p * 17408 + ps * 8704 + hf * 16}')
    for ps in range(2):
        a.I(f's_waitcnt lgkmcnt({8 - 8 * ps})')
        b = 32 * ps
        for k in range(4):
            a.I(f'v_pk_add_f32 v[{b+2*k}:{b+2*k+1}], v[{b+2*k}:{b+2*k+1}], v[{b+8+2*k}:{b+8+2*k+1}]')
            a.I(f'v_pk_add_f32 v[{b+16+2*k}:{b+16+2*k+1}], v[{b+16+2*k}:{b+16+2*k+1}], v[{b+24+2*k}:{b+24+2*k+1}]')
        for k in range(4):
            a.I(f'v_pk_add_f32 v[{b+2*k}:{b+2*k+1}], v[{b+2*k}:{b+2*k+1}], v[{b+16+2*k}:{b+16+2*k+1}]')
        for k in range(4):
            r = XU + 8 * ps + 2 * k
            a.I(f'v_pk_add_f32 v[{b+2*k}:{b+2*k+1}], v[{b+2*k}:{b+2*k+1}], v[{r}:{r+1}]')
        for k in range(4):
            a.I(f'v_cvt_pk_bf16_f32 v{b+16+k}, v{b+2*k}, v{b+2*k+1}')
        so = '0' if ps == 0 else f's{S_K1}'
        a.I(f'buffer_store_dwordx4 v[{b+16}:{b+19}], v{vXO}, {S(R_OUT)}, {so} offen')
    if STAMPS:
        a.stamp()
        a.I('s_waitcnt vmcnt(0)')
        a.stamp()
        a.stamp(rt=True)
        a.collect()
        a.I('s_lshl_b32 s3, s2, 2')
        a.I(f's_add_u32 s3, s3, s{S_W}')
        a.I('s_lshl_b32 s3, s3, 8')
        a.I(f's_add_u32 s3, s3, {STAMP_OFF}')
        a.I(f'v_lshlrev_b32 v{t0}, 2, v{vL}')
        a.I(f'buffer_store_dword v{vSTAMP}, v{t0}, {S(R_WS)}, s3 offen')
        print('stamps:', a.nstamp)
    a.label(end)
    a.I('s_endpgm')


HEADER = """; Kernarg layout for this problem (96 bytes, ptrs only, base s[0:1]):
; @launch grid=(256,1,1) block=(256,1,1) lds=163840
.amdgcn_target "amdgcn-amd-amdhsa--gfx950"
"""


def main():
    out = sys.argv[1] if len(sys.argv) > 1 else f'cdna_kernels/{NAME}.s'
    a = K()
    gen(a)
    name = NAME + '_kernel'
    pad = '    s_nop 0\n' * 0
    txt = HEADER + f""".text
.globl {name}
.p2align 8
.type {name},@function
{name}:
{a.text()}{pad}.section .rodata,"a"
.p2align 6
.amdhsa_kernel {name}
  .amdhsa_next_free_vgpr 512
  .amdhsa_next_free_sgpr 102
  .amdhsa_accum_offset 256
  .amdhsa_group_segment_fixed_size 0
  .amdhsa_kernarg_size 96
  .amdhsa_user_sgpr_count 2
  .amdhsa_user_sgpr_kernarg_segment_ptr 1
  .amdhsa_system_sgpr_workgroup_id_x 1
  .amdhsa_float_denorm_mode_32 3
.end_amdhsa_kernel
"""
    open(out, 'w').write(txt)
    print('wrote', out, len(txt), 'bytes')


if __name__ == '__main__':
    main()
```

```python
import sys
import os
import math
import struct
sys.path.insert(0, os.path.dirname(os.path.abspath(__file__)))
from asmlib import Asm

NAME = 'parallel_sum__linear_kernel_hedgehog__mixer_token_mlp__prompt'
OPT = dict(kv.split('=') for kv in os.environ.get('OPT', '').split(',') if kv)


def opt(k, d):
    return int(OPT.get(k, d))


def f32bits(x):
    return struct.unpack('<I', struct.pack('<f', x))[0]


MB = 1 << 20
HF_OFF = 0
W1F_OFF = 2 * MB
W1F_SIZE = 86 * 65536
KVP_OFF = 8 * MB
KVP_STRIDE = 2176
KVF_OFF = 11 * MB
UF_OFF = 12 * MB
UF_DT = 88 * 2048
OF_OFF = 14 * MB
FL4_OFF = 11 * MB + 131072
FL5_OFF = 11 * MB + 196608
STAMP_OFF = 20 * MB
WS_USED = 24 * MB

LOG2E = 0x3fb8aa3b
ONES = 0x3f803f80
GK1 = f32bits(-2.0 * math.sqrt(2.0 / math.pi) * math.log2(math.e))
GK2 = f32bits(-2.0 * math.sqrt(2.0 / math.pi) * math.log2(math.e) * 0.044715)
STAMPS = os.environ.get('STAMPS', '0') == '1'

P_X, P_WQKV, P_WPHI, P_WO, P_BX, P_W1, P_B1, P_W2, P_B2, P_OUT, P_DBG, P_WS = [4 + 2 * i for i in range(12)]
R_X, R_W, R_W1, R_WS, R_W1F, R_TMP, R_DBG, R_OUT = 28, 32, 36, 40, 44, 48, 52, 56
R_T = R_W
R_C = R_W1F
R_F = R_TMP
R_B = R_W1
(S_W, S_TB, S_CG, S_IA, S_T0, S_T1, S_T2, S_XW, S_WW, S_SOX, S_SOW0, S_SOW1, S_XCD, S_J, S_DT, S_FT,
 S_K1, S_K2, S_K3, S_L2E, S_SPIN, S_LW, S_LW2, S_STEP) = range(60, 84)
S_EXEC = 84
S_SOT, S_SOF, S_KP, S_CNT = 86, 87, 88, 89
S_HD0, S_KF = S_IA, S_XW
S_OD = S_WW
S_F4, S_F5 = S_STEP, 3
S_STAMP = 90

XS0, WS0 = 0, 40960
def XS(slot): return XS0 + slot * 8192
def WSL(slot): return WS0 + slot * 24576
HS = XS(4)
W1S = WSL(4)
WPHI_L = W1S + 22 * 1024
EP = WSL(3)
EP_CS, EP_ST, EP_PK, EP_VV = 155648, 156672, EP + 2048, EP + 2048 + 16384
TLO = 13
TSLOTS = 20
CRED = 106496

vL, l31, hh, i16, gq, r4, c4, l3, l7 = range(144, 153)
t0, t1, t2 = 153, 154, 155
vAX, vL16, vPOLL, vPOFF = 156, 157, 158, 159
PHQ = 232
vCA_ = 248
vSTAMP = 255
vKP = 156


class K(Asm):
    def __init__(self):
        super().__init__()
        self.pending = []
        self.nstamp = 0

    def stamp(self, rt=False):
        if not STAMPS:
            return
        slot = len(self.pending)
        assert slot < 6
        r = S_STAMP + 2 * slot
        self.I(f's_memrealtime s[{r}:{r+1}]' if rt else f's_memtime s[{r}:{r+1}]')
        self.pending.append((self.nstamp, r))
        self.nstamp += 1

    def stamp_at(self, idx):
        if not STAMPS:
            return
        self.I('s_memtime s[100:101]')
        self.I('s_waitcnt lgkmcnt(0)')
        self.I(f'v_writelane_b32 v{vSTAMP}, s100, {idx}')

    def collect(self):
        if not STAMPS or not self.pending:
            return
        self.I('s_waitcnt lgkmcnt(0)')
        for idx, r in self.pending:
            self.I(f'v_writelane_b32 v{vSTAMP}, s{r}, {idx}')
        self.pending = []


def srd(a, d, ptr, nbytes, off_sgpr=None, off_imm=0):
    a.lock()
    if off_sgpr is None and off_imm == 0:
        a.I(f's_mov_b32 s{d}, s{ptr}')
        a.I(f's_mov_b32 s{d+1}, s{ptr+1}')
    elif off_sgpr is not None:
        a.I(f's_add_u32 s{d}, s{ptr}, s{off_sgpr}')
        a.I(f's_addc_u32 s{d+1}, s{ptr+1}, 0')
        assert off_imm == 0
    else:
        a.I(f's_add_u32 s{d}, s{ptr}, {off_imm}')
        a.I(f's_addc_u32 s{d+1}, s{ptr+1}, 0')
    a.I(f's_mov_b32 s{d+2}, {nbytes}')
    a.I(f's_mov_b32 s{d+3}, 0x20000')
    a.unlock()


def S(r):
    return f's[{r}:{r+3}]'


def bf16_round(a, dst, src):
    a.I(f'v_cvt_pk_bf16_f32 v{dst}, v{src}, v{src}')
    a.I(f'v_and_b32 v{dst}, 0xffff0000, v{dst}')


def ln_scalars(a, vsum, vsq, vm, vrs, t):
    a.I(f'v_mul_f32 v{vsum}, 0x3b000000, v{vsum}')
    a.I(f'v_mul_f32 v{vsq}, 0x3b000000, v{vsq}')
    a.I(f'v_fma_f32 v{vsq}, -v{vsum}, v{vsum}, v{vsq}')
    a.I(f'v_max_f32 v{vsq}, 0, v{vsq}')
    bf16_round(a, vm, vsum)
    bf16_round(a, t, vsq)
    a.I(f'v_add_f32 v{t}, 0x3727c5ac, v{t}')
    bf16_round(a, t, t)
    a.I(f'v_sqrt_f32 v{t}, v{t}')
    bf16_round(a, t, t)
    a.I(f'v_rcp_f32 v{vrs}, v{t}')


def reduce32(a, regs, tmps):
    for ctl in ('quad_perm:[1,0,3,2]', 'quad_perm:[2,3,0,1]', 'row_half_mirror', 'row_mirror'):
        for r in regs:
            a.I(f'v_add_f32_dpp v{r}, v{r}, v{r} {ctl} row_mask:0xf bank_mask:0xf')
    for r, t in zip(regs, tmps):
        a.I(f'v_mov_b32 v{t}, v{r}')
    for r, t in zip(regs, tmps):
        a.I(f'v_permlane16_swap_b32 v{r}, v{t}')
    for r, t in zip(regs, tmps):
        a.I(f'v_add_f32 v{r}, v{r}, v{t}')


def softmax2(a, Ps, T, OUTs):
    U = [(P, T + 4 * u, O) for u, (P, O) in enumerate(zip(Ps, OUTs))]
    for step in range(4):
        for P, Tb, _ in U:
            for t, b in ((Tb, P), (Tb + 1, P + 8)):
                if step == 0:
                    a.I(f'v_max3_f32 v{t}, v{b}, v{b+1}, v{b+2}')
                elif step < 3:
                    a.I(f'v_max3_f32 v{t}, v{t}, v{b+1+2*step}, v{b+2+2*step}')
                else:
                    a.I(f'v_max_f32 v{t}, v{t}, v{b+7}')
    for P, Tb, _ in U:
        a.I(f'v_permlane32_swap_b32 v{Tb}, v{Tb+1}')
    for P, Tb, _ in U:
        a.I(f'v_max_f32 v{Tb+2}, v{Tb}, v{Tb+1}')
    for P, Tb, _ in U:
        a.I(f'v_mul_f32 v{Tb+2}, s{S_L2E}, v{Tb+2}')
    for P, Tb, _ in U:
        a.I(f'v_mov_b32 v{Tb+3}, v{Tb+2}')
    for P, Tb, _ in U:
        a.I(f'v_permlane32_swap_b32 v{Tb+2}, v{Tb+3}')
    for P, Tb, _ in U:
        for i in range(16):
            m = Tb + 2 if i < 8 else Tb + 3
            a.I(f'v_fma_f32 v{P+i}, v{P+i}, s{S_L2E}, -v{m}')
            a.I(f'v_exp_f32 v{P+i}, v{P+i}') if False else None
    for P, Tb, _ in U:
        for i in range(16):
            a.I(f'v_exp_f32 v{P+i}, v{P+i}')
    for P, Tb, O in U:
        for hlf in range(2):
            b = P + 8 * hlf
            o = O + 4 * hlf
            a.I(f'v_pk_add_f32 v[{o}:{o+1}], v[{b}:{b+1}], v[{b+2}:{b+3}]')
            a.I(f'v_pk_add_f32 v[{o+2}:{o+3}], v[{b+4}:{b+5}], v[{b+6}:{b+7}]')
    for P, Tb, O in U:
        for hlf in range(2):
            o = O + 4 * hlf
            a.I(f'v_pk_add_f32 v[{o}:{o+1}], v[{o}:{o+1}], v[{o+2}:{o+3}]')
    for P, Tb, O in U:
        for hlf in range(2):
            o = O + 4 * hlf
            a.I(f'v_add_f32 v{Tb+hlf}, v{o}, v{o+1}')
    for P, Tb, _ in U:
        a.I(f'v_permlane32_swap_b32 v{Tb}, v{Tb+1}')
    for P, Tb, _ in U:
        a.I(f'v_add_f32 v{Tb+2}, v{Tb}, v{Tb+1}')
    for P, Tb, _ in U:
        a.I(f'v_rcp_f32 v{Tb+2}, v{Tb+2}')
    for P, Tb, _ in U:
        a.I(f'v_mov_b32 v{Tb+3}, v{Tb+2}')
    for P, Tb, _ in U:
        a.I(f'v_permlane32_swap_b32 v{Tb+2}, v{Tb+3}')
    for P, Tb, _ in U:
        for i in range(8):
            sel = 'op_sel:[0,0] op_sel_hi:[1,0]' if i < 4 else 'op_sel:[0,1] op_sel_hi:[1,1]'
            a.I(f'v_pk_mul_f32 v[{P+2*i}:{P+2*i+1}], v[{P+2*i}:{P+2*i+1}], v[{Tb+2}:{Tb+3}] {sel}')
    for P, Tb, O in U:
        for i in range(8):
            a.I(f'v_cvt_pk_bf16_f32 v{O+i}, v{P+2*i}, v{P+2*i+1}')


def publish(a, soff_sgpr_or_imm, name):
    a.lock()
    a.I('s_barrier')
    a.I(f's_cmp_lg_u32 s{S_W}, 0')
    a.I(f's_cbranch_scc1 {name}')
    save = a.vm_issued
    a.I(f'v_mov_b32 v{vPOLL}, 1')
    a.I(f'v_mov_b32 v{vPOFF}, 0')
    a.I('s_mov_b64 exec, 1')
    a.I(f'buffer_atomic_add v{vPOLL}, v{vPOFF}, {S(R_DBG)}, {soff_sgpr_or_imm} offen sc1')
    a.I('s_mov_b64 exec, -1')
    a.vm_issued = save
    a.label(name)
    a.unlock()


def poll_issue(a, soff):
    return a.I(f'buffer_load_dword v{vPOLL}, v{vPOFF}, {S(R_DBG)}, {soff} offen sc1')


def poll_check(a, tok, soff, expected, name, sleep=4):
    a.lock()
    if tok is None:
        a.I('s_waitcnt vmcnt(0)')
    else:
        a.wait_vm(tok)
    a.I(f'v_cmp_gt_u32 vcc, {expected}, v{vPOLL}')
    a.I(f's_cbranch_vccz {name}_OK')
    a.I(f's_mov_b32 s{S_SPIN}, 0')
    a.label(name + '_SPIN')
    save = a.vm_issued
    a.I(f's_sleep {sleep}')
    a.I(f'buffer_load_dword v{vPOLL}, v{vPOFF}, {S(R_DBG)}, {soff} offen sc1')
    a.I(f's_add_u32 s{S_SPIN}, s{S_SPIN}, 1')
    a.I(f's_cmp_gt_u32 s{S_SPIN}, 0x20000')
    a.I(f's_cbranch_scc1 {name}_OK')
    a.I('s_waitcnt vmcnt(0)')
    a.I(f'v_cmp_gt_u32 vcc, {expected}, v{vPOLL}')
    a.I(f's_cbranch_vccnz {name}_SPIN')
    a.vm_issued = save
    a.label(name + '_OK')
    a.unlock()


def wg_wait(a, soff, expected, name, voff_expr=None, sleep=4):
    a.lock()
    a.I(f's_cmp_lg_u32 s{S_W}, 0')
    a.I(f's_cbranch_scc1 {name}_B')
    save = a.vm_issued
    a.I(voff_expr if voff_expr else f'v_mov_b32 v{vPOFF}, 0')
    poll_issue(a, soff)
    poll_check(a, None, soff, expected, name, sleep)
    a.vm_issued = save
    a.label(name + '_B')
    a.I('s_barrier')
    a.unlock()


def flag_set(a, soff):
    a.lock()
    a.I(f'v_mov_b32 v{vPOLL}, 0')
    a.I('s_mov_b64 exec, 1')
    a.I(f'buffer_store_dword v{vPOLL}, v{vL16}, {S(R_WS)}, s{soff} offen sc1')
    a.I('s_mov_b64 exec, -1')
    a.unlock()


def flag_wait(a, soff, width, name, sleep=4):
    a.lock()
    save = a.vm_issued
    a.I(f's_mov_b32 s{S_SPIN}, 0')
    a.label(name)
    if width == 1:
        a.I(f'buffer_load_dword v{t0}, v{vPOFF}, {S(R_WS)}, s{soff} offen sc1')
    else:
        a.I(f'buffer_load_dwordx2 v[{t1}:{t2}], v{vPOFF}, {S(R_WS)}, s{soff} offen sc1')
    a.I(f's_add_u32 s{S_SPIN}, s{S_SPIN}, 1')
    a.I(f's_cmp_gt_u32 s{S_SPIN}, 0x20000')
    a.I(f's_cbranch_scc1 {name}_OK')
    a.I('s_waitcnt vmcnt(0)')
    if width == 2:
        a.I(f'v_or_b32 v{t0}, v{t1}, v{t2}')
    a.I(f'v_cmp_ne_u32 vcc, 0, v{t0}')
    a.I(f's_cbranch_vccz {name}_OK')
    a.I(f's_sleep {sleep}')
    a.I(f's_branch {name}')
    a.vm_issued = save
    a.label(name + '_OK')
    a.unlock()


def gen(a):
    NSH = opt('nsh', 8)
    end = 'L_END'
    a.I('s_cmp_ge_u32 s2, 256')
    a.I(f's_cbranch_scc1 {end}')
    a.I('s_load_dwordx16 s[4:19], s[0:1], 0')
    a.I('s_load_dwordx8 s[20:27], s[0:1], 64')
    a.stamp(rt=True)
    a.stamp()
    if opt('span', 0):
        a.I('s_memrealtime s[98:99]')
    if opt('codepf', 1):
        a.raw('L_PC:')
        a.I(f's_getpc_b64 s[{R_TMP}:{R_TMP+1}]')
        a.I(f's_mov_b32 s{R_TMP+2}, L_END-L_PC')
        a.I(f's_mov_b32 s{R_TMP+3}, 0x20000')
        a.I('s_bfe_u32 s3, s2, 0x20003')
        a.I('s_lshl_b32 s3, s3, 13')
        a.I(f'v_lshlrev_b32 v{t0}, 5, v0')
        a.I(f'v_and_b32 v{t0}, 0x1f80, v{t0}')
        a.I(f'buffer_load_dword v128, v{t0}, {S(R_TMP)}, s3 offen')
    ACC, CSA, XSUM, GRAM, VONE = 0, 48, 60, 64, 68
    FR, AUXE, AUXO, PHI = 72, 104, 112, 120
    vXD0, vXD1, vWD = 129, 130, 131
    vXA, vWA, vCA, vSA = 132, 136, 139, 142
    vH = 160

    a.I(f'v_and_b32 v{vL}, 63, v0')
    a.I(f'v_lshrrev_b32 v{t0}, 6, v0')
    a.I(f'v_readfirstlane_b32 s{S_W}, v{t0}')
    a.I(f's_and_b32 s{S_XCD}, s2, 7')
    a.I(f's_lshr_b32 s{S_J}, s2, 3')
    a.I(f's_lshl_b32 s{S_IA}, s{S_XCD}, 5')
    a.I(f's_add_u32 s{S_IA}, s{S_IA}, s{S_J}')
    a.I(f's_lshr_b32 s{S_TB}, s{S_XCD}, 1')
    a.I(f's_lshl_b32 s{S_TB}, s{S_TB}, 3')
    a.I(f's_lshr_b32 s{S_T2}, s{S_J}, 2')
    a.I(f's_add_u32 s{S_TB}, s{S_TB}, s{S_T2}')
    a.I(f's_and_b32 s{S_CG}, s{S_XCD}, 1')
    a.I(f's_lshl_b32 s{S_CG}, s{S_CG}, 2')
    a.I(f's_and_b32 s{S_T2}, s{S_J}, 3')
    a.I(f's_add_u32 s{S_CG}, s{S_CG}, s{S_T2}')
    a.I(f's_lshl_b32 s{S_XW}, s{S_W}, 11')
    a.I(f's_mul_i32 s{S_WW}, s{S_W}, 6144')
    a.I(f's_mov_b32 s{S_L2E}, {LOG2E}')
    a.I(f'v_and_b32 v{l31}, 31, v{vL}')
    a.I(f'v_lshrrev_b32 v{hh}, 5, v{vL}')
    a.I(f'v_lshlrev_b32 v{vAX}, 10, v{hh}')
    a.I(f'v_lshl_add_u32 v{vAX}, v{l31}, 4, v{vAX}')
    a.I(f'v_lshlrev_b32 v{vL16}, 4, v{vL}')
    a.I(f's_mul_i32 s{S_T2}, s{S_IA}, 22016')
    a.I(f's_lshl_b32 s{S_T0}, s{S_IA}, 13')
    a.I(f's_add_u32 s{S_T0}, s{S_T0}, s{S_XW}')
    a.I(f's_lshl_b32 s{S_T1}, s{S_W}, 10')
    a.I('s_waitcnt lgkmcnt(0)')
    srd(a, R_X, P_X, 2048 * 1024)
    a.I(f'buffer_load_dwordx4 v[{vH}:{vH+3}], v{vAX}, {S(R_X)}, s{S_T0} offen')
    tokAX = a.I(f'buffer_load_dwordx4 v[{vH+4}:{vH+7}], v{vAX}, {S(R_X)}, s{S_T0} offen offset:512')
    srd(a, R_W1, P_W1, 22016, off_sgpr=S_T2)
    for j in range(5):
        a.I(f's_add_u32 m0, s{S_T1}, {W1S + j * 4096}')
        a.I(f's_add_u32 s{S_T0}, s{S_T1}, {j * 4096}')
        a.I(f'buffer_load_dwordx4 v{vL16}, {S(R_W1)}, s{S_T0} offen lds')
    a.I(f's_cmp_ge_u32 s{S_W}, 2')
    a.I(f's_cselect_b32 s{R_TMP}, s{P_WPHI}, s{R_W1}')
    a.I(f's_cselect_b32 s{R_TMP+1}, s{P_WPHI+1}, s{R_W1+1}')
    a.I(f's_cselect_b32 s{R_TMP+2}, 16384, s{R_W1+2}')
    a.I(f's_mov_b32 s{R_TMP+3}, 0x20000')
    a.I(f's_lshl_b32 s{S_T0}, s{S_CG}, 11')
    a.I(f's_sub_u32 s{S_T0}, s{S_T0}, 2048')
    a.I(f's_cmp_ge_u32 s{S_W}, 2')
    a.I(f's_cselect_b32 s{S_T0}, s{S_T0}, {20 * 1024}')
    a.I(f's_add_u32 s{S_T0}, s{S_T0}, s{S_T1}')
    a.I(f's_add_u32 m0, s{S_T1}, {W1S + 20 * 1024}')
    tokW1 = a.I(f'buffer_load_dwordx4 v{vL16}, {S(R_TMP)}, s{S_T0} offen lds')
    srd(a, R_W, P_WQKV, 512 * 3072)
    srd(a, R_WS, P_WS, WS_USED)
    srd(a, R_W1F, P_WS, W1F_SIZE, off_imm=W1F_OFF)
    srd(a, R_DBG, P_DBG, 256)

    a.I(f'v_and_b32 v{i16}, 15, v{vL}')
    a.I(f'v_lshrrev_b32 v{gq}, 4, v{vL}')
    a.I(f'v_bfe_u32 v{r4}, v{vL}, 2, 2')
    a.I(f'v_and_b32 v{c4}, 3, v{vL}')
    a.I(f'v_lshrrev_b32 v{l3}, 3, v{vL}')
    a.I(f'v_and_b32 v{l7}, 7, v{vL}')

    vpW, vpX, vpD = vH + 28, vH + 29, 128
    S_PX, S_PW = S_K1, S_K2
    a.I(f's_lshr_b32 s{S_PX}, s{S_XCD}, 1')
    a.I(f's_lshl_b32 s{S_PX}, s{S_PX}, 19')
    a.I(f's_lshl_b32 s{S_T2}, s{S_J}, 14')
    a.I(f's_add_u32 s{S_PX}, s{S_PX}, s{S_T2}')
    a.I(f's_lshl_b32 s{S_T2}, s{S_W}, 12')
    a.I(f's_add_u32 s{S_PX}, s{S_PX}, s{S_T2}')
    a.I(f'v_lshlrev_b32 v{vpX}, 10, v{r4}')
    a.I(f'v_lshl_add_u32 v{vpX}, v{c4}, 7, v{vpX}')
    a.I(f'v_and_b32 v{vpW}, 1, v{gq}')
    a.I(f'v_mul_u32_u24 v{vpW}, 3072, v{vpW}')
    a.I(f'v_min_u32 v{t0}, 2, v{r4}')
    a.I(f'v_lshl_add_u32 v{vpW}, v{t0}, 10, v{vpW}')
    a.I(f'v_lshl_add_u32 v{vpW}, v{c4}, 7, v{vpW}')
    a.I(f's_mul_i32 s{S_PW}, s{S_J}, {8 * 3072}')
    a.I(f's_add_u32 s{S_PW}, s{S_PW}, s{S_WW}')
    a.I(f's_and_b32 s{S_T2}, s{S_XCD}, 1')
    a.I(f's_lshl_b32 s{S_T2}, s{S_T2}, 9')
    a.I(f's_add_u32 s{S_PW}, s{S_PW}, s{S_T2}')
    a.I(f's_add_u32 s{S_K3}, s{S_PW}, {256 * 3072}')

    def coop(hf):
        a.I(f'buffer_load_dword v{vpD}, v{vpW}, {S(R_W)}, s{S_PW if hf == 0 else S_K3} offen')
        a.I(f'buffer_load_dword v{vpD}, v{vpX}, {S(R_X)}, s{S_PX} offen' + (' offset:512' if hf else ''))

    COOP = opt('coop', 1)
    if COOP in (1, 3):
        coop(0)
    if COOP == 3:
        coop(1)

    a.I(f's_lshl_b32 s{S_T0}, s{S_TB}, 16')
    a.I(f's_lshl_b32 s{S_T1}, s{S_W}, 14')
    a.I(f's_add_u32 s{S_T0}, s{S_T0}, s{S_T1}')
    a.I(f'v_xor_b32 v{t0}, v{l7}, v{gq}')
    a.I(f'v_lshlrev_b32 v{t0}, 4, v{t0}')
    a.I(f'v_lshl_add_u32 v{t0}, v{l3}, 10, v{t0}')
    a.I(f'v_add_u32 v{vXD0}, s{S_T0}, v{t0}')
    a.I(f'v_xor_b32 v{vXD1}, 64, v{vXD0}')
    a.I(f'v_add_u32 v{vXD1}, {8192 - 1024}, v{vXD1}')
    a.I(f's_mul_i32 s{S_T0}, s{S_W}, {16 * 3072}')
    a.I(f's_lshl_b32 s{S_T1}, s{S_CG}, 7')
    a.I(f's_add_u32 s{S_T0}, s{S_T0}, s{S_T1}')
    a.I(f'v_and_b32 v{t0}, 1, v{gq}')
    a.I(f'v_lshlrev_b32 v{t0}, 2, v{t0}')
    a.I(f'v_xor_b32 v{t0}, v{l7}, v{t0}')
    a.I(f'v_lshlrev_b32 v{t0}, 4, v{t0}')
    a.I(f'v_mul_u32_u24 v{t1}, 3072, v{l3}')
    a.I(f'v_add3_u32 v{vWD}, v{t0}, v{t1}, s{S_T0}')

    stage_tok = {}
    npend = {}
    total_q = [0]

    def queue_stage(st, extra=None):
        slot = st % 4

        def x_item(p):
            def f():
                a.I(f's_mov_b32 s{S_SOX}, {st * 128}')
                a.I(f's_add_u32 m0, s{S_XW}, {XS(slot)}')
                if p == 0:
                    a.I(f'buffer_load_dwordx4 v{vXD0}, {S(R_X)}, s{S_SOX} offen lds')
                else:
                    a.I(f'buffer_load_dwordx4 v{vXD1}, {S(R_X)}, s{S_SOX} offen offset:1024 lds')
            return f

        def w_item(p, seg):
            def f():
                a.I(f's_mov_b32 s{S_SOW0}, {st * 196608 + p * 24576}')
                a.I(f's_add_u32 m0, s{S_WW}, {WSL(slot) + p * 3072}')
                off = f' offset:{seg * 1024}' if seg else ''
                stage_tok[st] = a.I(f'buffer_load_dwordx4 v{vWD}, {S(R_W)}, s{S_SOW0} offen{off} lds')
            return f
        items = [x_item(0), x_item(1)] + [w_item(p, seg) for p in range(2) for seg in range(3)]
        for k, it in enumerate(items):
            bgq(it)
            if extra and k % 2 == 1:
                bgq(extra.pop(0))
        mark = total_q[0]
        npend[st] = lambda: total_q[0] - mark

    def bgq(it):
        a.bg_add(it)
        total_q[0] += 1

    def need_stage(st):
        while len(a.bg) > npend[st]():
            a.bg_emit(1)

    a.I(f's_and_b32 s{S_T0}, s{S_W}, 1')
    a.I(f's_lshr_b32 s{S_T1}, s{S_W}, 1')
    a.I(f'v_bfe_u32 v{t0}, v{vL}, 1, 3')
    a.I(f'v_xor_b32 v{t0}, v{t0}, v{hh}')
    a.I(f'v_lshlrev_b32 v{t0}, 4, v{t0}')
    a.I(f'v_lshl_add_u32 v{t0}, v{l31}, 7, v{t0}')
    a.I(f's_lshl_b32 s{S_T2}, s{S_T0}, 12')
    a.I(f'v_add_u32 v{vXA}, s{S_T2}, v{t0}')
    for ks in range(1, 4):
        a.I(f'v_xor_b32 v{vXA+ks}, {ks * 32}, v{vXA}')
    a.I(f'v_bfe_u32 v{t0}, v{vL}, 3, 1')
    a.I(f'v_lshlrev_b32 v{t0}, 2, v{t0}')
    a.I(f'v_and_b32 v{t1}, 1, v{vL}')
    a.I(f'v_lshlrev_b32 v{t1}, 3, v{t1}')
    a.I(f'v_lshl_add_u32 v{t1}, v{r4}, 7, v{t1}')
    a.I(f'v_bfe_u32 v{t2}, v{vL}, 4, 1')
    a.I(f'v_lshlrev_b32 v{t2}, 1, v{t2}')
    a.I(f'v_bfe_u32 v{vWA}, v{vL}, 1, 1')
    a.I(f'v_add_u32 v{t2}, v{t2}, v{vWA}')
    a.I(f's_lshl_b32 s{S_T2}, s{S_T1}, 2')
    a.I(f'v_add_u32 v{t2}, s{S_T2}, v{t2}')
    a.I(f'v_xor_b32 v{t2}, v{t2}, v{t0}')
    a.I(f'v_lshl_add_u32 v{t2}, v{t2}, 4, v{t1}')
    a.I(f'v_mul_u32_u24 v{vWA}, 3072, v{hh}')
    a.I(f'v_add_u32 v{t2}, v{t2}, v{vWA}')
    for b in range(3):
        a.I(f'v_add_u32 v{vWA+b}, {WS0 + b * 49152}, v{t2}')
    a.I(f'v_bfe_u32 v{t2}, v{vL}, 1, 1')
    a.I(f's_lshl_b32 s{S_T2}, s{S_W}, 1')
    a.I(f'v_add_u32 v{t2}, s{S_T2}, v{t2}')
    a.I(f'v_xor_b32 v{t2}, v{t2}, v{t0}')
    a.I(f'v_lshl_add_u32 v{t2}, v{t2}, 4, v{t1}')
    a.I(f'v_mul_u32_u24 v{vCA}, 3072, v{gq}')
    a.I(f'v_add_u32 v{t2}, v{t2}, v{vCA}')
    for b in range(3):
        a.I(f'v_add_u32 v{vCA+b}, {WS0 + b * 49152}, v{t2}')
    a.I(f'v_bfe_u32 v{t0}, v{vL}, 1, 3')
    a.I(f'v_xor_b32 v{t0}, v{t0}, v{gq}')
    a.I(f'v_lshlrev_b32 v{t0}, 4, v{t0}')
    a.I(f'v_lshl_add_u32 v{t0}, v{i16}, 7, v{t0}')
    a.I(f'v_add_u32 v{vSA}, s{S_XW}, v{t0}')
    a.I(f'v_xor_b32 v{vSA+1}, 64, v{vSA}')
    for i in range(4):
        a.I(f'v_mov_b32 v{VONE+i}, {ONES}')

    X = vH
    sm, sq, vm, vrs, tt, tt2_ = vH + 8, vH + 9, vH + 10, vH + 11, vH + 12, vH + 13
    U = vH + 32
    aHW0, aHW1 = vH + 14, vH + 15
    aH0, aH1, aW1, aST, aPH, vSG = vH + 16, vH + 17, vH + 18, vH + 19, vH + 20, vH + 21
    a.I(f's_lshl_b32 s{S_T0}, s{S_W}, 1')
    a.I(f'v_add_u32 v{t0}, s{S_T0}, v{hh}')
    a.I(f'v_and_b32 v{t1}, 3, v{t0}')
    a.I(f'v_lshlrev_b32 v{t1}, 6, v{t1}')
    a.I(f'v_lshl_add_u32 v{t1}, v{l31}, 4, v{t1}')
    a.I(f'v_lshl_add_u32 v{aHW0}, v{t0}, 10, v{t1}')
    a.I(f'v_add_u32 v{t1}, 512, v{t1}')
    a.I(f'v_and_b32 v{t1}, 1023, v{t1}')
    a.I(f'v_lshl_add_u32 v{aHW1}, v{t0}, 10, v{t1}')
    a.I(f'v_lshlrev_b32 v{t0}, 5, v{gq}')
    a.I(f'v_lshl_add_u32 v{t0}, v{c4}, 3, v{t0}')
    a.I(f's_lshl_b32 s{S_T0}, s{S_W}, 8')
    a.I(f'v_lshl_add_u32 v{t1}, v{r4}, 6, v{t0}')
    a.I(f'v_add_u32 v{t1}, s{S_T0}, v{t1}')
    a.I(f'v_add_u32 v{t2}, 128, v{t1}')
    a.I(f'v_and_b32 v{t1}, 1023, v{t1}')
    a.I(f'v_and_b32 v{t2}, 1023, v{t2}')
    a.I(f'v_lshl_add_u32 v{aH0}, v{r4}, 10, v{t1}')
    a.I(f'v_lshl_add_u32 v{aH1}, v{r4}, 10, v{t2}')
    a.I(f'v_mul_u32_u24 v{aW1}, 2752, v{r4}')
    a.I(f's_lshl_b32 s{S_T0}, s{S_W}, 7')
    a.I(f's_add_u32 s{S_T0}, s{S_T0}, {W1S}')
    a.I(f'v_add3_u32 v{aW1}, v{aW1}, v{t0}, s{S_T0}')
    a.I(f's_and_b32 s{S_T0}, s{S_IA}, 3')
    a.I(f's_lshl_b32 s{S_T0}, s{S_T0}, 8')
    a.I(f's_lshr_b32 s{S_T1}, s{S_IA}, 2')
    a.I(f's_lshl_b32 s{S_T1}, s{S_T1}, 10')
    a.I(f's_add_u32 s{S_T0}, s{S_T0}, s{S_T1}')
    a.I(f'v_lshlrev_b32 v{aST}, 16, v{gq}')
    a.I(f'v_lshl_add_u32 v{aST}, v{i16}, 4, v{aST}')
    a.I(f'v_add_u32 v{aST}, s{S_T0}, v{aST}')
    a.I(f'v_lshl_add_u32 v{aPH}, v{hh}, 2, v{r4}')
    a.I(f'v_lshlrev_b32 v{aPH}, 5, v{aPH}')
    a.I(f'v_lshl_add_u32 v{aPH}, v{c4}, 3, v{aPH}')
    a.I(f's_lshr_b32 s{S_T0}, s{S_W}, 1')
    a.I(f's_lshl_b32 s{S_T0}, s{S_T0}, 10')
    a.I(f's_add_u32 s{S_T0}, s{S_T0}, {WPHI_L}')
    a.I(f'v_add_u32 v{aPH}, s{S_T0}, v{aPH}')
    a.I(f'v_bfe_u32 v{vSG}, v{vL}, 4, 1')
    a.I(f'v_mul_u32_u24 v{vSG}, 0x8000, v{vSG}')
    a.I(f'v_lshl_or_b32 v{vSG}, v{vSG}, 16, v{vSG}')
    a.I(f's_lshl_b32 s{S_KP}, s{S_CG}, 2')
    a.I(f's_add_u32 s{S_KP}, s{S_KP}, s{S_W}')
    a.I(f's_lshl_b32 s{S_T0}, s{S_TB}, 5')
    a.I(f's_add_u32 s{S_KP}, s{S_KP}, s{S_T0}')
    a.I(f's_mul_i32 s{S_KP}, s{S_KP}, {KVP_STRIDE}')
    a.I(f's_add_u32 s{S_KP}, s{S_KP}, {KVP_OFF}')
    a.I(f'v_mul_u32_u24 v{vKP}, 17, v{hh}')
    a.I(f'v_add_lshl_u32 v{vKP}, v{vKP}, v{l31}, 4')
    SEN = vH + 24
    for i in range(4):
        a.I(f'v_mov_b32 v{SEN+i}, -1')

    def ln_round():
        a.I(f'v_mov_b32 v{sm}, 0')
        a.I(f'v_mov_b32 v{sq}, 0')
        for i in range(8):
            a.I(f'v_dot2c_f32_bf16 v{sm}, v{VONE}, v{X+i}')
            a.I(f'v_dot2c_f32_bf16 v{sq}, v{X+i}, v{X+i}')
        for i in range(8):
            a.I(f'v_lshlrev_b32 v{U+2*i}, 16, v{X+i}')
            a.I(f'v_and_b32 v{U+2*i+1}, 0xffff0000, v{X+i}')
        reduce32(a, [sm, sq], [tt, tt2_])
        ln_scalars(a, sm, sq, vm, vrs, tt)
        for i in range(8):
            a.I(f'v_pk_add_f32 v[{U+2*i}:{U+2*i+1}], v[{U+2*i}:{U+2*i+1}], v[{vm}:{vm+1}] op_sel_hi:[1,0] neg_lo:[0,1] neg_hi:[0,1]')
        for i in range(8):
            a.I(f'v_cvt_pk_bf16_f32 v{X+i}, v{U+2*i}, v{U+2*i+1}')
        for i in range(8):
            a.I(f'v_lshlrev_b32 v{U+2*i}, 16, v{X+i}')
            a.I(f'v_and_b32 v{U+2*i+1}, 0xffff0000, v{X+i}')
        for i in range(8):
            a.I(f'v_pk_mul_f32 v[{U+2*i}:{U+2*i+1}], v[{U+2*i}:{U+2*i+1}], v[{vm}:{vm+1}] op_sel:[0,1] op_sel_hi:[1,1]')
        for i in range(8):
            a.I(f'v_cvt_pk_bf16_f32 v{X+i}, v{U+2*i}, v{U+2*i+1}')

    def c_decode():
        a.lock()
        a.I(f's_mul_i32 s{S_T0}, s{S_XCD}, 29')
        a.I(f's_add_u32 s{S_T0}, s{S_T0}, s{S_J}')
        a.I(f's_and_b32 s{S_DT}, s{S_T0}, 3')
        a.I(f's_lshr_b32 s{S_FT}, s{S_T0}, 2')
        a.I(f's_cmp_ge_u32 s{S_FT}, 29')
        a.I(f's_cselect_b32 s{S_T1}, 29, 0')
        a.I(f's_cselect_b32 s{S_T2}, 4, 0')
        a.I(f's_sub_u32 s{S_FT}, s{S_FT}, s{S_T1}')
        a.I(f's_add_u32 s{S_DT}, s{S_DT}, s{S_T2}')
        a.I(f's_lshl_b32 s{S_F4}, s{S_DT}, 7')
        a.I(f's_lshl_b32 s{S_T0}, s{S_FT}, 2')
        a.I(f's_add_u32 s{S_F4}, s{S_F4}, s{S_T0}')
        a.I(f's_add_u32 s{S_F4}, s{S_F4}, s{S_W}')
        a.I(f's_cmp_ge_u32 s{S_J}, 29')
        a.I(f's_cselect_b32 s{S_F4}, 2048, s{S_F4}')
        a.I(f's_lshl_b32 s{S_F4}, s{S_F4}, 2')
        a.I(f's_add_u32 s{S_F4}, s{S_F4}, {FL4_OFF}')
        a.I(f's_lshl_b32 s{S_F5}, s{S_TB}, 5')
        a.I(f's_lshl_b32 s{S_T0}, s{S_CG}, 2')
        a.I(f's_add_u32 s{S_F5}, s{S_F5}, s{S_T0}')
        a.I(f's_add_u32 s{S_F5}, s{S_F5}, s{S_W}')
        a.I(f's_lshl_b32 s{S_F5}, s{S_F5}, 2')
        a.I(f's_add_u32 s{S_F5}, s{S_F5}, {FL5_OFF}')
        a.unlock()

    c_decode()
    a.I(f's_lshl_b32 s{S_LW}, s{S_W}, 19')
    a.I(f's_add_u32 s{S_LW2}, s{S_LW}, 262144')
    a.I(f's_lshl_b32 s{S_SOT}, s{S_W}, 18')
    a.I(f's_lshl_b32 s{S_SOF}, s2, 8')
    a.I(f's_lshl_b32 s{S_T0}, s{S_W}, 6')
    a.I(f's_add_u32 s{S_SOF}, s{S_SOF}, s{S_T0}')
    a.I(f's_add_u32 s{S_SOF}, s{S_SOF}, {KVF_OFF}')
    a.stamp()
    a.wait_vm(tokAX)
    a.stamp()
    ln_round()
    ln_round()
    a.I(f'ds_write_b128 v{aHW0}, v[{X}:{X+3}] offset:{HS}')
    a.I(f'ds_write_b128 v{aHW1}, v[{X+4}:{X+7}] offset:{HS}')
    a.stamp()
    a.bg_pace = 1 << 30
    a.wait_vm(tokW1)
    a.I('s_waitcnt lgkmcnt(0)')
    a.I('s_barrier')
    a.stamp()
    a.collect()
    TRB = 200
    for u, ad in enumerate((aH0, aH1)):
        a.I(f'ds_read_b64_tr_b16 v[{TRB+4*u}:{TRB+4*u+1}], v{ad} offset:{HS}')
        a.I(f'ds_read_b64_tr_b16 v[{TRB+4*u+2}:{TRB+4*u+3}], v{ad} offset:{HS + 4096}')
    for j in range(6):
        b = TRB + 8 + 4 * j
        a.I(f'ds_read_b64_tr_b16 v[{b}:{b+1}], v{aW1} offset:{j * 512}')
        a.I(f'ds_read_b64_tr_b16 v[{b+2}:{b+3}], v{aW1} offset:{j * 512 + 11008}')
    for hd in range(2):
        a.I(f'ds_read_b64_tr_b16 v[{PHI+4*hd}:{PHI+4*hd+1}], v{aPH} offset:{hd * 512}')
        a.I(f'ds_read_b64_tr_b16 v[{PHI+4*hd+2}:{PHI+4*hd+3}], v{aPH} offset:{hd * 512 + 256}')
    tokAS = [0]

    def st_h(u):
        def f():
            tokAS[0] = a.I(f'buffer_store_dwordx4 v[{TRB+4*u}:{TRB+4*u+3}], v{aST}, {S(R_WS)}, s{S_LW if u == 0 else S_LW2} offen sc1')
        return f

    def st_w(j):
        def f():
            b = TRB + 8 + 4 * j
            tokAS[0] = a.I(f'buffer_store_dwordx4 v[{b}:{b+3}], v{aST}, {S(R_W1F)}, s{S_SOT} offen sc1')
            a.I(f's_add_u32 s{S_SOT}, s{S_SOT}, {4 * 262144}')
        return f

    def st_sen():
        a.I(f's_mov_b32 exec_lo, 0x1ffff')
        a.I(f's_mov_b32 exec_hi, 0x1ffff')
        for q in range(4):
            a.I(f'buffer_store_dwordx4 v[{SEN}:{SEN+3}], v{vKP}, {S(R_WS)}, s{S_KP} offen offset:{q * 544} sc1')
        a.I('s_mov_b64 exec, 15')
        a.I(f'buffer_store_dwordx4 v[{SEN}:{SEN+3}], v{vL16}, {S(R_WS)}, s{S_SOF} offen sc1')
        a.I('s_mov_b64 exec, 1')
        a.I(f'buffer_store_dword v{SEN}, v{vL16}, {S(R_WS)}, s{S_F4} offen sc1')
        tokAS[0] = a.I(f'buffer_store_dword v{SEN}, v{vL16}, {S(R_WS)}, s{S_F5} offen sc1')
        a.I('s_mov_b64 exec, -1')

    a.I('s_waitcnt lgkmcnt(15)')
    a.I('s_waitcnt lgkmcnt(14)')
    st_sen()
    st_h(0)()
    st_h(1)()
    for j in range(6):
        a.I(f's_waitcnt lgkmcnt({14 - 2 * j})')
        st_w(j)()
    a.stamp()
    if COOP == 2:
        coop(0)
    if COOP in (1, 2):
        coop(1)
    for st in range(4):
        queue_stage(st)
    a.bg_emit(8 + opt('preB', 16))
    a.I('s_waitcnt lgkmcnt(0)')
    for i in range(8):
        a.I(f'v_xor_b32 v{PHI+i}, v{PHI+i}, v{vSG}')
    a.stamp()
    a.wait_vm(stage_tok[0])
    a.I(f's_and_b32 s{S_T0}, s2, {NSH - 1}')
    a.I(f's_mul_i32 s{S_T0}, s{S_T0}, {256 // NSH}')
    publish(a, f's{S_T0}', 'L_PUB1')
    a.stamp()
    a.collect()
    a.bg_acc = 0

    def wbase(slot):
        return slot // 2, (slot % 2) * 24576

    def reads(n):
        st, ks = divmod(n, 4)
        slot = st % 4
        F = FR + 16 * (n & 1)
        bi, bo = wbase(slot)
        L = [f'ds_read_b128 v[{F}:{F+3}], v{vXA+ks} offset:{XS(slot)}']
        for seg in range(3):
            o = bo + ks * 6144 + seg * 1024
            W = F + 4 + 4 * seg
            L.append(f'ds_read_b64_tr_b16 v[{W}:{W+1}], v{vWA+bi} offset:{o}')
            L.append(f'ds_read_b64_tr_b16 v[{W+2}:{W+3}], v{vWA+bi} offset:{o + 512}')
        jp = ks >> 1
        if n % 2 == 0:
            L.append(f'ds_read_b128 v[{AUXE}:{AUXE+3}], v{vSA+jp} offset:{XS(slot)}')
            segs = [(0, AUXE + 4)]
        else:
            segs = [(1, AUXO), (2, AUXO + 4)]
        for seg, W in segs:
            o = bo + jp * 12288 + seg * 1024
            L.append(f'ds_read_b64_tr_b16 v[{W}:{W+1}], v{vCA+bi} offset:{o}')
            L.append(f'ds_read_b64_tr_b16 v[{W+2}:{W+3}], v{vCA+bi} offset:{o + 512}')
        return L

    def mfmas(n):
        F = FR + 16 * (n & 1)
        L = []
        for seg in range(3):
            A = ACC + 16 * seg
            W = F + 4 + 4 * seg
            c = '0' if n == 0 else f'v[{A}:{A+15}]'
            L.append((f'v_mfma_f32_32x32x16_bf16 v[{A}:{A+15}], v[{W}:{W+3}], v[{F}:{F+3}], {c}', 2 + 2 * seg))
        if n % 2 == 0:
            lst = [(XSUM, VONE, AUXE, 7), (GRAM, AUXE, AUXE, 7), (CSA, AUXE + 4, VONE, 9)]
        else:
            lst = [(CSA + 4, AUXO, VONE, 8), (CSA + 8, AUXO + 4, VONE, 10)]
        for D, A_, B_, need in lst:
            c = '0' if n < 2 else f'v[{D}:{D+3}]'
            L.append((f'v_mfma_f32_16x16x32_bf16 v[{D}:{D+3}], v[{A_}:{A_+3}], v[{B_}:{B_+3}], {c}', need))
        return L

    a.bg_pace = opt('paceB', 60)
    rtok = {0: [a.I(t) for t in reads(0)]}
    PUB1 = -1
    print('bg items pending at B start:', len(a.bg))
    for n in range(32):
        if n in (8, 16, 24) and opt('stB', 0):
            a.stamp()
        M = mfmas(n)
        R = reads(n + 1) if n + 1 < 32 else []
        rtok[n + 1] = []
        newst = (n + 1) % 4 == 0 and n + 1 < 32
        quota = [3, 3, 3, 1, 1, 1]
        for k, (txt, need) in enumerate(M):
            a.wait_lg(rtok[n][need])
            a.I(txt)
            if k == 0 and newst:
                st = (n + 1) // 4
                need_stage(st)
                a.lock()
                a.I('s_waitcnt lgkmcnt(0)')
                if st == PUB1:
                    assert len(a.bg) <= total_q[0] - stores_mark
                    a.wait_vm(max(stage_tok[st], tokAS[0]))
                    a.I(f's_and_b32 s{S_T0}, s2, {NSH - 1}')
                    a.I(f's_mul_i32 s{S_T0}, s{S_T0}, {256 // NSH}')
                    publish(a, f's{S_T0}', 'L_PUB1')
                else:
                    a.wait_vm(stage_tok[st])
                    a.I('s_barrier')
                a.unlock()
                if st + 3 <= 7:
                    queue_stage(st + 3)
            q = quota[k] if k < len(M) - 1 else 99
            while R and q > 0:
                rtok[n + 1].append(a.I(R.pop(0)))
                q -= 1
        if n == opt('pfEn', 21) and opt('pfE', 1):
            a.lock()
            srd(a, R_TMP, P_W2, 1376 * 4096)
            a.I(f's_and_b32 s{S_T0}, s{S_XCD}, 1')
            a.I(f's_mul_i32 s{S_T0}, s{S_T0}, 5504')
            a.I(f's_mul_i32 s{S_T1}, s{S_J}, 172')
            a.I(f's_add_u32 s{S_T0}, s{S_T0}, s{S_T1}')
            a.I(f's_mul_i32 s{S_T1}, s{S_W}, 43')
            a.I(f's_add_u32 s{S_T0}, s{S_T0}, s{S_T1}')
            a.I(f'v_min_u32 v{t0}, 42, v{vL}')
            a.I(f'v_add_u32 v{t0}, s{S_T0}, v{t0}')
            a.I(f'v_lshrrev_b32 v{t1}, 3, v{t0}')
            a.I(f'v_and_b32 v{t0}, 7, v{t0}')
            a.I(f'v_lshlrev_b32 v{t0}, 7, v{t0}')
            a.I(f'v_lshl_add_u32 v{t0}, v{t1}, 12, v{t0}')
            a.I(f's_lshr_b32 s{S_T0}, s{S_XCD}, 1')
            a.I(f's_lshl_b32 s{S_T0}, s{S_T0}, 10')
            a.I(f'buffer_load_dword v128, v{t0}, {S(R_TMP)}, s{S_T0} offen')
            srd(a, R_TMP, P_WO, 512 * 1024)
            a.I(f's_lshr_b32 s{S_T0}, s{S_XCD}, 1')
            a.I(f's_lshl_b32 s{S_T0}, s{S_T0}, 5')
            a.I(f's_add_u32 s{S_T0}, s{S_T0}, s{S_J}')
            a.I(f's_lshl_b32 s{S_T0}, s{S_T0}, 2')
            a.I(f's_add_u32 s{S_T0}, s{S_T0}, s{S_W}')
            a.I(f's_lshl_b32 s{S_T0}, s{S_T0}, 10')
            a.I(f's_and_b32 s{S_T1}, s{S_XCD}, 1')
            a.I(f's_lshl_b32 s{S_T1}, s{S_T1}, 9')
            a.I(f's_add_u32 s{S_T0}, s{S_T0}, s{S_T1}')
            a.I(f'v_lshlrev_b32 v{t0}, 7, v{c4}')
            a.I(f'buffer_load_dword v128, v{t0}, {S(R_TMP)}, s{S_T0} offen')
            a.unlock()
    a.bg_drain()
    a.stamp()

    vTD0, vTD1, vTE0, vTE1 = 129, 130, 131, 132
    vR0, vR1, vR2, vR3 = 133, 134, 135, 136
    vXO, vBO, aR = 137, 138, 139
    R_T1, R_T2 = R_W, R_W1
    R_F1, R_F2 = R_TMP, R_OUT
    S_KB0 = S_SOW1

    def e_setup():
        a.lock()
        a.I(f's_mul_i32 s{S_LW}, s{S_W}, {TLO * 2048}')
        a.I(f's_mul_i32 s{S_LW2}, s{S_W}, {(TSLOTS - TLO) * 2048}')
        a.I(f's_add_u32 s{S_LW2}, s{S_LW2}, {CRED}')
        a.I(f's_mul_i32 s{S_KB0}, s{S_W}, 22')
        a.I(f's_cmp_eq_u32 s{S_W}, 3')
        a.I(f's_cselect_b32 s{S_KB0}, 65, s{S_KB0}')
        a.I(f's_cmp_ge_u32 s{S_W}, 2')
        a.I(f's_cselect_b32 s{S_CNT}, 21, 22')
        a.I(f's_lshl_b32 s{S_T0}, s{S_TB}, 16')
        a.I(f's_lshl_b32 s{S_T1}, s{S_W}, 14')
        a.I(f's_add_u32 s{S_T0}, s{S_T0}, s{S_T1}')
        a.I(f's_add_u32 s{S_T0}, s{S_T0}, {OF_OFF}')
        srd(a, R_F1, P_WS, 16384, off_sgpr=S_T0)
        a.I(f's_mul_i32 s{S_T1}, s{S_CG}, {UF_DT}')
        a.I(f's_lshl_b32 s{S_T2}, s{S_KB0}, 11')
        a.I(f's_add_u32 s{S_T1}, s{S_T1}, s{S_T2}')
        a.I(f's_add_u32 s{S_T1}, s{S_T1}, {UF_OFF}')
        srd(a, R_F2, P_WS, 0, off_sgpr=S_T1)
        a.I(f's_lshl_b32 s{R_F2+2}, s{S_CNT}, 11')
        a.I(f's_lshl_b32 s{S_T1}, s{S_CG}, 7')
        a.I(f's_lshl_b32 s{S_T2}, s{S_W}, 17')
        a.I(f's_add_u32 s{S_T1}, s{S_T1}, s{S_T2}')
        srd(a, R_T1, P_WO, 127 * 1024 + 128, off_sgpr=S_T1)
        a.I(f's_lshl_b32 s{S_T1}, s{S_TB}, 7')
        a.I(f's_lshl_b32 s{S_T2}, s{S_KB0}, 16')
        a.I(f's_add_u32 s{S_T1}, s{S_T1}, s{S_T2}')
        srd(a, R_T2, P_W2, 0, off_sgpr=S_T1)
        a.I(f's_lshl_b32 s{R_T2+2}, s{S_CNT}, 16')
        a.I(f's_sub_u32 s{R_T2+2}, s{R_T2+2}, {4096 - 128}')
        a.unlock()
        a.I(f'v_bfe_u32 v{t0}, v{vL}, 4, 1')
        a.I(f'v_lshlrev_b32 v{t0}, 2, v{t0}')
        a.I(f'v_xor_b32 v{t0}, v{t0}, v{l7}')
        a.I(f'v_lshlrev_b32 v{t0}, 4, v{t0}')
        a.I(f'v_lshl_add_u32 v{vTD0}, v{l3}, 10, v{t0}')
        a.I(f'v_add_u32 v{vTD1}, {8 * 1024 - 1024}, v{vTD0}')
        a.I(f'v_lshl_add_u32 v{vTE0}, v{l3}, 12, v{t0}')
        a.I(f'v_add_u32 v{vTE1}, {8 * 4096 - 1024}, v{vTE0}')
        a.I(f'v_bfe_u32 v{t0}, v{vL}, 3, 1')
        a.I(f'v_lshlrev_b32 v{t0}, 2, v{t0}')
        a.I(f'v_bfe_u32 v{t1}, v{vL}, 4, 1')
        a.I(f'v_lshlrev_b32 v{t1}, 1, v{t1}')
        a.I(f'v_bfe_u32 v{vR0}, v{vL}, 1, 1')
        a.I(f'v_add_u32 v{t1}, v{t1}, v{vR0}')
        a.I(f'v_xor_b32 v{t1}, v{t1}, v{t0}')
        a.I(f'v_lshlrev_b32 v{t1}, 4, v{t1}')
        a.I(f'v_and_b32 v{t0}, 1, v{vL}')
        a.I(f'v_lshl_add_u32 v{t1}, v{t0}, 3, v{t1}')
        a.I(f'v_lshl_add_u32 v{t0}, v{hh}, 2, v{r4}')
        a.I(f'v_lshl_add_u32 v{t1}, v{t0}, 7, v{t1}')
        a.I(f'v_add_u32 v{vR0}, s{S_LW}, v{t1}')
        a.I(f'v_xor_b32 v{vR1}, 64, v{vR0}')
        a.I(f'v_add_u32 v{vR2}, s{S_LW2}, v{t1}')
        a.I(f'v_xor_b32 v{vR3}, 64, v{vR2}')
        a.I(f's_lshl_b32 s{S_T0}, s{S_W}, 3')
        a.I(f'v_add_u32 v{t0}, s{S_T0}, v{l3}')
        a.I(f'v_lshlrev_b32 v{vBO}, 1, v{t0}')
        a.I(f'v_mul_u32_u24 v{aR}, 272, v{t0}')
        a.I(f'v_lshl_add_u32 v{aR}, v{l7}, 5, v{aR}')
        a.I(f'v_lshlrev_b32 v{vXO}, 10, v{t0}')
        a.I(f'v_lshl_add_u32 v{vXO}, v{l7}, 4, v{vXO}')
        a.I(f's_lshl_b32 s{S_T0}, s{S_TB}, 16')
        a.I(f's_lshl_b32 s{S_T1}, s{S_CG}, 7')
        a.I(f's_add_u32 s{S_T0}, s{S_T0}, s{S_T1}')
        a.I(f'v_add_u32 v{vXO}, s{S_T0}, v{vXO}')

    def c_setup():
        a.lock()
        a.I(f's_lshl_b32 s{S_T0}, s{S_W}, 14')
        a.I(f's_mul_i32 s{S_T1}, s{S_FT}, {3 * 65536}')
        a.I(f's_add_u32 s{S_T1}, s{S_T1}, s{S_T0}')
        a.I(f's_add_u32 s{S_T1}, s{S_T1}, {W1F_OFF}')
        a.I(f's_lshl_b32 s{S_T2}, s{S_DT}, 18')
        a.I(f's_add_u32 s{S_T2}, s{S_T2}, s{S_T0}')
        a.I(f'v_add_u32 v{vCA_}, s{S_T1}, v{vL16}')
        a.I(f'v_add_u32 v{vCA_+3}, s{S_T2}, v{vL16}')
        for i in range(1, 3):
            a.I(f'v_add_u32 v{vCA_+i}, {i * 65536}, v{vCA_}')
        for i in range(1, 4):
            a.I(f'v_add_u32 v{vCA_+3+i}, {i * 65536}, v{vCA_+3}')
        a.I(f's_mov_b32 s{S_K1}, 4096')
        a.I(f's_mov_b32 s{S_K2}, 8192')
        a.I(f's_mov_b32 s{S_K3}, 12288')
        a.I(f's_mov_b32 s{R_C}, s{P_WS}')
        a.I(f's_mov_b32 s{R_C+1}, s{P_WS+1}')
        a.I(f's_cmp_ge_u32 s{S_J}, 29')
        a.I(f's_cselect_b32 s{R_C+2}, 0, {W1F_OFF + W1F_SIZE}')
        a.unlock()

    NP1, NP2 = 8, 22
    NS = NP1 + NP2
    tT, tF = {}, {}

    def t_issue(n):
        sl = n % TSLOTS
        a.lock()
        if n < NP1:
            so, v0_, v1_, R_ = n * 16384, vTD0, vTD1, R_T1
        else:
            so, v0_, v1_, R_ = (n - NP1) * 65536, vTE0, vTE1, R_T2
        a.I(f's_mov_b32 s{S_SOT}, {so}')
        if sl < TLO:
            a.I(f's_add_u32 m0, s{S_LW}, {sl * 2048}')
        else:
            a.I(f's_add_u32 m0, s{S_LW2}, {(sl - TLO) * 2048}')
        a.I(f'buffer_load_dwordx4 v{v0_}, {S(R_)}, s{S_SOT} offen lds')
        tT[n] = a.I(f'buffer_load_dwordx4 v{v1_}, {S(R_)}, s{S_SOT} offen offset:1024 lds')
        a.unlock()

    a.I(f'v_and_b32 v{t0}, {NSH - 1}, v{vL}')
    a.I(f'v_mul_u32_u24 v{vPOFF}, {256 // NSH}, v{t0}')
    c_setup()
    RC = opt('rc', 9)
    ctok = {}

    def c_load(n, i):
        base = 28 * (n % RC)
        so = ['0', f's{S_K1}', f's{S_K2}', f's{S_K3}'][n >> 2]
        off = f' offset:{(n & 3) * 1024}' if n & 3 else ''
        r = base + 4 * i
        ctok[n] = a.I(f'buffer_load_dwordx4 a[{r}:{r+3}], v{vCA_+i}, {S(R_C)}, {so} offen{off} sc1')

    e0 = FR
    aC, aS, g0, g1 = e0, e0 + 1, e0 + 2, e0 + 3
    a.I(f's_lshl_b32 s{S_T0}, s{S_W}, 6')
    a.I(f's_add_u32 s{S_T0}, s{S_T0}, {EP_CS}')
    a.I(f'v_lshlrev_b32 v{aC}, 4, v{gq}')
    a.I(f'v_add_u32 v{aC}, s{S_T0}, v{aC}')
    a.I(f's_lshl_b32 s{S_T0}, s{S_W}, 7')
    a.I(f's_add_u32 s{S_T0}, s{S_T0}, {EP_ST}')
    a.I(f'v_lshlrev_b32 v{aS}, 3, v{i16}')
    a.I(f'v_add_u32 v{aS}, s{S_T0}, v{aS}')
    a.I(f'v_cmp_eq_u32 vcc, 1, v{c4}')
    a.I(f'v_cndmask_b32 v{g1}, v{GRAM}, v{GRAM+1}, vcc')
    a.I(f'v_cmp_eq_u32 vcc, 2, v{c4}')
    a.I(f'v_cndmask_b32 v{g1}, v{g1}, v{GRAM+2}, vcc')
    a.I(f'v_cmp_eq_u32 vcc, 3, v{c4}')
    a.I(f'v_cndmask_b32 v{g1}, v{g1}, v{GRAM+3}, vcc')
    a.I(f'v_mov_b32 v{g0}, v{XSUM}')
    a.lock()
    a.I(f'v_cmp_eq_u32 vcc, v{r4}, v{gq}')
    a.I(f's_and_saveexec_b64 s[{S_EXEC}:{S_EXEC+1}], vcc')
    a.I(f'ds_write_b64 v{aS}, v[{g0}:{g1}]')
    a.I(f's_mov_b64 exec, s[{S_EXEC}:{S_EXEC+1}]')
    a.I(f'v_cmp_eq_u32 vcc, 0, v{i16}')
    a.I(f's_and_saveexec_b64 s[{S_EXEC}:{S_EXEC+1}], vcc')
    for seg in range(3):
        a.I(f'ds_write_b128 v{aC}, v[{CSA+4*seg}:{CSA+4*seg+3}] offset:{seg * 256}')
    a.I(f's_mov_b64 exec, s[{S_EXEC}:{S_EXEC+1}]')
    a.unlock()
    e_setup()
    a.I(f's_and_b32 s{S_T0}, s{S_W}, 1')
    a.I(f's_lshr_b32 s{S_T1}, s{S_W}, 1')
    a.I(f's_lshl_b32 s{S_T2}, s{S_T0}, 8')
    a.I(f's_add_u32 s{S_T2}, s{S_T2}, {EP_ST}')
    a.I(f'v_lshlrev_b32 v{aS}, 3, v{l31}')
    a.I(f'v_add_u32 v{aS}, s{S_T2}, v{aS}')
    a.I(f's_lshl_b32 s{S_T2}, s{S_T1}, 7')
    a.I(f's_add_u32 s{S_T2}, s{S_T2}, {EP_CS}')
    a.I(f'v_lshlrev_b32 v{aC}, 4, v{hh}')
    a.I(f'v_add_u32 v{aC}, s{S_T2}, v{aC}')
    a.I('s_waitcnt lgkmcnt(0)')
    wg_wait(a, '0', 256 // NSH, 'L_F1', voff_expr='s_nop 0', sleep=2)
    a.stamp()
    a.collect()
    CSR = 160
    a.I(f'ds_read_b64 v[{g0}:{g1}], v{aS}')
    for seg in (1, 2, 0):
        for q4 in range(4):
            b = CSR + 16 * seg + 4 * q4
            a.I(f'ds_read_b128 v[{b}:{b+3}], v{aC} offset:{seg * 256 + q4 * 32}')
    NT0 = 0
    for n in range(RC):
        for i in range(7):
            a.bg_add(lambda n=n, i=i: c_load(n, i))
    a.bg_pace = opt('paceC', 64)
    a.bg_acc = 0
    a.bg_emit(opt('preC', 4))
    aV, aK, swv, swk = e0 + 8, e0 + 9, e0 + 10, e0 + 11
    aV2, aK1, aK2, aK3 = e0 + 12, e0 + 13, e0 + 14, e0 + 15
    a.I(f's_lshl_b32 s{S_T2}, s{S_T1}, 12')
    a.I(f's_lshl_b32 s{S_SOX}, s{S_T0}, 10')
    a.I(f's_add_u32 s{S_T2}, s{S_T2}, s{S_SOX}')
    a.I(f's_add_u32 s{S_T2}, s{S_T2}, {EP_VV}')
    a.I(f'v_xor_b32 v{swv}, v{r4}, v{hh}')
    a.I(f'v_lshlrev_b32 v{swv}, 3, v{swv}')
    a.I(f'v_lshl_add_u32 v{aV}, v{l31}, 5, v{swv}')
    a.I(f'v_add_u32 v{aV}, s{S_T2}, v{aV}')
    a.I(f'v_xor_b32 v{aV2}, 16, v{aV}')
    a.I(f's_lshl_b32 s{S_T2}, s{S_T1}, 13')
    a.I(f's_lshl_b32 s{S_SOX}, s{S_T0}, 11')
    a.I(f's_add_u32 s{S_T2}, s{S_T2}, s{S_SOX}')
    a.I(f's_add_u32 s{S_T2}, s{S_T2}, {EP_PK}')
    a.I(f'v_bfe_u32 v{swk}, v{vL}, 1, 3')
    a.I(f'v_xor_b32 v{swk}, v{swk}, v{hh}')
    a.I(f'v_lshlrev_b32 v{swk}, 3, v{swk}')
    a.I(f'v_lshl_add_u32 v{aK}, v{l31}, 6, v{swk}')
    a.I(f'v_add_u32 v{aK}, s{S_T2}, v{aK}')
    a.I(f'v_xor_b32 v{aK1}, 16, v{aK}')
    a.I(f'v_xor_b32 v{aK2}, 32, v{aK}')
    a.I(f'v_xor_b32 v{aK3}, 48, v{aK}')
    vm2, vrs2, tt2 = e0 + 4, e0 + 5, e0 + 6
    a.I('s_waitcnt lgkmcnt(12)')
    ln_scalars(a, g0, g1, vm2, vrs2, tt2)
    PKD = 208

    def fix_seg(seg):
        for i in range(8):
            r = ACC + 16 * seg + 2 * i
            c = CSR + 16 * seg + 2 * i
            a.I(f'v_pk_fma_f32 v[{r}:{r+1}], v[{c}:{c+1}], v[{vm2}:{vm2+1}], v[{r}:{r+1}] op_sel_hi:[1,0,1] neg_lo:[0,1,0] neg_hi:[0,1,0]')
        for i in range(8):
            r = ACC + 16 * seg + 2 * i
            a.I(f'v_pk_mul_f32 v[{r}:{r+1}], v[{r}:{r+1}], v[{vm2}:{vm2+1}] op_sel:[0,1] op_sel_hi:[1,1]')
        for i in range(8):
            r = ACC + 16 * seg + 2 * i
            a.I(f'v_cvt_pk_bf16_f32 v{PKD+8*seg+i}, v{r}, v{r+1}')

    def phi(u, D):
        hd = u & 1
        B_ = PKD + 4 * u
        a.I(f'v_mfma_f32_32x32x16_bf16 v[{D}:{D+15}], v[{PHI+4*hd}:{PHI+4*hd+3}], v[{B_}:{B_+3}], 0')

    a.I('s_waitcnt lgkmcnt(8)')
    fix_seg(1)
    phi(2, 16)
    phi(3, 48)
    a.I('s_waitcnt lgkmcnt(4)')
    fix_seg(2)
    for hd in range(2):
        b = PKD + 16 + 4 * hd
        a.I(f'ds_write_b64 v{aV}, v[{b}:{b+1}] offset:{hd * 2048}')
        a.I(f'ds_write_b64 v{aV2}, v[{b+2}:{b+3}] offset:{hd * 2048}')
    SMT = e0 + 16
    PHK = 176
    a.stamp()
    softmax2(a, [16, 48], SMT, [PHK, PHK + 8])
    for hd in range(2):
        for c, ad in enumerate((aK, aK1, aK2, aK3)):
            b = PHK + 8 * hd + 2 * c
            a.I(f'ds_write_b64 v{ad}, v[{b}:{b+1}] offset:{hd * 4096}')
    rK0, rK1, rV0, rV1 = e0 + 24, e0 + 25, e0 + 26, e0 + 27
    tk = e0 + 28
    a.I(f'v_lshl_add_u32 v{tk}, v{hh}, 3, v{r4}')
    a.I(f'v_bfe_u32 v{rK0}, v{vL}, 4, 1')
    a.I(f'v_lshl_add_u32 v{rK0}, v{rK0}, 2, v{c4}')
    a.I(f'v_lshrrev_b32 v{rK1}, 1, v{tk}')
    a.I(f'v_xor_b32 v{rK0}, v{rK0}, v{rK1}')
    a.I(f'v_lshlrev_b32 v{rK0}, 3, v{rK0}')
    a.I(f'v_lshl_add_u32 v{rK0}, v{tk}, 6, v{rK0}')
    a.I(f's_lshl_b32 s{S_T2}, s{S_W}, 12')
    a.I(f's_add_u32 s{S_T2}, s{S_T2}, {EP_PK}')
    a.I(f'v_add_u32 v{rK0}, s{S_T2}, v{rK0}')
    a.I(f'v_xor_b32 v{rK1}, 16, v{rK0}')
    a.I(f'v_add_u32 v{rK1}, 256, v{rK1}')
    a.I(f'v_lshrrev_b32 v{rV0}, 2, v{tk}')
    a.I(f'v_xor_b32 v{rV0}, v{rV0}, v{c4}')
    a.I(f'v_lshlrev_b32 v{rV0}, 3, v{rV0}')
    a.I(f'v_lshl_add_u32 v{rV0}, v{tk}, 5, v{rV0}')
    a.I(f's_lshl_b32 s{S_T2}, s{S_W}, 11')
    a.I(f's_add_u32 s{S_T2}, s{S_T2}, {EP_VV}')
    a.I(f'v_add_u32 v{rV0}, s{S_T2}, v{rV0}')
    a.I(f'v_xor_b32 v{rV1}, 8, v{rV0}')
    a.I(f'v_add_u32 v{rV1}, 128, v{rV1}')
    a.I('s_waitcnt lgkmcnt(0)')
    a.I('s_barrier')
    a.stamp()
    KA, KB, KD = 32, 192, 16
    for s_ in range(4):
        a.I(f'ds_read_b64_tr_b16 v[{KA+4*s_}:{KA+4*s_+1}], v{rK0} offset:{s_ * 1024}')
        a.I(f'ds_read_b64_tr_b16 v[{KA+4*s_+2}:{KA+4*s_+3}], v{rK1} offset:{s_ * 1024}')
    for s_ in range(4):
        a.I(f'ds_read_b64_tr_b16 v[{KB+4*s_}:{KB+4*s_+1}], v{rV0} offset:{s_ * 512}')
        a.I(f'ds_read_b64_tr_b16 v[{KB+4*s_+2}:{KB+4*s_+3}], v{rV1} offset:{s_ * 512}')
    a.I(f'v_cmp_le_u32 vcc, 16, v{l31}')
    a.I('s_waitcnt lgkmcnt(0)')
    for i in range(16):
        a.I(f'v_cndmask_b32 v{KB+i}, v{KB+i}, v{VONE}, vcc')
    for s_ in range(4):
        c = '0' if s_ == 0 else f'v[{KD}:{KD+15}]'
        a.I(f'v_mfma_f32_32x32x16_bf16 v[{KD}:{KD+15}], v[{KA+4*s_}:{KA+4*s_+3}], v[{KB+4*s_}:{KB+4*s_+3}], {c}')
    fix_seg(0)
    a.lock()
    a.I(f'v_cmp_ge_u32 vcc, 16, v{l31}')
    a.I(f's_and_saveexec_b64 s[{S_EXEC}:{S_EXEC+1}], vcc')
    for q in range(4):
        a.I(f'buffer_store_dwordx4 v[{KD+4*q}:{KD+4*q+3}], v{vKP}, {S(R_WS)}, s{S_KP} offen offset:{q * 544} sc1')
    a.I(f's_mov_b64 exec, s[{S_EXEC}:{S_EXEC+1}]')
    a.unlock()
    a.stamp()
    phi(0, 0)
    phi(1, 32)
    softmax2(a, [0, 32], SMT, [PHQ, PHQ + 8])
    a.stamp()
    a.collect()
    a.I('s_barrier')
    a.I(f's_mov_b32 s{S_OD}, 0')
    if STAMPS:
        a.I(f'v_writelane_b32 v{vSTAMP}, 0, 44')
    left = list(a.bg)
    a.bg = []
    a.I(f's_cmp_ge_u32 s{S_J}, 29')
    a.I('s_cbranch_scc1 L_RED')
    vm_at_branch = a.vm_issued

    pend = [(n, i) for n in range(16) for i in range(7)][7 * RC - len(left):]
    vBi, BI = 81, 82
    KV = 48
    OD = 160
    LEAD = opt('lead', 3)
    vKF = 64

    def kvf_loads():
        for hd in range(2):
            for q in range(4):
                b = KV + 8 * hd + 2 * q
                tok = a.I(f'buffer_load_dwordx2 v[{b}:{b+1}], v{vKF}, {S(R_WS)}, s{S_KF} offen offset:{hd * 1088 + q * 272} sc1')
        return tok

    def o_part1():
        a.I(f's_lshr_b32 s{S_T1}, s{S_W}, 1')
        a.I(f's_lshl_b32 s{S_T1}, s{S_T1}, 1')
        a.I(f's_lshl_b32 s{S_T2}, s{S_CG}, 2')
        a.I(f's_add_u32 s{S_HD0}, s{S_T1}, s{S_T2}')
        a.I(f's_mul_i32 s{S_KF}, s{S_HD0}, 1088')
        a.I(f's_add_u32 s{S_KF}, s{S_KF}, {KVF_OFF}')
        a.I(f'v_min_u32 v{vKF}, 16, v{l31}')
        a.I(f'v_mul_u32_u24 v{t0}, 17, v{hh}')
        a.I(f'v_add_lshl_u32 v{vKF}, v{vKF}, v{t0}, 3')
        return kvf_loads()

    def kvf_check():
        a.I(f'v_max3_u32 v{t0}, v{KV}, v{KV+1}, v{KV+2}')
        a.I(f'v_max3_u32 v{t1}, v{KV+3}, v{KV+4}, v{KV+5}')
        a.I(f'v_max3_u32 v{t0}, v{t0}, v{KV+6}, v{KV+7}')
        a.I(f'v_max3_u32 v{t1}, v{t1}, v{KV+8}, v{KV+9}')
        a.I(f'v_max3_u32 v{t0}, v{t0}, v{KV+10}, v{KV+11}')
        a.I(f'v_max3_u32 v{t1}, v{t1}, v{KV+12}, v{KV+13}')
        a.I(f'v_max3_u32 v{t0}, v{t0}, v{KV+14}, v{KV+15}')
        a.I(f'v_max_u32 v{t0}, v{t0}, v{t1}')
        a.I(f'v_cmp_eq_u32 vcc, -1, v{t0}')

    def o_compute():
        for hd in range(2):
            D = OD + 16 * hd
            a.I(f'v_mfma_f32_32x32x16_bf16 v[{D}:{D+15}], v[{KV+8*hd}:{KV+8*hd+3}], v[{PHQ+8*hd}:{PHQ+8*hd+3}], 0')
            a.I(f'v_mfma_f32_32x32x16_bf16 v[{D}:{D+15}], v[{KV+8*hd+4}:{KV+8*hd+7}], v[{PHQ+8*hd+4}:{PHQ+8*hd+7}], v[{D}:{D+15}]')
        a.I(f's_lshl_b32 s{S_T0}, s{S_TB}, 5')
        a.I(f's_add_u32 s{S_T0}, s{S_T0}, s{S_HD0}')
        a.I(f's_lshl_b32 s{S_T0}, s{S_T0}, 11')
        a.I(f's_and_b32 s{S_T2}, s{S_W}, 1')
        a.I(f's_lshl_b32 s{S_T2}, s{S_T2}, 10')
        a.I(f's_add_u32 s{S_T0}, s{S_T0}, s{S_T2}')
        a.I(f's_add_u32 s{S_T0}, s{S_T0}, {OF_OFF}')
        for hd in range(2):
            D = OD + 16 * hd
            a.I(f'v_add_f32 v{D+8}, 0x358637bd, v{D+8}')
        for hd in range(2):
            D = OD + 16 * hd
            a.I(f'v_rcp_f32 v{D+8}, v{D+8}')
        for hd in range(2):
            D = OD + 16 * hd
            for i in range(4):
                a.I(f'v_pk_mul_f32 v[{D+2*i}:{D+2*i+1}], v[{D+2*i}:{D+2*i+1}], v[{D+8}:{D+9}] op_sel_hi:[1,0]')
            for i in range(4):
                a.I(f'v_cvt_pk_bf16_f32 v{D+12+i}, v{D+2*i}, v{D+2*i+1}')
            a.I(f'buffer_store_dwordx4 v[{D+12}:{D+15}], v{vL16}, {S(R_WS)}, s{S_T0} offen offset:{hd * 2048} sc1')

    def o_try(tok):
        a.lock()
        a.wait_vm(tok)
        save = a.vm_issued
        kvf_check()
        a.I('s_cbranch_vccnz L_OTRY')
        o_compute()
        a.I(f's_mov_b32 s{S_OD}, 1')
        a.vm_issued = save
        a.label('L_OTRY')
        a.unlock()

    def o_flag_if_done(name):
        a.lock()
        save = a.vm_issued
        a.I(f's_cmp_eq_u32 s{S_OD}, 0')
        a.I(f's_cbranch_scc1 {name}')
        a.I('s_waitcnt vmcnt(0)')
        flag_set(a, S_F5)
        a.vm_issued = save
        a.label(name)
        a.unlock()

    def o_blocking():
        a.lock()
        save = a.vm_issued
        a.I(f's_cmp_lg_u32 s{S_OD}, 0')
        a.I('s_cbranch_scc1 L_OB_DONE')
        a.I(f's_mov_b32 s{S_SPIN}, 0')
        a.label('L_OB')
        kvf_loads()
        a.I(f's_add_u32 s{S_SPIN}, s{S_SPIN}, 1')
        a.I('s_waitcnt vmcnt(0)')
        kvf_check()
        a.I('s_cbranch_vccz L_OB_OK')
        a.I(f's_cmp_gt_u32 s{S_SPIN}, 0x8000')
        a.I('s_cbranch_scc1 L_OB_OK')
        a.I('s_sleep 6')
        a.I('s_branch L_OB')
        a.label('L_OB_OK')
        if STAMPS:
            a.I(f'v_writelane_b32 v{vSTAMP}, s{S_SPIN}, 44')
        o_compute()
        a.I('s_waitcnt vmcnt(0)')
        flag_set(a, S_F5)
        a.vm_issued = save
        a.label('L_OB_DONE')
        a.unlock()


    def issue_upto(nmax):
        while pend and pend[0][0] <= nmax:
            n_, i_ = pend.pop(0)
            c_load(n_, i_)

    issue_upto(LEAD - 1)
    npend0 = len(pend)
    print('C loads pending at C main start:', npend0)
    nslots = 12 * (16 - LEAD)
    done_slots = 0
    for n in range(16):
        a.wait_vm(ctok[n])
        base = 28 * (n % RC)
        for fb in range(3):
            for db in range(4):
                D = 4 * (fb * 4 + db)
                A_ = base + 4 * fb
                B_ = base + 12 + 4 * db
                c = '0' if n == 0 else f'v[{D}:{D+3}]'
                a.I(f'v_mfma_f32_16x16x32_bf16 v[{D}:{D+3}], a[{A_}:{A_+3}], a[{B_}:{B_+3}], {c}')
                done_slots += 1
                want = min(npend0, (npend0 * done_slots + nslots - 1) // nslots)
                while pend and npend0 - len(pend) < want and pend[0][0] < n + RC:
                    n_, i_ = pend.pop(0)
                    c_load(n_, i_)
        issue_upto(n + LEAD)
        if n == 16 - LEAD - 1:
            srd(a, R_C, P_B1, 2752)
            a.I(f's_and_b32 s{S_T0}, s{S_W}, 1')
            a.I(f's_lshl_b32 s{S_T0}, s{S_T0}, 3')
            a.I(f's_mul_i32 s{S_T1}, s{S_FT}, 96')
            a.I(f's_add_u32 s{S_T0}, s{S_T0}, s{S_T1}')
            a.I(f'v_and_b32 v{vBi}, 1, v{vL}')
            a.I(f'v_lshlrev_b32 v{vBi}, 4, v{vBi}')
            for jj in range(3):
                tokB = a.I(f'buffer_load_dwordx2 v[{BI+2*jj}:{BI+2*jj+1}], v{vBi}, {S(R_C)}, s{S_T0} offen offset:{jj * 32}')
        if n == 14:
            tokKF = o_part1()
    NT0 = opt('nt0', TLO)
    a.stamp()

    o_try(tokKF)
    a.stamp()
    NTB = opt('ntb', 6)
    for m in range(NTB):
        a.bg_add(lambda m=m: t_issue(m))
    a.bg_pace = opt('paceT', 150)
    a.bg_acc = 0
    aW, aRd, aSt = 88, 89, 90
    a.I(f's_mul_i32 s{S_T0}, s{S_W}, 13312')
    a.I(f's_add_u32 s{S_T0}, s{S_T0}, {CRED}')
    a.I(f'v_mul_u32_u24 v{aW}, 208, v{i16}')
    a.I(f'v_lshl_add_u32 v{aW}, v{gq}, 4, v{aW}')
    a.I(f'v_add_u32 v{aW}, s{S_T0}, v{aW}')
    for fb in range(3):
        for db in range(4):
            D = 4 * (fb * 4 + db)
            a.I(f'ds_write_b128 v{aW}, v[{D}:{D+3}] offset:{db * 3328 + fb * 64}')
    a.I(f's_lshr_b32 s{S_T0}, s{S_W}, 1')
    a.I(f's_and_b32 s{S_T1}, s{S_W}, 1')
    a.I(f's_mul_i32 s{S_T2}, s{S_T0}, {32 * 208}')
    a.I(f's_lshl_b32 s{S_K1}, s{S_T1}, 4')
    a.I(f's_add_u32 s{S_T2}, s{S_T2}, s{S_K1}')
    a.I(f's_add_u32 s{S_T2}, s{S_T2}, {CRED}')
    a.I(f'v_lshrrev_b32 v{aRd}, 1, v{vL}')
    a.I(f'v_mul_u32_u24 v{aRd}, 208, v{aRd}')
    a.I(f'v_and_b32 v{t0}, 1, v{vL}')
    a.I(f'v_lshl_add_u32 v{aRd}, v{t0}, 5, v{aRd}')
    a.I(f'v_add_u32 v{aRd}, s{S_T2}, v{aRd}')
    a.I(f'v_lshlrev_b32 v{aSt}, 3, v{vL}')
    a.I(f's_mul_i32 s{S_K1}, s{S_DT}, {UF_DT}')
    a.I(f's_mul_i32 s{S_K2}, s{S_FT}, 6144')
    a.I(f's_add_u32 s{S_K1}, s{S_K1}, s{S_K2}')
    a.I(f's_lshl_b32 s{S_K2}, s{S_W}, 9')
    a.I(f's_add_u32 s{S_K1}, s{S_K1}, s{S_K2}')
    a.I(f's_add_u32 s{S_K1}, s{S_K1}, {UF_OFF}')
    a.I(f's_add_u32 s{S_K2}, s{S_K1}, 4096')
    a.I(f's_mov_b32 s{S_K3}, {GK2}')
    TG = 92
    a.I(f'v_mov_b32 v{TG}, {GK1}')
    a.I('s_waitcnt lgkmcnt(0)')
    a.I('s_barrier')
    a.stamp()
    a.collect()
    RD = 0
    for p in range(4):
        for jj in range(3):
            b = RD + 16 * jj + 4 * p
            a.I(f'ds_read_b128 v[{b}:{b+3}], v{aRd} offset:{p * 13312 + jj * 64}')
    a.wait_vm(tokB)
    BU = 96
    for jj in range(3):
        for k in range(2):
            a.I(f'v_lshlrev_b32 v{BU+4*jj+2*k}, 16, v{BI+2*jj+k}')
            a.I(f'v_and_b32 v{BU+4*jj+2*k+1}, 0xffff0000, v{BI+2*jj+k}')
    J3 = range(3)
    a.I('s_waitcnt lgkmcnt(6)')
    for jj in J3:
        b = RD + 16 * jj
        for k in range(2):
            a.I(f'v_pk_add_f32 v[{b+2*k}:{b+2*k+1}], v[{b+2*k}:{b+2*k+1}], v[{b+4+2*k}:{b+4+2*k+1}]')
    a.I('s_waitcnt lgkmcnt(0)')
    for jj in J3:
        b = RD + 16 * jj
        for k in range(2):
            a.I(f'v_pk_add_f32 v[{b+8+2*k}:{b+8+2*k+1}], v[{b+8+2*k}:{b+8+2*k+1}], v[{b+12+2*k}:{b+12+2*k+1}]')
    for jj in J3:
        b = RD + 16 * jj
        for k in range(2):
            a.I(f'v_pk_add_f32 v[{b+2*k}:{b+2*k+1}], v[{b+2*k}:{b+2*k+1}], v[{b+8+2*k}:{b+8+2*k+1}]')

    def round4():
        for jj in J3:
            b = RD + 16 * jj
            a.I(f'v_cvt_pk_bf16_f32 v{b+4}, v{b}, v{b+1}')
            a.I(f'v_cvt_pk_bf16_f32 v{b+5}, v{b+2}, v{b+3}')
        for jj in J3:
            b = RD + 16 * jj
            for k in range(2):
                a.I(f'v_lshlrev_b32 v{b+2*k}, 16, v{b+4+k}')
                a.I(f'v_and_b32 v{b+2*k+1}, 0xffff0000, v{b+4+k}')
    round4()
    for jj in J3:
        b = RD + 16 * jj
        for k in range(2):
            a.I(f'v_pk_add_f32 v[{b+2*k}:{b+2*k+1}], v[{b+2*k}:{b+2*k+1}], v[{BU+4*jj+2*k}:{BU+4*jj+2*k+1}]')
    round4()
    for jj in J3:
        b = RD + 16 * jj
        for k in range(2):
            a.I(f'v_pk_mul_f32 v[{b+4+2*k}:{b+4+2*k+1}], v[{b+2*k}:{b+2*k+1}], v[{b+2*k}:{b+2*k+1}]')
    for jj in J3:
        b = RD + 16 * jj
        for i in range(4):
            a.I(f'v_fma_f32 v{b+4+i}, v{b+4+i}, s{S_K3}, v{TG}')
    for jj in J3:
        b = RD + 16 * jj
        for k in range(2):
            a.I(f'v_pk_mul_f32 v[{b+4+2*k}:{b+4+2*k+1}], v[{b+4+2*k}:{b+4+2*k+1}], v[{b+2*k}:{b+2*k+1}]')
    for jj in J3:
        b = RD + 16 * jj
        for i in range(4):
            a.I(f'v_exp_f32 v{b+4+i}, v{b+4+i}')
    for jj in J3:
        b = RD + 16 * jj
        for i in range(4):
            a.I(f'v_add_f32 v{b+4+i}, 1.0, v{b+4+i}')
    for jj in J3:
        b = RD + 16 * jj
        for i in range(4):
            a.I(f'v_rcp_f32 v{b+4+i}, v{b+4+i}')
    for jj in J3:
        b = RD + 16 * jj
        for k in range(2):
            a.I(f'v_pk_mul_f32 v[{b+2*k}:{b+2*k+1}], v[{b+2*k}:{b+2*k+1}], v[{b+4+2*k}:{b+4+2*k+1}]')
    for jj in J3:
        b = RD + 16 * jj
        a.I(f'v_cvt_pk_bf16_f32 v{b+8}, v{b}, v{b+1}')
        a.I(f'v_cvt_pk_bf16_f32 v{b+9}, v{b+2}, v{b+3}')
    a.bg_drain()
    o_flag_if_done('L_OF1')
    for jj in J3:
        b = RD + 16 * jj
        so = f's{S_K1} offen' + (' offset:2048' if jj == 1 else '') if jj < 2 else f's{S_K2} offen'
        tokU = a.I(f'buffer_store_dwordx2 v[{b+8}:{b+9}], v{aSt}, {S(R_WS)}, {so} sc1')
    a.stamp()
    if opt('ufirst', 1):
        a.wait_vm(tokU)
        flag_set(a, S_F4)
        a.I('s_barrier')
    a.stamp()
    a.I('s_branch L_JOIN')

    a.label('L_RED')
    a.vm_issued = vm_at_branch
    a.I(f's_sub_u32 s{S_T1}, s{S_J}, 29')
    a.I(f's_lshl_b32 s{S_T1}, s{S_T1}, 3')
    a.I(f's_add_u32 s{S_T1}, s{S_T1}, s{S_XCD}')
    a.I(f's_mul_i32 s{S_T2}, s{S_W}, 24')
    a.I(f's_add_u32 s{S_T1}, s{S_T1}, s{S_T2}')
    a.I(f's_cmp_ge_u32 s{S_T1}, 68')
    a.I('s_cbranch_scc1 L_RED_DONE')
    a.I(f's_lshl_b32 s{S_K3}, s{S_T1}, 10')
    a.I(f's_add_u32 s{S_K3}, s{S_K3}, {KVP_OFF}')
    vQ = 67
    a.I(f's_mov_b32 s{S_T0}, 69632')
    a.I(f'v_mul_u32_u24 v{vQ}, s{S_T0}, v{l31}')
    a.I(f'v_mul_u32_u24 v{t0}, 1020, v{hh}')
    a.I(f'v_add_u32 v{vQ}, v{vQ}, v{t0}')
    a.I(f's_mov_b32 s{S_SPIN}, 0')
    a.stamp_at(40)
    a.label('L_RPOLL')
    a.I(f'buffer_load_dword v{vPOLL}, v{vQ}, {S(R_WS)}, s{S_K3} offen sc1')
    a.I(f's_add_u32 s{S_SPIN}, s{S_SPIN}, 1')
    a.I(f's_cmp_gt_u32 s{S_SPIN}, 0x8000')
    a.I('s_cbranch_scc1 L_RPASS')
    a.I('s_waitcnt vmcnt(0)')
    a.I(f'v_cmp_eq_u32 vcc, -1, v{vPOLL}')
    a.I('s_cbranch_vccz L_RPASS')
    a.I('s_sleep 2')
    a.I('s_branch L_RPOLL')
    a.label('L_RPASS')
    a.I('s_waitcnt vmcnt(0)')
    a.stamp_at(41)
    a.vm_issued = 0
    a.I(f's_mov_b32 s{S_K2}, s{S_K3}')
    rt = {}
    NRB = 16
    LB = 160

    def rissue(i):
        b = LB + 4 * (i % NRB)
        rt[i] = a.I(f'buffer_load_dwordx4 v[{b}:{b+3}], v{vL16}, {S(R_WS)}, s{S_K2} offen sc1')
        a.I(f's_add_u32 s{S_K2}, s{S_K2}, 69632')

    for i in range(NRB):
        rissue(i)
    for i in range(32):
        a.wait_vm(rt[i])
        b = LB + 4 * (i % NRB)
        for k in range(2):
            if i < 1:
                a.I(f'v_mov_b32 v{2*k}, v{b+2*k}')
                a.I(f'v_mov_b32 v{2*k+1}, v{b+2*k+1}')
            else:
                a.I(f'v_pk_add_f32 v[{2*k}:{2*k+1}], v[{2*k}:{2*k+1}], v[{b+2*k}:{b+2*k+1}]')
        if i + NRB < 32:
            rissue(i + NRB)
    a.I('v_add_f32 v8, v0, v1')
    a.I('v_add_f32 v9, v2, v3')
    a.I('v_cmp_u_f32 vcc, v8, v9')
    a.I('s_cbranch_vccz L_RGOOD')
    a.I(f's_add_u32 s{S_SPIN}, s{S_SPIN}, 0x400')
    a.I(f's_cmp_gt_u32 s{S_SPIN}, 0x8000')
    a.I('s_cbranch_scc0 L_RPASS')
    a.label('L_RGOOD')
    a.stamp_at(42)
    if STAMPS:
        a.I(f'v_writelane_b32 v{vSTAMP}, s{S_SPIN}, 43')
    a.I('v_cvt_pk_bf16_f32 v8, v0, v1')
    a.I('v_cvt_pk_bf16_f32 v9, v2, v3')
    a.I(f's_lshl_b32 s{S_T1}, s{S_T1}, 9')
    a.I(f's_add_u32 s{S_T1}, s{S_T1}, {KVF_OFF}')
    a.I(f'v_lshlrev_b32 v{t0}, 3, v{vL}')
    a.I(f'buffer_store_dwordx2 v[8:9], v{t0}, {S(R_WS)}, s{S_T1} offen sc1')
    a.label('L_RED_DONE')
    for m in range(NTB):
        t_issue(m)
    o_part1()
    a.I('s_waitcnt vmcnt(0)')

    a.label('L_JOIN')
    a.vm_issued = 0
    for k in list(tT):
        tT[k] = -1000
    o_blocking()
    a.stamp()
    for m in range(NTB, TSLOTS):
        t_issue(m)
    XR, BR = 104, 112
    srd(a, R_C, P_B2, 4096)
    a.I(f's_lshl_b32 s{S_T2}, s{S_TB}, 7')
    a.I(f's_mov_b32 s{S_K1}, 32768')
    a.I(f'buffer_load_dwordx4 v[{XR}:{XR+3}], v{vXO}, {S(R_X)}, 0 offen')
    a.I(f'buffer_load_dwordx4 v[{XR+4}:{XR+7}], v{vXO}, {S(R_X)}, s{S_K1} offen')
    a.I(f'buffer_load_ushort v{BR}, v{vBO}, {S(R_C)}, s{S_T2} offen')
    a.I(f'buffer_load_ushort v{BR+1}, v{vBO}, {S(R_C)}, s{S_T2} offen offset:64')
    a.stamp()
    a.collect()

    DEP = 16
    TB_ = 80

    def f_issue(n):
        r = 8 * (n % DEP)
        m = n if n < NP1 else n - NP1
        R_ = R_F1 if n < NP1 else R_F2
        o = (m & 1) * 2048
        a.I(f's_mov_b32 s{S_SOF}, {(m >> 1) * 4096}')
        a.I(f'buffer_load_dwordx4 a[{r}:{r+3}], v{vL16}, {S(R_)}, s{S_SOF} offen offset:{o} sc1')
        tF[n] = a.I(f'buffer_load_dwordx4 a[{r+4}:{r+7}], v{vL16}, {S(R_)}, s{S_SOF} offen offset:{o + 1024} sc1')

    def treads(n):
        b = TB_ + 8 * (n & 1)
        sl = n % TSLOTS
        regs, o = ((vR0, vR1), sl * 2048) if sl < TLO else ((vR2, vR3), (sl - TLO) * 2048)
        L = []
        for cb, ad in enumerate(regs):
            L.append(f'ds_read_b64_tr_b16 v[{b+4*cb}:{b+4*cb+1}], v{ad} offset:{o}')
            L.append(f'ds_read_b64_tr_b16 v[{b+4*cb+2}:{b+4*cb+3}], v{ad} offset:{o + 1024}')
        return L

    FLEAD = opt('flead', 5)

    def e_steps(n0, n1):
        nf = n0
        while nf < min(n1, n0 + FLEAD):
            f_issue(nf)
            nf += 1
        for n in range(n0, n1):
            w = tF[n]
            if n + 1 < NS:
                w = max(w, tT[n + 1])
            a.wait_vm(w)
            a.I('s_waitcnt lgkmcnt(0)')
            R = treads(n + 1) if n + 1 < NS else []
            b = TB_ + 8 * (n & 1)
            r = 8 * (n % DEP)
            k = 0
            for i in range(2):
                for j in range(2):
                    c_first = n == 0
                    if n < NP1:
                        D = 16 * (2 * i + j)
                        c = '0' if c_first else f'v[{D}:{D+15}]'
                        a.I(f'v_mfma_f32_32x32x16_bf16 v[{D}:{D+15}], v[{b+4*i}:{b+4*i+3}], a[{r+4*j}:{r+4*j+3}], {c}')
                    else:
                        D = 16 * (2 * j + i)
                        a.I(f'v_mfma_f32_32x32x16_bf16 v[{D}:{D+15}], a[{r+4*j}:{r+4*j+3}], v[{b+4*i}:{b+4*i+3}], v[{D}:{D+15}]')
                    if k < 2:
                        for t in R[2 * k:2 * k + 2]:
                            a.I(t)
                    if k == 1 and nf < n1:
                        f_issue(nf)
                        nf += 1
                    if k == 2 and n + TSLOTS < NS:
                        t_issue(n + TSLOTS)
                    k += 1

    for t in treads(0):
        a.I(t)
    a.I(f's_lshl_b32 s{S_T1}, s{S_TB}, 7')
    a.I(f's_lshl_b32 s{S_T0}, s{S_W}, 5')
    a.I(f's_add_u32 s{S_T1}, s{S_T1}, s{S_T0}')
    a.I(f's_add_u32 s{S_T1}, s{S_T1}, {FL5_OFF}')
    a.I(f'v_lshlrev_b32 v{vPOFF}, 2, v{l7}')
    flag_wait(a, S_T1, 1, 'L_F5', sleep=opt('slp', 4))
    a.stamp()
    e_steps(0, NP1)
    a.stamp()
    a.I(f's_mul_i32 s{S_T0}, s{S_W}, 7')
    a.I(f's_lshl_b32 s{S_T0}, s{S_T0}, 4')
    a.I(f's_lshl_b32 s{S_T1}, s{S_CG}, 9')
    a.I(f's_add_u32 s{S_T1}, s{S_T1}, s{S_T0}')
    a.I(f's_add_u32 s{S_T1}, s{S_T1}, {FL4_OFF}')
    a.I(f'v_lshlrev_b32 v{vPOFF}, 2, v{l31}')
    flag_wait(a, S_T1, 1, 'L_F4', sleep=opt('slp', 4))
    a.stamp()
    e_steps(NP1, NS)
    a.stamp()
    aW = 64
    srd(a, R_OUT, P_OUT, 2048 * 1024)
    a.I(f's_mul_i32 s{S_T0}, s{S_W}, 17408')
    a.I(f'v_mul_u32_u24 v{aW}, 272, v{l31}')
    a.I(f'v_lshl_add_u32 v{aW}, v{hh}, 4, v{aW}')
    a.I(f'v_add_u32 v{aW}, s{S_T0}, v{aW}')
    a.I('s_barrier')
    for fb in range(2):
        for cb in range(2):
            D = 16 * (2 * fb + cb)
            for q in range(4):
                a.I(f'ds_write_b128 v{aW}, v[{D+4*q}:{D+4*q+3}] offset:{cb * 32 * 272 + fb * 128 + q * 32}')
    XU = 66
    for ps in range(2):
        a.I(f'v_lshlrev_b32 v{BR+ps}, 16, v{BR+ps}')
        for k in range(4):
            x = XR + 4 * ps + k
            a.I(f'v_lshlrev_b32 v{XU+8*ps+2*k}, 16, v{x}')
            a.I(f'v_and_b32 v{XU+8*ps+2*k+1}, 0xffff0000, v{x}')
    for ps in range(2):
        sel = 'op_sel_hi:[1,0]' if ps == 0 else 'op_sel:[0,1] op_sel_hi:[1,1]'
        for k in range(4):
            r = XU + 8 * ps + 2 * k
            a.I(f'v_pk_add_f32 v[{r}:{r+1}], v[{r}:{r+1}], v[{BR}:{BR+1}] {sel}')
    a.I('s_waitcnt lgkmcnt(0)')
    a.I('s_barrier')
    a.stamp()
    a.collect()
    for ps in range(2):
        for p in range(4):
            for hf in range(2):
                b = 32 * ps + 8 * p + 4 * hf
                a.I(f'ds_read_b128 v[{b}:{b+3}], v{aR} offset:{p * 17408 + ps * 8704 + hf * 16}')
    for ps in range(2):
        a.I(f's_waitcnt lgkmcnt({8 - 8 * ps})')
        b = 32 * ps
        for k in range(4):
            a.I(f'v_pk_add_f32 v[{b+2*k}:{b+2*k+1}], v[{b+2*k}:{b+2*k+1}], v[{b+8+2*k}:{b+8+2*k+1}]')
            a.I(f'v_pk_add_f32 v[{b+16+2*k}:{b+16+2*k+1}], v[{b+16+2*k}:{b+16+2*k+1}], v[{b+24+2*k}:{b+24+2*k+1}]')
        for k in range(4):
            a.I(f'v_pk_add_f32 v[{b+2*k}:{b+2*k+1}], v[{b+2*k}:{b+2*k+1}], v[{b+16+2*k}:{b+16+2*k+1}]')
        for k in range(4):
            r = XU + 8 * ps + 2 * k
            a.I(f'v_pk_add_f32 v[{b+2*k}:{b+2*k+1}], v[{b+2*k}:{b+2*k+1}], v[{r}:{r+1}]')
        for k in range(4):
            a.I(f'v_cvt_pk_bf16_f32 v{b+16+k}, v{b+2*k}, v{b+2*k+1}')
        so = '0' if ps == 0 else f's{S_K1}'
        a.I(f'buffer_store_dwordx4 v[{b+16}:{b+19}], v{vXO}, {S(R_OUT)}, {so} offen')
    if STAMPS:
        a.stamp()
        a.I('s_waitcnt vmcnt(0)')
        a.stamp()
        a.stamp(rt=True)
        a.collect()
        a.I('s_lshl_b32 s3, s2, 2')
        a.I(f's_add_u32 s3, s3, s{S_W}')
        a.I('s_lshl_b32 s3, s3, 8')
        a.I(f's_add_u32 s3, s3, {STAMP_OFF}')
        a.I(f'v_lshlrev_b32 v{t0}, 2, v{vL}')
        a.I(f'buffer_store_dword v{vSTAMP}, v{t0}, {S(R_WS)}, s3 offen')
        print('stamps:', a.nstamp)
    if opt('span', 0):
        a.I('s_waitcnt vmcnt(0)')
        a.I('s_memrealtime s[96:97]')
        a.I('s_waitcnt lgkmcnt(0)')
        a.I('s_not_b32 s98, s98')
        a.I(f'v_mov_b32 v0, s96')
        a.I(f'v_mov_b32 v1, s98')
        a.I(f'v_mov_b32 v2, 0')
        a.I('s_mov_b64 exec, 1')
        a.I(f'buffer_atomic_umax v0, v2, {S(R_DBG)}, 0 offen offset:8 sc1')
        a.I(f'buffer_atomic_umax v1, v2, {S(R_DBG)}, 0 offen offset:12 sc1')
    a.label(end)
    a.I('s_endpgm')


HEADER = """; Kernarg layout for this problem (96 bytes, ptrs only, base s[0:1]):
; @launch grid=(256,1,1) block=(256,1,1) lds=163840
.amdgcn_target "amdgcn-amd-amdhsa--gfx950"
"""


def main():
    out = sys.argv[1] if len(sys.argv) > 1 else f'cdna_kernels/{NAME}.s'
    a = K()
    gen(a)
    name = NAME + '_kernel'
    pad = '    s_nop 0\n' * 0
    txt = HEADER + f""".text
.globl {name}
.p2align 8
.type {name},@function
{name}:
{a.text()}{pad}.section .rodata,"a"
.p2align 6
.amdhsa_kernel {name}
  .amdhsa_next_free_vgpr 512
  .amdhsa_next_free_sgpr 102
  .amdhsa_accum_offset 256
  .amdhsa_group_segment_fixed_size 0
  .amdhsa_kernarg_size 96
  .amdhsa_user_sgpr_count 2
  .amdhsa_user_sgpr_kernarg_segment_ptr 1
  .amdhsa_system_sgpr_workgroup_id_x 1
  .amdhsa_float_denorm_mode_32 3
.end_amdhsa_kernel
"""
    open(out, 'w').write(txt)
    print('wrote', out, len(txt), 'bytes')


if __name__ == '__main__':
    main()
```

```python
import sys
import os
import math
import struct
sys.path.insert(0, os.path.dirname(os.path.abspath(__file__)))
from asmlib import Asm

NAME = 'parallel_sum__linear_kernel_hedgehog__mixer_token_mlp__prompt'
OPT = dict(kv.split('=') for kv in os.environ.get('OPT', '').split(',') if kv)


def opt(k, d):
    return int(OPT.get(k, d))


def f32bits(x):
    return struct.unpack('<I', struct.pack('<f', x))[0]


MB = 1 << 20
HF_OFF = 0
KVP_OFF = 8 * MB
KVP_STRIDE = 1088
KVF_OFF = 11 * MB
UF_OFF = 12 * MB
UF_DT = 88 * 2048
OF_OFF = 14 * MB
FL4_OFF = 11 * MB + 131072
FL5_OFF = 11 * MB + 196608
FLK_OFF = 11 * MB + 262144
STAMP_OFF = 20 * MB
WS_USED = 24 * MB

LOG2E = 0x3fb8aa3b
ONES = 0x3f803f80
GK1 = f32bits(-2.0 * math.sqrt(2.0 / math.pi) * math.log2(math.e))
GK2 = f32bits(-2.0 * math.sqrt(2.0 / math.pi) * math.log2(math.e) * 0.044715)
STAMPS = os.environ.get('STAMPS', '0') == '1'

P_X, P_WQKV, P_WPHI, P_WO, P_BX, P_W1, P_B1, P_W2, P_B2, P_OUT, P_DBG, P_WS = [4 + 2 * i for i in range(12)]
R_X, R_W, R_W1, R_WS, R_HF, R_TMP, R_DBG, R_OUT = 28, 32, 36, 40, 44, 48, 52, 56
(S_W, S_TB, S_CG, S_IA, S_T0, S_T1, S_T2, S_XW, S_WW, S_SOX, S_SOW0, S_SOW1, S_XCD, S_J, S_DT, S_FT,
 S_K1, S_K2, S_K3, S_L2E, S_SPIN, S_LW, S_LW2, S_SPARE) = range(60, 84)
S_EXEC = 84
S_SOT, S_SOF, S_KP, S_CNT = 86, 87, 88, 89
S_HD0, S_KF, S_OD = S_IA, S_XW, S_WW
S_CW, S_CROW = 12, 13
S_KB0 = S_SOW1
S_STAMP = 90

XS0, WS0 = 0, 40960
def XS(slot): return XS0 + slot * 8192
def WSL(slot): return WS0 + slot * 24576
HS = XS(4)
WPHI_L = WSL(4) + 22 * 1024
EP = WSL(3)
EP_CS, EP_ST, EP_PK, EP_VV = 155648, 156672, EP + 2048, EP + 2048 + 16384
NTC = 6
TLO = 13
TSLOTS = 20
CRED = 106496

vL, l31, hh, i16, gq, r4, c4, l3, l7 = range(144, 153)
t0, t1, t2 = 153, 154, 155
vAX, vL16, vPOLL, vPOFF = 156, 157, 158, 159
PHQ = 232
vFL = 248
vCF = 249
vSTAMP = 255
vKP = 156
vDUM = 128


class K(Asm):
    def __init__(self):
        super().__init__()
        self.pending = []
        self.nstamp = 0

    def stamp(self, rt=False):
        if not STAMPS:
            return
        slot = len(self.pending)
        assert slot < 6
        r = S_STAMP + 2 * slot
        self.I(f's_memrealtime s[{r}:{r+1}]' if rt else f's_memtime s[{r}:{r+1}]')
        self.pending.append((self.nstamp, r))
        self.nstamp += 1

    def stamp_at(self, idx):
        if not STAMPS:
            return
        self.I('s_memtime s[100:101]')
        self.I('s_waitcnt lgkmcnt(0)')
        self.I(f'v_writelane_b32 v{vSTAMP}, s100, {idx}')

    def collect(self):
        if not STAMPS or not self.pending:
            return
        self.I('s_waitcnt lgkmcnt(0)')
        for idx, r in self.pending:
            self.I(f'v_writelane_b32 v{vSTAMP}, s{r}, {idx}')
        self.pending = []


def srd(a, d, ptr, nbytes, off_sgpr=None, off_imm=0):
    a.lock()
    if off_sgpr is None and off_imm == 0:
        a.I(f's_mov_b32 s{d}, s{ptr}')
        a.I(f's_mov_b32 s{d+1}, s{ptr+1}')
    elif off_sgpr is not None:
        a.I(f's_add_u32 s{d}, s{ptr}, s{off_sgpr}')
        a.I(f's_addc_u32 s{d+1}, s{ptr+1}, 0')
        assert off_imm == 0
    else:
        a.I(f's_add_u32 s{d}, s{ptr}, {off_imm}')
        a.I(f's_addc_u32 s{d+1}, s{ptr+1}, 0')
    a.I(f's_mov_b32 s{d+2}, {nbytes}')
    a.I(f's_mov_b32 s{d+3}, 0x20000')
    a.unlock()


def S(r):
    return f's[{r}:{r+3}]'


def bf16_round(a, dst, src):
    a.I(f'v_cvt_pk_bf16_f32 v{dst}, v{src}, v{src}')
    a.I(f'v_and_b32 v{dst}, 0xffff0000, v{dst}')


def ln_scalars(a, vsum, vsq, vm, vrs, t):
    a.I(f'v_mul_f32 v{vsum}, 0x3b000000, v{vsum}')
    a.I(f'v_mul_f32 v{vsq}, 0x3b000000, v{vsq}')
    a.I(f'v_fma_f32 v{vsq}, -v{vsum}, v{vsum}, v{vsq}')
    a.I(f'v_max_f32 v{vsq}, 0, v{vsq}')
    bf16_round(a, vm, vsum)
    bf16_round(a, t, vsq)
    a.I(f'v_add_f32 v{t}, 0x3727c5ac, v{t}')
    bf16_round(a, t, t)
    a.I(f'v_sqrt_f32 v{t}, v{t}')
    bf16_round(a, t, t)
    a.I(f'v_rcp_f32 v{vrs}, v{t}')


def reduce32(a, regs, tmps):
    for ctl in ('quad_perm:[1,0,3,2]', 'quad_perm:[2,3,0,1]', 'row_half_mirror', 'row_mirror'):
        for r in regs:
            a.I(f'v_add_f32_dpp v{r}, v{r}, v{r} {ctl} row_mask:0xf bank_mask:0xf')
    for r, t in zip(regs, tmps):
        a.I(f'v_mov_b32 v{t}, v{r}')
    for r, t in zip(regs, tmps):
        a.I(f'v_permlane16_swap_b32 v{r}, v{t}')
    for r, t in zip(regs, tmps):
        a.I(f'v_add_f32 v{r}, v{r}, v{t}')


def softmax2(a, Ps, T, OUTs, mid=None):
    U = [(P, T + 4 * u, O) for u, (P, O) in enumerate(zip(Ps, OUTs))]
    for step in range(4):
        for P, Tb, _ in U:
            for t, b in ((Tb, P), (Tb + 1, P + 8)):
                if step == 0:
                    a.I(f'v_max3_f32 v{t}, v{b}, v{b+1}, v{b+2}')
                elif step < 3:
                    a.I(f'v_max3_f32 v{t}, v{t}, v{b+1+2*step}, v{b+2+2*step}')
                else:
                    a.I(f'v_max_f32 v{t}, v{t}, v{b+7}')
    for P, Tb, _ in U:
        a.I(f'v_permlane32_swap_b32 v{Tb}, v{Tb+1}')
    for P, Tb, _ in U:
        a.I(f'v_max_f32 v{Tb+2}, v{Tb}, v{Tb+1}')
    for P, Tb, _ in U:
        a.I(f'v_mul_f32 v{Tb+2}, s{S_L2E}, v{Tb+2}')
    for P, Tb, _ in U:
        a.I(f'v_mov_b32 v{Tb+3}, v{Tb+2}')
    for P, Tb, _ in U:
        a.I(f'v_permlane32_swap_b32 v{Tb+2}, v{Tb+3}')
    for P, Tb, _ in U:
        for i in range(16):
            m = Tb + 2 if i < 8 else Tb + 3
            a.I(f'v_fma_f32 v{P+i}, v{P+i}, s{S_L2E}, -v{m}')
            a.I(f'v_exp_f32 v{P+i}, v{P+i}') if False else None
    for P, Tb, _ in U:
        for i in range(16):
            a.I(f'v_exp_f32 v{P+i}, v{P+i}')
    if mid:
        mid()
    for P, Tb, O in U:
        for hlf in range(2):
            b = P + 8 * hlf
            o = O + 4 * hlf
            a.I(f'v_pk_add_f32 v[{o}:{o+1}], v[{b}:{b+1}], v[{b+2}:{b+3}]')
            a.I(f'v_pk_add_f32 v[{o+2}:{o+3}], v[{b+4}:{b+5}], v[{b+6}:{b+7}]')
    for P, Tb, O in U:
        for hlf in range(2):
            o = O + 4 * hlf
            a.I(f'v_pk_add_f32 v[{o}:{o+1}], v[{o}:{o+1}], v[{o+2}:{o+3}]')
    for P, Tb, O in U:
        for hlf in range(2):
            o = O + 4 * hlf
            a.I(f'v_add_f32 v{Tb+hlf}, v{o}, v{o+1}')
    for P, Tb, _ in U:
        a.I(f'v_permlane32_swap_b32 v{Tb}, v{Tb+1}')
    for P, Tb, _ in U:
        a.I(f'v_add_f32 v{Tb+2}, v{Tb}, v{Tb+1}')
    for P, Tb, _ in U:
        a.I(f'v_rcp_f32 v{Tb+2}, v{Tb+2}')
    for P, Tb, _ in U:
        a.I(f'v_mov_b32 v{Tb+3}, v{Tb+2}')
    for P, Tb, _ in U:
        a.I(f'v_permlane32_swap_b32 v{Tb+2}, v{Tb+3}')
    for P, Tb, _ in U:
        for i in range(8):
            sel = 'op_sel:[0,0] op_sel_hi:[1,0]' if i < 4 else 'op_sel:[0,1] op_sel_hi:[1,1]'
            a.I(f'v_pk_mul_f32 v[{P+2*i}:{P+2*i+1}], v[{P+2*i}:{P+2*i+1}], v[{Tb+2}:{Tb+3}] {sel}')
    for P, Tb, O in U:
        for i in range(8):
            a.I(f'v_cvt_pk_bf16_f32 v{O+i}, v{P+2*i}, v{P+2*i+1}')


def publish(a, soff_sgpr_or_imm, name):
    a.lock()
    a.I('s_barrier')
    a.I(f's_cmp_lg_u32 s{S_W}, 0')
    a.I(f's_cbranch_scc1 {name}')
    save = a.vm_issued
    a.I(f'v_mov_b32 v{vPOLL}, 1')
    a.I(f'v_mov_b32 v{vPOFF}, 0')
    a.I('s_mov_b64 exec, 1')
    a.I(f'buffer_atomic_add v{vPOLL}, v{vPOFF}, {S(R_DBG)}, {soff_sgpr_or_imm} offen sc1')
    a.I('s_mov_b64 exec, -1')
    a.vm_issued = save
    a.label(name)
    a.unlock()


def poll_issue(a, soff):
    return a.I(f'buffer_load_dword v{vPOLL}, v{vPOFF}, {S(R_DBG)}, {soff} offen sc1')


def poll_check(a, tok, soff, expected, name, sleep=4):
    a.lock()
    if tok is None:
        a.I('s_waitcnt vmcnt(0)')
    else:
        a.wait_vm(tok)
    a.I(f'v_cmp_gt_u32 vcc, {expected}, v{vPOLL}')
    a.I(f's_cbranch_vccz {name}_OK')
    a.I(f's_mov_b32 s{S_SPIN}, 0')
    a.label(name + '_SPIN')
    save = a.vm_issued
    a.I(f's_sleep {sleep}')
    a.I(f'buffer_load_dword v{vPOLL}, v{vPOFF}, {S(R_DBG)}, {soff} offen sc1')
    a.I(f's_add_u32 s{S_SPIN}, s{S_SPIN}, 1')
    a.I(f's_cmp_gt_u32 s{S_SPIN}, 0x20000')
    a.I(f's_cbranch_scc1 {name}_OK')
    a.I('s_waitcnt vmcnt(0)')
    a.I(f'v_cmp_gt_u32 vcc, {expected}, v{vPOLL}')
    a.I(f's_cbranch_vccnz {name}_SPIN')
    a.vm_issued = save
    a.label(name + '_OK')
    a.unlock()


def wg_wait(a, soff, expected, name, voff_expr=None, sleep=4):
    a.lock()
    a.I(f's_cmp_lg_u32 s{S_W}, 0')
    a.I(f's_cbranch_scc1 {name}_B')
    save = a.vm_issued
    a.I(voff_expr if voff_expr else f'v_mov_b32 v{vPOFF}, 0')
    poll_issue(a, soff)
    poll_check(a, None, soff, expected, name, sleep)
    a.vm_issued = save
    a.label(name + '_B')
    a.I('s_barrier')
    a.unlock()


def flag_set(a, k):
    a.lock()
    a.I(f'v_mov_b32 v{vPOLL}, 0')
    a.I(f's_mov_b64 exec, {1 << k}')
    a.I(f'buffer_store_dword v{vPOLL}, v{vFL}, {S(R_WS)}, 0 offen sc1')
    a.I('s_mov_b64 exec, -1')
    a.unlock()


def flag_wait(a, soff, name, sleep=4, tok=None):
    a.lock()
    if tok is not None:
        a.wait_vm(tok)
        a.I(f'v_cmp_ne_u32 vcc, 0, v{vPOLL}')
        a.I(f's_cbranch_vccz {name}_OK')
    save = a.vm_issued
    a.I(f's_mov_b32 s{S_SPIN}, 0')
    a.label(name)
    a.I(f'buffer_load_dword v{vPOLL}, v{vPOFF}, {S(R_WS)}, s{soff} offen sc1')
    a.I(f's_add_u32 s{S_SPIN}, s{S_SPIN}, 1')
    a.I(f's_cmp_gt_u32 s{S_SPIN}, 0x20000')
    a.I(f's_cbranch_scc1 {name}_OK')
    a.I('s_waitcnt vmcnt(0)')
    a.I(f'v_cmp_ne_u32 vcc, 0, v{vPOLL}')
    a.I(f's_cbranch_vccz {name}_OK')
    a.I(f's_sleep {sleep}')
    a.I(f's_branch {name}')
    a.vm_issued = save
    a.label(name + '_OK')
    a.unlock()


def gen(a):
    NSH = opt('nsh', 8)
    end = 'L_END'
    a.I('s_cmp_ge_u32 s2, 256')
    a.I(f's_cbranch_scc1 {end}')
    a.I('s_load_dwordx16 s[4:19], s[0:1], 0')
    a.I('s_load_dwordx8 s[20:27], s[0:1], 64')
    a.stamp(rt=True)
    a.stamp()
    if opt('codepf', 1):
        a.raw('L_PC:')
        a.I(f's_getpc_b64 s[{R_TMP}:{R_TMP+1}]')
        a.I(f's_mov_b32 s{R_TMP+2}, L_END-L_PC')
        a.I(f's_mov_b32 s{R_TMP+3}, 0x20000')
        a.I('s_bfe_u32 s3, s2, 0x20003')
        a.I('s_lshl_b32 s3, s3, 13')
        a.I(f'v_lshlrev_b32 v{t0}, 5, v0')
        a.I(f'v_and_b32 v{t0}, 0x1f80, v{t0}')
        a.I(f'buffer_load_dword v{vDUM}, v{t0}, {S(R_TMP)}, s3 offen')
    ACC, CSA, XSUM, GRAM, VONE = 0, 48, 60, 64, 68
    FR, AUXE, AUXO, PHI = 72, 104, 112, 120
    vXD0, vXD1, vWD = 129, 130, 131
    vXA, vWA, vCA, vSA = 132, 136, 139, 142
    vH = 160

    a.I(f'v_and_b32 v{vL}, 63, v0')
    a.I(f'v_lshrrev_b32 v{t0}, 6, v0')
    a.I(f'v_readfirstlane_b32 s{S_W}, v{t0}')
    a.I(f's_and_b32 s{S_XCD}, s2, 7')
    a.I(f's_lshr_b32 s{S_J}, s2, 3')
    a.I(f's_lshl_b32 s{S_IA}, s{S_XCD}, 5')
    a.I(f's_add_u32 s{S_IA}, s{S_IA}, s{S_J}')
    a.I(f's_lshr_b32 s{S_TB}, s{S_XCD}, 1')
    a.I(f's_lshl_b32 s{S_TB}, s{S_TB}, 3')
    a.I(f's_lshr_b32 s{S_T2}, s{S_J}, 2')
    a.I(f's_add_u32 s{S_TB}, s{S_TB}, s{S_T2}')
    a.I(f's_and_b32 s{S_CG}, s{S_XCD}, 1')
    a.I(f's_lshl_b32 s{S_CG}, s{S_CG}, 2')
    a.I(f's_and_b32 s{S_T2}, s{S_J}, 3')
    a.I(f's_add_u32 s{S_CG}, s{S_CG}, s{S_T2}')
    a.I(f's_lshl_b32 s{S_XW}, s{S_W}, 11')
    a.I(f's_mul_i32 s{S_WW}, s{S_W}, 6144')
    a.I(f's_mov_b32 s{S_L2E}, {LOG2E}')
    a.I(f'v_and_b32 v{l31}, 31, v{vL}')
    a.I(f'v_lshrrev_b32 v{hh}, 5, v{vL}')
    a.I(f'v_lshlrev_b32 v{vAX}, 10, v{hh}')
    a.I(f'v_lshl_add_u32 v{vAX}, v{l31}, 4, v{vAX}')
    a.I(f'v_lshlrev_b32 v{vL16}, 4, v{vL}')
    a.I(f'v_and_b32 v{i16}, 15, v{vL}')
    a.I(f'v_lshrrev_b32 v{gq}, 4, v{vL}')
    a.I(f'v_bfe_u32 v{r4}, v{vL}, 2, 2')
    a.I(f'v_and_b32 v{c4}, 3, v{vL}')
    a.I(f'v_lshrrev_b32 v{l3}, 3, v{vL}')
    a.I(f'v_and_b32 v{l7}, 7, v{vL}')
    vpW, vpX = vH + 28, vH + 29
    S_PX, S_PW = S_K1, S_K2
    a.I(f's_lshr_b32 s{S_PX}, s{S_XCD}, 1')
    a.I(f's_lshl_b32 s{S_PX}, s{S_PX}, 19')
    a.I(f's_lshl_b32 s{S_T2}, s{S_J}, 14')
    a.I(f's_add_u32 s{S_PX}, s{S_PX}, s{S_T2}')
    a.I(f's_lshl_b32 s{S_T2}, s{S_W}, 12')
    a.I(f's_add_u32 s{S_PX}, s{S_PX}, s{S_T2}')
    a.I(f'v_lshlrev_b32 v{vpX}, 10, v{r4}')
    a.I(f'v_lshl_add_u32 v{vpX}, v{c4}, 7, v{vpX}')
    a.I(f'v_and_b32 v{vpW}, 1, v{gq}')
    a.I(f'v_mul_u32_u24 v{vpW}, 3072, v{vpW}')
    a.I(f'v_min_u32 v{t0}, 2, v{r4}')
    a.I(f'v_lshl_add_u32 v{vpW}, v{t0}, 10, v{vpW}')
    a.I(f'v_lshl_add_u32 v{vpW}, v{c4}, 7, v{vpW}')
    a.I(f's_mul_i32 s{S_PW}, s{S_J}, {8 * 3072}')
    a.I(f's_add_u32 s{S_PW}, s{S_PW}, s{S_WW}')
    a.I(f's_and_b32 s{S_T2}, s{S_XCD}, 1')
    a.I(f's_lshl_b32 s{S_T2}, s{S_T2}, 9')
    a.I(f's_add_u32 s{S_PW}, s{S_PW}, s{S_T2}')
    a.I(f's_add_u32 s{S_K3}, s{S_PW}, {256 * 3072}')
    a.I(f's_lshl_b32 s{S_T0}, s{S_IA}, 13')
    a.I(f's_add_u32 s{S_T0}, s{S_T0}, s{S_XW}')
    a.I('s_waitcnt lgkmcnt(0)')
    srd(a, R_X, P_X, 2048 * 1024)
    a.I(f'buffer_load_dwordx4 v[{vH}:{vH+3}], v{vAX}, {S(R_X)}, s{S_T0} offen')
    tokAX = a.I(f'buffer_load_dwordx4 v[{vH+4}:{vH+7}], v{vAX}, {S(R_X)}, s{S_T0} offen offset:512')
    srd(a, R_W, P_WQKV, 512 * 3072)

    def coop(hf):
        a.I(f'buffer_load_dword v{vDUM}, v{vpW}, {S(R_W)}, s{S_PW if hf == 0 else S_K3} offen')
        a.I(f'buffer_load_dword v{vDUM}, v{vpX}, {S(R_X)}, s{S_PX} offen' + (' offset:512' if hf else ''))

    COOP = opt('coop', 1)
    if COOP in (1, 3):
        coop(0)
    if COOP == 3:
        coop(1)
    srd(a, R_TMP, P_WPHI, 16384)
    a.I(f's_and_b32 s{S_T1}, s{S_W}, 1')
    a.I(f's_lshl_b32 s{S_T1}, s{S_T1}, 10')
    a.I(f's_lshl_b32 s{S_T0}, s{S_CG}, 11')
    a.I(f's_add_u32 s{S_T0}, s{S_T0}, s{S_T1}')
    a.I(f's_add_u32 m0, s{S_T1}, {WPHI_L}')
    a.I(f'buffer_load_dwordx4 v{vL16}, {S(R_TMP)}, s{S_T0} offen lds')
    srd(a, R_WS, P_WS, WS_USED)
    srd(a, R_DBG, P_DBG, 256)

    a.I(f's_lshl_b32 s{S_T0}, s{S_TB}, 16')
    a.I(f's_lshl_b32 s{S_T1}, s{S_W}, 14')
    a.I(f's_add_u32 s{S_T0}, s{S_T0}, s{S_T1}')
    a.I(f'v_xor_b32 v{t0}, v{l7}, v{gq}')
    a.I(f'v_lshlrev_b32 v{t0}, 4, v{t0}')
    a.I(f'v_lshl_add_u32 v{t0}, v{l3}, 10, v{t0}')
    a.I(f'v_add_u32 v{vXD0}, s{S_T0}, v{t0}')
    a.I(f'v_xor_b32 v{vXD1}, 64, v{vXD0}')
    a.I(f'v_add_u32 v{vXD1}, {8192 - 1024}, v{vXD1}')
    a.I(f's_mul_i32 s{S_T0}, s{S_W}, {16 * 3072}')
    a.I(f's_lshl_b32 s{S_T1}, s{S_CG}, 7')
    a.I(f's_add_u32 s{S_T0}, s{S_T0}, s{S_T1}')
    a.I(f'v_and_b32 v{t0}, 1, v{gq}')
    a.I(f'v_lshlrev_b32 v{t0}, 2, v{t0}')
    a.I(f'v_xor_b32 v{t0}, v{l7}, v{t0}')
    a.I(f'v_lshlrev_b32 v{t0}, 4, v{t0}')
    a.I(f'v_mul_u32_u24 v{t1}, 3072, v{l3}')
    a.I(f'v_add3_u32 v{vWD}, v{t0}, v{t1}, s{S_T0}')

    stage_tok = {}
    npend = {}
    total_q = [0]

    def bgq(it):
        a.bg_add(it)
        total_q[0] += 1

    def queue_stage(st, extra=None):
        slot = st % 4

        def x_item(p):
            def f():
                a.I(f's_mov_b32 s{S_SOX}, {st * 128}')
                a.I(f's_add_u32 m0, s{S_XW}, {XS(slot)}')
                if p == 0:
                    a.I(f'buffer_load_dwordx4 v{vXD0}, {S(R_X)}, s{S_SOX} offen lds')
                else:
                    a.I(f'buffer_load_dwordx4 v{vXD1}, {S(R_X)}, s{S_SOX} offen offset:1024 lds')
            return f

        def w_item(p, seg):
            def f():
                a.I(f's_mov_b32 s{S_SOW0}, {st * 196608 + p * 24576}')
                a.I(f's_add_u32 m0, s{S_WW}, {WSL(slot) + p * 3072}')
                off = f' offset:{seg * 1024}' if seg else ''
                stage_tok[st] = a.I(f'buffer_load_dwordx4 v{vWD}, {S(R_W)}, s{S_SOW0} offen{off} lds')
            return f
        items = [x_item(0), x_item(1)] + [w_item(p, seg) for p in range(2) for seg in range(3)]
        for it in items:
            bgq(it)
        mark = total_q[0]
        npend[st] = lambda: total_q[0] - mark
        for it in (extra or []):
            bgq(it)

    def need_stage(st):
        while len(a.bg) > npend[st]():
            a.bg_emit(1)

    a.I(f's_and_b32 s{S_T0}, s{S_W}, 1')
    a.I(f's_lshr_b32 s{S_T1}, s{S_W}, 1')
    a.I(f'v_bfe_u32 v{t0}, v{vL}, 1, 3')
    a.I(f'v_xor_b32 v{t0}, v{t0}, v{hh}')
    a.I(f'v_lshlrev_b32 v{t0}, 4, v{t0}')
    a.I(f'v_lshl_add_u32 v{t0}, v{l31}, 7, v{t0}')
    a.I(f's_lshl_b32 s{S_T2}, s{S_T0}, 12')
    a.I(f'v_add_u32 v{vXA}, s{S_T2}, v{t0}')
    for ks in range(1, 4):
        a.I(f'v_xor_b32 v{vXA+ks}, {ks * 32}, v{vXA}')
    a.I(f'v_bfe_u32 v{t0}, v{vL}, 3, 1')
    a.I(f'v_lshlrev_b32 v{t0}, 2, v{t0}')
    a.I(f'v_and_b32 v{t1}, 1, v{vL}')
    a.I(f'v_lshlrev_b32 v{t1}, 3, v{t1}')
    a.I(f'v_lshl_add_u32 v{t1}, v{r4}, 7, v{t1}')
    a.I(f'v_bfe_u32 v{t2}, v{vL}, 4, 1')
    a.I(f'v_lshlrev_b32 v{t2}, 1, v{t2}')
    a.I(f'v_bfe_u32 v{vWA}, v{vL}, 1, 1')
    a.I(f'v_add_u32 v{t2}, v{t2}, v{vWA}')
    a.I(f's_lshl_b32 s{S_T2}, s{S_T1}, 2')
    a.I(f'v_add_u32 v{t2}, s{S_T2}, v{t2}')
    a.I(f'v_xor_b32 v{t2}, v{t2}, v{t0}')
    a.I(f'v_lshl_add_u32 v{t2}, v{t2}, 4, v{t1}')
    a.I(f'v_mul_u32_u24 v{vWA}, 3072, v{hh}')
    a.I(f'v_add_u32 v{t2}, v{t2}, v{vWA}')
    for b in range(2):
        a.I(f'v_add_u32 v{vWA+b}, {WS0 + b * 49152}, v{t2}')
    a.I(f'v_bfe_u32 v{t2}, v{vL}, 1, 1')
    a.I(f's_lshl_b32 s{S_T2}, s{S_W}, 1')
    a.I(f'v_add_u32 v{t2}, s{S_T2}, v{t2}')
    a.I(f'v_xor_b32 v{t2}, v{t2}, v{t0}')
    a.I(f'v_lshl_add_u32 v{t2}, v{t2}, 4, v{t1}')
    a.I(f'v_mul_u32_u24 v{vCA}, 3072, v{gq}')
    a.I(f'v_add_u32 v{t2}, v{t2}, v{vCA}')
    for b in range(2):
        a.I(f'v_add_u32 v{vCA+b}, {WS0 + b * 49152}, v{t2}')
    a.I(f'v_bfe_u32 v{t0}, v{vL}, 1, 3')
    a.I(f'v_xor_b32 v{t0}, v{t0}, v{gq}')
    a.I(f'v_lshlrev_b32 v{t0}, 4, v{t0}')
    a.I(f'v_lshl_add_u32 v{t0}, v{i16}, 7, v{t0}')
    a.I(f'v_add_u32 v{vSA}, s{S_XW}, v{t0}')
    a.I(f'v_xor_b32 v{vSA+1}, 64, v{vSA}')
    for i in range(4):
        a.I(f'v_mov_b32 v{VONE+i}, {ONES}')

    X = vH
    sm, sq, vm, vrs, tt, tt2_ = vH + 8, vH + 9, vH + 10, vH + 11, vH + 12, vH + 13
    U = vH + 32
    aHW0, aHW1 = vH + 14, vH + 15
    aH0, aH1, aST, aPH, vSG, vpW1 = vH + 16, vH + 17, vH + 19, vH + 20, vH + 21, vH + 22
    a.I(f's_lshl_b32 s{S_T0}, s{S_W}, 1')
    a.I(f'v_add_u32 v{t0}, s{S_T0}, v{hh}')
    a.I(f'v_and_b32 v{t1}, 3, v{t0}')
    a.I(f'v_lshlrev_b32 v{t1}, 6, v{t1}')
    a.I(f'v_lshl_add_u32 v{t1}, v{l31}, 4, v{t1}')
    a.I(f'v_lshl_add_u32 v{aHW0}, v{t0}, 10, v{t1}')
    a.I(f'v_add_u32 v{t1}, 512, v{t1}')
    a.I(f'v_and_b32 v{t1}, 1023, v{t1}')
    a.I(f'v_lshl_add_u32 v{aHW1}, v{t0}, 10, v{t1}')
    a.I(f'v_lshlrev_b32 v{t0}, 5, v{gq}')
    a.I(f'v_lshl_add_u32 v{t0}, v{c4}, 3, v{t0}')
    a.I(f's_lshl_b32 s{S_T0}, s{S_W}, 8')
    a.I(f'v_lshl_add_u32 v{t1}, v{r4}, 6, v{t0}')
    a.I(f'v_add_u32 v{t1}, s{S_T0}, v{t1}')
    a.I(f'v_add_u32 v{t2}, 128, v{t1}')
    a.I(f'v_and_b32 v{t1}, 1023, v{t1}')
    a.I(f'v_and_b32 v{t2}, 1023, v{t2}')
    a.I(f'v_lshl_add_u32 v{aH0}, v{r4}, 10, v{t1}')
    a.I(f'v_lshl_add_u32 v{aH1}, v{r4}, 10, v{t2}')
    a.I(f's_and_b32 s{S_T0}, s{S_IA}, 3')
    a.I(f's_lshl_b32 s{S_T0}, s{S_T0}, 8')
    a.I(f's_lshr_b32 s{S_T1}, s{S_IA}, 2')
    a.I(f's_lshl_b32 s{S_T1}, s{S_T1}, 10')
    a.I(f's_add_u32 s{S_T0}, s{S_T0}, s{S_T1}')
    a.I(f'v_lshlrev_b32 v{aST}, 16, v{gq}')
    a.I(f'v_lshl_add_u32 v{aST}, v{i16}, 4, v{aST}')
    a.I(f'v_add_u32 v{aST}, s{S_T0}, v{aST}')
    a.I(f'v_lshl_add_u32 v{aPH}, v{hh}, 2, v{r4}')
    a.I(f'v_lshlrev_b32 v{aPH}, 5, v{aPH}')
    a.I(f'v_lshl_add_u32 v{aPH}, v{c4}, 3, v{aPH}')
    a.I(f's_lshr_b32 s{S_T0}, s{S_W}, 1')
    a.I(f's_lshl_b32 s{S_T0}, s{S_T0}, 10')
    a.I(f's_add_u32 s{S_T0}, s{S_T0}, {WPHI_L}')
    a.I(f'v_add_u32 v{aPH}, s{S_T0}, v{aPH}')
    a.I(f'v_bfe_u32 v{vSG}, v{vL}, 4, 1')
    a.I(f'v_mul_u32_u24 v{vSG}, 0x8000, v{vSG}')
    a.I(f'v_lshl_or_b32 v{vSG}, v{vSG}, 16, v{vSG}')
    a.I(f's_lshl_b32 s{S_T2}, s{S_CG}, 2')
    a.I(f's_add_u32 s{S_T2}, s{S_T2}, s{S_W}')
    a.I(f's_lshl_b32 s{S_T0}, s{S_TB}, 5')
    a.I(f's_add_u32 s{S_KP}, s{S_T2}, s{S_T0}')
    a.I(f's_lshl_b32 s{S_SOT}, s{S_KP}, 2')
    a.I(f's_add_u32 s{S_SOT}, s{S_SOT}, {FL5_OFF}')
    a.I(f's_mul_i32 s{S_KP}, s{S_KP}, {KVP_STRIDE}')
    a.I(f's_add_u32 s{S_KP}, s{S_KP}, {KVP_OFF}')
    a.I(f'v_mul_u32_u24 v{vKP}, 17, v{hh}')
    a.I(f'v_add_lshl_u32 v{vKP}, v{vKP}, v{l31}, 4')
    a.I(f's_lshl_b32 s{S_T2}, s{S_T2}, 5')
    a.I(f's_add_u32 s{S_T2}, s{S_T2}, s{S_TB}')
    a.I(f's_lshl_b32 s{S_T2}, s{S_T2}, 2')
    a.I(f's_add_u32 s{S_T2}, s{S_T2}, {FLK_OFF}')
    a.I(f'v_mov_b32 v{vFL}, {FLK_OFF + 8192}')
    a.I(f'v_writelane_b32 v{vFL}, s{S_T2}, 0')
    a.I(f'v_writelane_b32 v{vFL}, s{S_SOT}, 2')
    a.I(f's_mul_i32 s{S_T0}, s{S_XCD}, 31')
    a.I(f's_add_u32 s{S_T0}, s{S_T0}, s{S_J}')
    a.I(f's_lshl_b32 s0, s{S_T0}, 2')
    a.I(f's_add_u32 s0, s0, s{S_W}')
    a.I(f's_mul_i32 s0, s0, {48 * 128}')
    a.I(f's_add_u32 s1, s0, {24 * 128}')
    a.I(f's_mov_b32 s{S_SPARE}, -1')
    a.I(f's_sub_u32 s{S_T1}, s{S_T0}, {242 - 8}')
    a.I(f's_cmp_ge_u32 s{S_T0}, 242')
    a.I(f's_cselect_b32 s{S_SPARE}, s{S_T1}, s{S_SPARE}')
    a.I(f's_cmp_eq_u32 s{S_J}, 31')
    a.I(f's_cselect_b32 s{S_SPARE}, s{S_XCD}, s{S_SPARE}')
    a.I(f's_mul_i32 s{S_FT}, s{S_T0}, 10923')
    a.I(f's_lshr_b32 s{S_FT}, s{S_FT}, 16')
    a.I(f's_mul_i32 s{S_T1}, s{S_FT}, 6')
    a.I(f's_sub_u32 s{S_DT}, s{S_T0}, s{S_T1}')
    a.I(f's_sub_u32 s{S_T0}, s{S_T0}, 132')
    a.I(f's_mul_i32 s{S_T1}, s{S_T0}, 13108')
    a.I(f's_lshr_b32 s{S_T1}, s{S_T1}, 16')
    a.I(f's_mul_i32 s{S_T2}, s{S_T1}, 5')
    a.I(f's_sub_u32 s{S_T2}, s{S_T0}, s{S_T2}')
    a.I(f's_add_u32 s{S_T2}, s{S_T2}, 6')
    a.I(f's_cmp_ge_i32 s{S_T0}, 0')
    a.I(f's_cselect_b32 s{S_FT}, s{S_T1}, s{S_FT}')
    a.I(f's_cselect_b32 s{S_DT}, s{S_T2}, s{S_DT}')
    a.I(f's_cmp_lg_u32 s{S_SPARE}, -1')
    a.I(f's_cselect_b32 s{S_FT}, 0, s{S_FT}')
    a.I(f's_cselect_b32 s{S_DT}, 11, s{S_DT}')
    a.I(f's_mul_i32 s{S_T0}, s{S_DT}, 88')
    a.I(f's_lshl_b32 s{S_T1}, s{S_FT}, 2')
    a.I(f's_add_u32 s{S_T0}, s{S_T0}, s{S_T1}')
    a.I(f's_add_u32 s{S_T0}, s{S_T0}, s{S_W}')
    a.I(f's_lshl_b32 s{S_T0}, s{S_T0}, 2')
    a.I(f's_add_u32 s{S_T0}, s{S_T0}, {FL4_OFF}')
    a.I(f'v_writelane_b32 v{vFL}, s{S_T0}, 1')
    SEN = vH + 24
    for i in range(4):
        a.I(f'v_mov_b32 v{SEN+i}, -1')
    a.I(f's_lshl_b32 s{S_LW}, s{S_W}, 19')
    a.I(f's_add_u32 s{S_LW2}, s{S_LW}, 262144')
    a.I(f's_lshl_b32 s{S_SOF}, s2, 8')
    a.I(f's_lshl_b32 s{S_T0}, s{S_W}, 6')
    a.I(f's_add_u32 s{S_SOF}, s{S_SOF}, s{S_T0}')
    a.I(f's_add_u32 s{S_SOF}, s{S_SOF}, {KVF_OFF}')
    a.I(f's_mul_i32 s{S_T2}, s{S_IA}, 22016')
    a.I(f's_mul_i32 s{S_T0}, s{S_W}, {43 * 128}')
    a.I(f's_add_u32 s{S_T2}, s{S_T2}, s{S_T0}')
    srd(a, R_W1, P_W1, 43 * 128, off_sgpr=S_T2)
    a.I(f'v_lshlrev_b32 v{vpW1}, 7, v{vL}')
    W1W = opt('w1w', 2)

    def w1_warm():
        a.I(f'buffer_load_dword v{vDUM}, v{vpW1}, {S(R_W1)}, 0 offen')

    def w2_warm():
        a.lock()
        a.I(f's_lshl_b32 s{S_T0}, s2, 2')
        a.I(f's_add_u32 s{S_T0}, s{S_T0}, s{S_W}')
        a.I(f's_mul_i32 s{S_T1}, s{S_T0}, {43 * 128}')
        srd(a, R_TMP, P_W2, 43 * 128, off_sgpr=S_T1)
        a.I(f'buffer_load_dword v{vDUM}, v{vpW1}, {S(R_TMP)}, 0 offen')
        a.I(f's_lshl_b32 s{S_T1}, s{S_T0}, 9')
        srd(a, R_TMP, P_WO, 512, off_sgpr=S_T1)
        a.I(f'buffer_load_dword v{vDUM}, v{vpW1}, {S(R_TMP)}, 0 offen')
        a.unlock()

    if W1W == 1:
        w1_warm()

    def ln_round():
        a.I(f'v_mov_b32 v{sm}, 0')
        a.I(f'v_mov_b32 v{sq}, 0')
        for i in range(8):
            a.I(f'v_dot2c_f32_bf16 v{sm}, v{VONE}, v{X+i}')
            a.I(f'v_dot2c_f32_bf16 v{sq}, v{X+i}, v{X+i}')
        for i in range(8):
            a.I(f'v_lshlrev_b32 v{U+2*i}, 16, v{X+i}')
            a.I(f'v_and_b32 v{U+2*i+1}, 0xffff0000, v{X+i}')
        reduce32(a, [sm, sq], [tt, tt2_])
        ln_scalars(a, sm, sq, vm, vrs, tt)
        for i in range(8):
            a.I(f'v_pk_add_f32 v[{U+2*i}:{U+2*i+1}], v[{U+2*i}:{U+2*i+1}], v[{vm}:{vm+1}] op_sel_hi:[1,0] neg_lo:[0,1] neg_hi:[0,1]')
        for i in range(8):
            a.I(f'v_cvt_pk_bf16_f32 v{X+i}, v{U+2*i}, v{U+2*i+1}')
        for i in range(8):
            a.I(f'v_lshlrev_b32 v{U+2*i}, 16, v{X+i}')
            a.I(f'v_and_b32 v{U+2*i+1}, 0xffff0000, v{X+i}')
        for i in range(8):
            a.I(f'v_pk_mul_f32 v[{U+2*i}:{U+2*i+1}], v[{U+2*i}:{U+2*i+1}], v[{vm}:{vm+1}] op_sel:[0,1] op_sel_hi:[1,1]')
        for i in range(8):
            a.I(f'v_cvt_pk_bf16_f32 v{X+i}, v{U+2*i}, v{U+2*i+1}')

    a.bg_pace = 1 << 30
    EARLY0 = opt('early0', 1)
    if EARLY0:
        queue_stage(0)
        a.bg_emit(8)
    a.stamp()
    a.wait_vm(tokAX)
    a.stamp()
    ln_round()
    ln_round()
    a.I(f'ds_write_b128 v{aHW0}, v[{X}:{X+3}] offset:{HS}')
    a.I(f'ds_write_b128 v{aHW1}, v[{X+4}:{X+7}] offset:{HS}')
    a.stamp()
    a.bg_pace = 1 << 30
    TRB = 200
    tokAS = [0]

    def st_h(u):
        def f():
            tokAS[0] = a.I(f'buffer_store_dwordx4 v[{TRB+4*u}:{TRB+4*u+3}], v{aST}, {S(R_WS)}, s{S_LW if u == 0 else S_LW2} offen sc1')
        return f

    def st_sen():
        a.I('s_mov_b64 exec, 15')
        a.I(f'buffer_store_dwordx4 v[{SEN}:{SEN+3}], v{vL16}, {S(R_WS)}, s{S_SOF} offen sc1')
        a.I('s_mov_b64 exec, 7')
        tokAS[0] = a.I(f'buffer_store_dword v{SEN}, v{vFL}, {S(R_WS)}, 0 offen sc1')
        a.I('s_mov_b64 exec, -1')

    STPOS = opt('stpos', 2)
    stores = [st_h(0), st_h(1), st_sen]
    for st in range(EARLY0, 4):
        queue_stage(st, stores if st == STPOS else None)
    a.bg_emit((0 if EARLY0 else 8) + opt('preB', 6))
    a.stamp()
    a.wait_vm(stage_tok[0])
    a.I('s_waitcnt lgkmcnt(0)')
    a.I('s_barrier')
    a.collect()
    a.stamp()
    for u, ad in enumerate((aH0, aH1)):
        a.I(f'ds_read_b64_tr_b16 v[{TRB+4*u}:{TRB+4*u+1}], v{ad} offset:{HS}')
        a.I(f'ds_read_b64_tr_b16 v[{TRB+4*u+2}:{TRB+4*u+3}], v{ad} offset:{HS + 4096}')
    for hd in range(2):
        a.I(f'ds_read_b64_tr_b16 v[{PHI+4*hd}:{PHI+4*hd+1}], v{aPH} offset:{hd * 512}')
        a.I(f'ds_read_b64_tr_b16 v[{PHI+4*hd+2}:{PHI+4*hd+3}], v{aPH} offset:{hd * 512 + 256}')
    if COOP == 1:
        bgq(lambda: coop(1))
    a.bg_acc = 0

    def wbase(slot):
        return slot // 2, (slot % 2) * 24576

    def reads(n):
        st, ks = divmod(n, 4)
        slot = st % 4
        F = FR + 16 * (n & 1)
        bi, bo = wbase(slot)
        L = [f'ds_read_b128 v[{F}:{F+3}], v{vXA+ks} offset:{XS(slot)}']
        for seg in range(3):
            o = bo + ks * 6144 + seg * 1024
            W = F + 4 + 4 * seg
            L.append(f'ds_read_b64_tr_b16 v[{W}:{W+1}], v{vWA+bi} offset:{o}')
            L.append(f'ds_read_b64_tr_b16 v[{W+2}:{W+3}], v{vWA+bi} offset:{o + 512}')
        jp = ks >> 1
        if n % 2 == 0:
            L.append(f'ds_read_b128 v[{AUXE}:{AUXE+3}], v{vSA+jp} offset:{XS(slot)}')
            segs = [(0, AUXE + 4)]
        else:
            segs = [(1, AUXO), (2, AUXO + 4)]
        for seg, W in segs:
            o = bo + jp * 12288 + seg * 1024
            L.append(f'ds_read_b64_tr_b16 v[{W}:{W+1}], v{vCA+bi} offset:{o}')
            L.append(f'ds_read_b64_tr_b16 v[{W+2}:{W+3}], v{vCA+bi} offset:{o + 512}')
        return L

    def mfmas(n):
        F = FR + 16 * (n & 1)
        L = []
        for seg in range(3):
            A = ACC + 16 * seg
            W = F + 4 + 4 * seg
            c = '0' if n == 0 else f'v[{A}:{A+15}]'
            L.append((f'v_mfma_f32_32x32x16_bf16 v[{A}:{A+15}], v[{W}:{W+3}], v[{F}:{F+3}], {c}', 2 + 2 * seg))
        if n % 2 == 0:
            lst = [(XSUM, VONE, AUXE, 7), (GRAM, AUXE, AUXE, 7), (CSA, AUXE + 4, VONE, 9)]
        else:
            lst = [(CSA + 4, AUXO, VONE, 8), (CSA + 8, AUXO + 4, VONE, 10)]
        for D, A_, B_, need in lst:
            c = '0' if n < 2 else f'v[{D}:{D+3}]'
            L.append((f'v_mfma_f32_16x16x32_bf16 v[{D}:{D+3}], v[{A_}:{A_+3}], v[{B_}:{B_+3}], {c}', need))
        return L

    rtok = {0: [a.I(t) for t in reads(0)]}
    a.wait_lg(rtok[0][2])
    for i in range(8):
        a.I(f'v_xor_b32 v{PHI+i}, v{PHI+i}, v{vSG}')
    a.bg_pace = opt('paceB', 44)
    a.bg_acc = 0
    PUB1 = opt('pub1', 4)
    print('bg items pending at B start:', len(a.bg))
    for n in range(32):
        if n in (8, 16, 24) and opt('stB', 0):
            a.stamp()
        M = mfmas(n)
        R = reads(n + 1) if n + 1 < 32 else []
        rtok[n + 1] = []
        newst = (n + 1) % 4 == 0 and n + 1 < 32
        quota = [3, 3, 3, 1, 1, 1]
        for k, (txt, need) in enumerate(M):
            a.wait_lg(rtok[n][need])
            a.I(txt)
            if k == 0 and newst:
                st = (n + 1) // 4
                need_stage(st)
                a.lock()
                a.I('s_waitcnt lgkmcnt(0)')
                if st == PUB1:
                    assert st > STPOS
                    a.wait_vm(max(stage_tok[st], tokAS[0]))
                    a.I(f's_and_b32 s{S_T0}, s2, {NSH - 1}')
                    a.I(f's_mul_i32 s{S_T0}, s{S_T0}, {256 // NSH}')
                    publish(a, f's{S_T0}', 'L_PUB1')
                else:
                    a.wait_vm(stage_tok[st])
                    a.I('s_barrier')
                a.unlock()
                if st + 3 <= 7:
                    ex = []
                    if st + 3 == 7:
                        if W1W == 2:
                            ex.append(w1_warm)
                        if opt('pfE', 1) == 1:
                            ex.append(w2_warm)
                    queue_stage(st + 3, ex)
            q = quota[k] if k < len(M) - 1 else 99
            while R and q > 0:
                rtok[n + 1].append(a.I(R.pop(0)))
                q -= 1
    a.bg_drain()
    a.stamp()

    vCD = 129
    vCR = 133
    vTD0, vTD1, vTE0, vTE1 = 137, 138, 139, 140
    vR0, vR1, vR2, vR3 = 141, 142, 143, 252
    vXO, vBO, aR = 253, 254, 65
    R_T1, R_T2 = R_W, R_W1
    R_F1, R_F2 = R_TMP, R_DBG

    def c_setup():
        a.lock()
        a.I(f's_mul_i32 s{S_CW}, s{S_W}, {TLO * 2048}')
        a.I(f's_mul_i32 s{S_CROW}, s{S_W}, {512 * 2752}')
        a.I(f's_lshl_b32 s{S_T0}, s{S_FT}, 7')
        srd(a, R_W1, P_W1, 0, off_sgpr=S_T0)
        a.I(f's_sub_u32 s{R_W1+2}, {2048 * 2752}, s{S_T0}')
        srd(a, R_HF, P_WS, 2 * MB)
        a.I(f's_cmp_lg_u32 s{S_SPARE}, -1')
        a.I(f's_cselect_b32 s{R_HF+2}, 0, s{R_HF+2}')
        a.I(f's_cselect_b32 s{R_W1+2}, 0, s{R_W1+2}')
        a.I(f's_mul_i32 s{S_T1}, s{S_DT}, {3 * 65536}')
        a.I(f's_lshl_b32 s{S_T0}, s{S_W}, 14')
        a.I(f's_add_u32 s{S_T1}, s{S_T1}, s{S_T0}')
        a.I(f's_mov_b32 s{S_K1}, 4096')
        a.I(f's_mov_b32 s{S_K2}, 8192')
        a.I(f's_mov_b32 s{S_K3}, 12288')
        a.unlock()
        a.I(f'v_add_u32 v{vCF}, s{S_T1}, v{vL16}')
        for i in range(1, 3):
            a.I(f'v_add_u32 v{vCF+i}, {i * 65536}, v{vCF}')
        a.I(f'v_bfe_u32 v{t0}, v{vL}, 4, 1')
        a.I(f'v_lshlrev_b32 v{t0}, 2, v{t0}')
        a.I(f'v_xor_b32 v{t0}, v{t0}, v{l7}')
        a.I(f'v_lshlrev_b32 v{t0}, 4, v{t0}')
        a.I(f'v_xor_b32 v{t1}, 32, v{t0}')
        a.I(f'v_mul_u32_u24 v{t2}, 2752, v{l3}')
        a.I(f'v_add_u32 v{vCD}, v{t0}, v{t2}')
        a.I(f'v_add_u32 v{vCD+1}, v{t1}, v{t2}')
        a.I(f'v_add_u32 v{vCD+2}, {2 * 20992}, v{vCD}')
        a.I(f'v_add_u32 v{vCD+3}, {3 * 20992}, v{vCD+1}')
        a.I(f'v_add_u32 v{vCD+1}, 20992, v{vCD+1}')
        a.I(f'v_bfe_u32 v{t0}, v{vL}, 3, 1')
        a.I(f'v_lshlrev_b32 v{t0}, 2, v{t0}')
        a.I(f'v_bfe_u32 v{t1}, v{vL}, 4, 1')
        a.I(f'v_lshl_or_b32 v{t0}, v{t1}, 1, v{t0}')
        a.I(f'v_bfe_u32 v{t1}, v{vL}, 1, 1')
        a.I(f'v_or_b32 v{t0}, v{t0}, v{t1}')
        a.I(f'v_lshlrev_b32 v{t0}, 4, v{t0}')
        a.I(f'v_and_b32 v{t1}, 1, v{vL}')
        a.I(f'v_lshl_add_u32 v{t0}, v{t1}, 3, v{t0}')
        a.I(f'v_lshl_add_u32 v{t0}, v{r4}, 7, v{t0}')
        a.I(f'v_lshl_add_u32 v{t0}, v{gq}, 10, v{t0}')
        a.I(f'v_add_u32 v{vCR}, s{S_CW}, v{t0}')
        for fb in range(1, 4):
            a.I(f'v_xor_b32 v{vCR+fb}, {fb * 32}, v{vCR}')

    def e_setup_v():
        a.I(f's_mul_i32 s{S_LW}, s{S_W}, {TLO * 2048}')
        a.I(f's_mul_i32 s{S_LW2}, s{S_W}, {(TSLOTS - TLO) * 2048}')
        a.I(f's_add_u32 s{S_LW2}, s{S_LW2}, {CRED}')
        a.I(f'v_bfe_u32 v{t0}, v{vL}, 4, 1')
        a.I(f'v_lshlrev_b32 v{t0}, 2, v{t0}')
        a.I(f'v_xor_b32 v{t0}, v{t0}, v{l7}')
        a.I(f'v_lshlrev_b32 v{t0}, 4, v{t0}')
        a.I(f'v_lshl_add_u32 v{vTD0}, v{l3}, 10, v{t0}')
        a.I(f'v_add_u32 v{vTD1}, {8 * 1024 - 1024}, v{vTD0}')
        a.I(f'v_lshl_add_u32 v{vTE0}, v{l3}, 12, v{t0}')
        a.I(f'v_add_u32 v{vTE1}, {8 * 4096 - 1024}, v{vTE0}')
        a.I(f'v_bfe_u32 v{t0}, v{vL}, 3, 1')
        a.I(f'v_lshlrev_b32 v{t0}, 2, v{t0}')
        a.I(f'v_bfe_u32 v{t1}, v{vL}, 4, 1')
        a.I(f'v_lshlrev_b32 v{t1}, 1, v{t1}')
        a.I(f'v_bfe_u32 v{vR0}, v{vL}, 1, 1')
        a.I(f'v_add_u32 v{t1}, v{t1}, v{vR0}')
        a.I(f'v_xor_b32 v{t1}, v{t1}, v{t0}')
        a.I(f'v_lshlrev_b32 v{t1}, 4, v{t1}')
        a.I(f'v_and_b32 v{t0}, 1, v{vL}')
        a.I(f'v_lshl_add_u32 v{t1}, v{t0}, 3, v{t1}')
        a.I(f'v_lshl_add_u32 v{t0}, v{hh}, 2, v{r4}')
        a.I(f'v_lshl_add_u32 v{t1}, v{t0}, 7, v{t1}')
        a.I(f'v_add_u32 v{vR0}, s{S_LW}, v{t1}')
        a.I(f'v_xor_b32 v{vR1}, 64, v{vR0}')
        a.I(f'v_add_u32 v{vR2}, s{S_LW2}, v{t1}')
        a.I(f'v_xor_b32 v{vR3}, 64, v{vR2}')
        a.I(f's_lshl_b32 s{S_T0}, s{S_W}, 3')
        a.I(f'v_add_u32 v{t0}, s{S_T0}, v{l3}')
        a.I(f'v_lshlrev_b32 v{vBO}, 1, v{t0}')
        a.I(f'v_mul_u32_u24 v{aR}, 272, v{t0}')
        a.I(f'v_lshl_add_u32 v{aR}, v{l7}, 5, v{aR}')
        a.I(f'v_lshlrev_b32 v{vXO}, 10, v{t0}')
        a.I(f'v_lshl_add_u32 v{vXO}, v{l7}, 4, v{vXO}')
        a.I(f's_lshl_b32 s{S_T0}, s{S_TB}, 16')
        a.I(f's_lshl_b32 s{S_T1}, s{S_CG}, 7')
        a.I(f's_add_u32 s{S_T0}, s{S_T0}, s{S_T1}')
        a.I(f'v_add_u32 v{vXO}, s{S_T0}, v{vXO}')

    def e_setup_s():
        a.lock()
        a.I(f's_mul_i32 s{S_KB0}, s{S_W}, 22')
        a.I(f's_cmp_eq_u32 s{S_W}, 3')
        a.I(f's_cselect_b32 s{S_KB0}, 65, s{S_KB0}')
        a.I(f's_cmp_ge_u32 s{S_W}, 2')
        a.I(f's_cselect_b32 s{S_CNT}, 21, 22')
        a.I(f's_lshl_b32 s{S_T0}, s{S_TB}, 16')
        a.I(f's_lshl_b32 s{S_T1}, s{S_W}, 14')
        a.I(f's_add_u32 s{S_T0}, s{S_T0}, s{S_T1}')
        a.I(f's_add_u32 s{S_T0}, s{S_T0}, {OF_OFF}')
        srd(a, R_F1, P_WS, 16384, off_sgpr=S_T0)
        a.I(f's_mul_i32 s{S_T1}, s{S_CG}, {UF_DT}')
        a.I(f's_lshl_b32 s{S_T2}, s{S_KB0}, 11')
        a.I(f's_add_u32 s{S_T1}, s{S_T1}, s{S_T2}')
        a.I(f's_add_u32 s{S_T1}, s{S_T1}, {UF_OFF}')
        srd(a, R_F2, P_WS, 0, off_sgpr=S_T1)
        a.I(f's_lshl_b32 s{R_F2+2}, s{S_CNT}, 11')
        a.I(f's_lshl_b32 s{S_T1}, s{S_CG}, 7')
        a.I(f's_lshl_b32 s{S_T2}, s{S_W}, 17')
        a.I(f's_add_u32 s{S_T1}, s{S_T1}, s{S_T2}')
        srd(a, R_T1, P_WO, 127 * 1024 + 128, off_sgpr=S_T1)
        a.I(f's_lshl_b32 s{S_T1}, s{S_TB}, 7')
        a.I(f's_lshl_b32 s{S_T2}, s{S_KB0}, 16')
        a.I(f's_add_u32 s{S_T1}, s{S_T1}, s{S_T2}')
        srd(a, R_T2, P_W2, 0, off_sgpr=S_T1)
        a.I(f's_lshl_b32 s{R_T2+2}, s{S_CNT}, 16')
        a.I(f's_sub_u32 s{R_T2+2}, s{R_T2+2}, {4096 - 128}')
        a.unlock()

    NP1, NP2 = 8, 22
    NS = NP1 + NP2
    tT, tF = {}, {}

    def t_issue(n):
        sl = n % TSLOTS
        a.lock()
        if n < NP1:
            so, v0_, v1_, R_ = n * 16384, vTD0, vTD1, R_T1
        else:
            so, v0_, v1_, R_ = (n - NP1) * 65536, vTE0, vTE1, R_T2
        a.I(f's_mov_b32 s{S_SOT}, {so}')
        if sl < TLO:
            a.I(f's_add_u32 m0, s{S_LW}, {sl * 2048}')
        else:
            a.I(f's_add_u32 m0, s{S_LW2}, {(sl - TLO) * 2048}')
        a.I(f'buffer_load_dwordx4 v{v0_}, {S(R_)}, s{S_SOT} offen lds')
        tT[n] = a.I(f'buffer_load_dwordx4 v{v1_}, {S(R_)}, s{S_SOT} offen offset:1024 lds')
        a.unlock()

    ctT, ctF = {}, {}
    RC = opt('rc', 8)

    def ct_load(n, b):
        a.lock()
        a.I(f's_add_u32 s{S_SOT}, s{S_CROW}, {n * 32 * 2752}')
        a.I(f's_add_u32 m0, s{S_CW}, {(n % NTC) * 4096}')
        off = f' offset:{b * 1024}' if b else ''
        ctT[n] = a.I(f'buffer_load_dwordx4 v{vCD+b}, {S(R_W1)}, s{S_SOT} offen{off} lds')
        a.unlock()

    def cf_load(n, i):
        r = 12 * (n % RC) + 4 * i
        so = ['0', f's{S_K1}', f's{S_K2}', f's{S_K3}'][n >> 2]
        off = f' offset:{(n & 3) * 1024}' if n & 3 else ''
        ctF[n] = a.I(f'buffer_load_dwordx4 a[{r}:{r+3}], v{vCF+i}, {S(R_HF)}, {so} offen{off} sc1')

    e0 = FR
    aC, aS, g0, g1 = e0, e0 + 1, e0 + 2, e0 + 3
    a.I(f's_lshl_b32 s{S_T0}, s{S_W}, 6')
    a.I(f's_add_u32 s{S_T0}, s{S_T0}, {EP_CS}')
    a.I(f'v_lshlrev_b32 v{aC}, 4, v{gq}')
    a.I(f'v_add_u32 v{aC}, s{S_T0}, v{aC}')
    a.I(f's_lshl_b32 s{S_T0}, s{S_W}, 7')
    a.I(f's_add_u32 s{S_T0}, s{S_T0}, {EP_ST}')
    a.I(f'v_lshlrev_b32 v{aS}, 3, v{i16}')
    a.I(f'v_add_u32 v{aS}, s{S_T0}, v{aS}')
    a.I(f'v_cmp_eq_u32 vcc, 1, v{c4}')
    a.I(f'v_cndmask_b32 v{g1}, v{GRAM}, v{GRAM+1}, vcc')
    a.I(f'v_cmp_eq_u32 vcc, 2, v{c4}')
    a.I(f'v_cndmask_b32 v{g1}, v{g1}, v{GRAM+2}, vcc')
    a.I(f'v_cmp_eq_u32 vcc, 3, v{c4}')
    a.I(f'v_cndmask_b32 v{g1}, v{g1}, v{GRAM+3}, vcc')
    a.I(f'v_mov_b32 v{g0}, v{XSUM}')
    a.lock()
    a.I(f'v_cmp_eq_u32 vcc, v{r4}, v{gq}')
    a.I(f's_and_saveexec_b64 s[{S_EXEC}:{S_EXEC+1}], vcc')
    a.I(f'ds_write_b64 v{aS}, v[{g0}:{g1}]')
    a.I(f's_mov_b64 exec, s[{S_EXEC}:{S_EXEC+1}]')
    a.I(f'v_cmp_eq_u32 vcc, 0, v{i16}')
    a.I(f's_and_saveexec_b64 s[{S_EXEC}:{S_EXEC+1}], vcc')
    for seg in range(3):
        a.I(f'ds_write_b128 v{aC}, v[{CSA+4*seg}:{CSA+4*seg+3}] offset:{seg * 256}')
    a.I(f's_mov_b64 exec, s[{S_EXEC}:{S_EXEC+1}]')
    a.unlock()
    c_setup()
    a.I(f's_and_b32 s{S_T0}, s{S_W}, 1')
    a.I(f's_lshr_b32 s{S_T1}, s{S_W}, 1')
    a.I(f's_lshl_b32 s{S_T2}, s{S_T0}, 8')
    a.I(f's_add_u32 s{S_T2}, s{S_T2}, {EP_ST}')
    a.I(f'v_lshlrev_b32 v{aS}, 3, v{l31}')
    a.I(f'v_add_u32 v{aS}, s{S_T2}, v{aS}')
    a.I(f's_lshl_b32 s{S_T2}, s{S_T1}, 7')
    a.I(f's_add_u32 s{S_T2}, s{S_T2}, {EP_CS}')
    a.I(f'v_lshlrev_b32 v{aC}, 4, v{hh}')
    a.I(f'v_add_u32 v{aC}, s{S_T2}, v{aC}')
    a.I(f'v_and_b32 v{t0}, {NSH - 1}, v{vL}')
    a.I(f'v_mul_u32_u24 v{vPOFF}, {256 // NSH}, v{t0}')
    a.I('s_waitcnt lgkmcnt(0)')
    a.I('s_barrier')
    a.stamp()
    a.collect()
    CSR = 160
    a.I(f'ds_read_b64 v[{g0}:{g1}], v{aS}')
    for seg in (1, 2, 0):
        for q4 in range(4):
            b = CSR + 16 * seg + 4 * q4
            a.I(f'ds_read_b128 v[{b}:{b+3}], v{aC} offset:{seg * 256 + q4 * 32}')
    for n in range(NTC):
        for b in range(4):
            a.bg_add(lambda n=n, b=b: ct_load(n, b))
    a.bg_pace = opt('paceT0', 90)
    a.bg_acc = 0
    aV, aK, swv, swk = e0 + 8, e0 + 9, e0 + 10, e0 + 11
    aV2, aK1, aK2, aK3 = e0 + 12, e0 + 13, e0 + 14, e0 + 15
    a.I(f's_lshl_b32 s{S_T2}, s{S_T1}, 12')
    a.I(f's_lshl_b32 s{S_SOX}, s{S_T0}, 10')
    a.I(f's_add_u32 s{S_T2}, s{S_T2}, s{S_SOX}')
    a.I(f's_add_u32 s{S_T2}, s{S_T2}, {EP_VV}')
    a.I(f'v_xor_b32 v{swv}, v{r4}, v{hh}')
    a.I(f'v_lshlrev_b32 v{swv}, 3, v{swv}')
    a.I(f'v_lshl_add_u32 v{aV}, v{l31}, 5, v{swv}')
    a.I(f'v_add_u32 v{aV}, s{S_T2}, v{aV}')
    a.I(f'v_xor_b32 v{aV2}, 16, v{aV}')
    a.I(f's_lshl_b32 s{S_T2}, s{S_T1}, 13')
    a.I(f's_lshl_b32 s{S_SOX}, s{S_T0}, 11')
    a.I(f's_add_u32 s{S_T2}, s{S_T2}, s{S_SOX}')
    a.I(f's_add_u32 s{S_T2}, s{S_T2}, {EP_PK}')
    a.I(f'v_bfe_u32 v{swk}, v{vL}, 1, 3')
    a.I(f'v_xor_b32 v{swk}, v{swk}, v{hh}')
    a.I(f'v_lshlrev_b32 v{swk}, 3, v{swk}')
    a.I(f'v_lshl_add_u32 v{aK}, v{l31}, 6, v{swk}')
    a.I(f'v_add_u32 v{aK}, s{S_T2}, v{aK}')
    a.I(f'v_xor_b32 v{aK1}, 16, v{aK}')
    a.I(f'v_xor_b32 v{aK2}, 32, v{aK}')
    a.I(f'v_xor_b32 v{aK3}, 48, v{aK}')
    vm2, vrs2, tt2 = e0 + 4, e0 + 5, e0 + 6
    a.I('s_waitcnt lgkmcnt(12)')
    ln_scalars(a, g0, g1, vm2, vrs2, tt2)
    PKD = 208

    def fix_seg(seg):
        for i in range(8):
            r = ACC + 16 * seg + 2 * i
            c = CSR + 16 * seg + 2 * i
            a.I(f'v_pk_fma_f32 v[{r}:{r+1}], v[{c}:{c+1}], v[{vm2}:{vm2+1}], v[{r}:{r+1}] op_sel_hi:[1,0,1] neg_lo:[0,1,0] neg_hi:[0,1,0]')
        for i in range(8):
            r = ACC + 16 * seg + 2 * i
            a.I(f'v_pk_mul_f32 v[{r}:{r+1}], v[{r}:{r+1}], v[{vm2}:{vm2+1}] op_sel:[0,1] op_sel_hi:[1,1]')
        for i in range(8):
            r = ACC + 16 * seg + 2 * i
            a.I(f'v_cvt_pk_bf16_f32 v{PKD+8*seg+i}, v{r}, v{r+1}')

    def phi(u, D):
        hd = u & 1
        B_ = PKD + 4 * u
        a.I(f'v_mfma_f32_32x32x16_bf16 v[{D}:{D+15}], v[{PHI+4*hd}:{PHI+4*hd+3}], v[{B_}:{B_+3}], 0')

    a.I('s_waitcnt lgkmcnt(8)')
    fix_seg(1)
    phi(2, 16)
    phi(3, 48)
    a.I('s_waitcnt lgkmcnt(4)')
    fix_seg(2)
    for hd in range(2):
        b = PKD + 16 + 4 * hd
        a.I(f'ds_write_b64 v{aV}, v[{b}:{b+1}] offset:{hd * 2048}')
        a.I(f'ds_write_b64 v{aV2}, v[{b+2}:{b+3}] offset:{hd * 2048}')
    SMT = e0 + 16
    PHK = 176
    a.stamp()
    softmax2(a, [16, 48], SMT, [PHK, PHK + 8])
    for hd in range(2):
        for c, ad in enumerate((aK, aK1, aK2, aK3)):
            b = PHK + 8 * hd + 2 * c
            a.I(f'ds_write_b64 v{ad}, v[{b}:{b+1}] offset:{hd * 4096}')
    rK0, rK1, rV0, rV1 = e0 + 24, e0 + 25, e0 + 26, e0 + 27
    tk = e0 + 28
    a.I(f'v_lshl_add_u32 v{tk}, v{hh}, 3, v{r4}')
    a.I(f'v_bfe_u32 v{rK0}, v{vL}, 4, 1')
    a.I(f'v_lshl_add_u32 v{rK0}, v{rK0}, 2, v{c4}')
    a.I(f'v_lshrrev_b32 v{rK1}, 1, v{tk}')
    a.I(f'v_xor_b32 v{rK0}, v{rK0}, v{rK1}')
    a.I(f'v_lshlrev_b32 v{rK0}, 3, v{rK0}')
    a.I(f'v_lshl_add_u32 v{rK0}, v{tk}, 6, v{rK0}')
    a.I(f's_lshl_b32 s{S_T2}, s{S_W}, 12')
    a.I(f's_add_u32 s{S_T2}, s{S_T2}, {EP_PK}')
    a.I(f'v_add_u32 v{rK0}, s{S_T2}, v{rK0}')
    a.I(f'v_xor_b32 v{rK1}, 16, v{rK0}')
    a.I(f'v_add_u32 v{rK1}, 256, v{rK1}')
    a.I(f'v_lshrrev_b32 v{rV0}, 2, v{tk}')
    a.I(f'v_xor_b32 v{rV0}, v{rV0}, v{c4}')
    a.I(f'v_lshlrev_b32 v{rV0}, 3, v{rV0}')
    a.I(f'v_lshl_add_u32 v{rV0}, v{tk}, 5, v{rV0}')
    a.I(f's_lshl_b32 s{S_T2}, s{S_W}, 11')
    a.I(f's_add_u32 s{S_T2}, s{S_T2}, {EP_VV}')
    a.I(f'v_add_u32 v{rV0}, s{S_T2}, v{rV0}')
    a.I(f'v_xor_b32 v{rV1}, 8, v{rV0}')
    a.I(f'v_add_u32 v{rV1}, 128, v{rV1}')
    a.I('s_waitcnt lgkmcnt(0)')
    wg_wait(a, '0', 256 // NSH, 'L_F1', voff_expr='s_nop 0', sleep=2)
    a.stamp()
    KA, KB, KD = 32, 192, 16
    for s_ in range(4):
        a.I(f'ds_read_b64_tr_b16 v[{KA+4*s_}:{KA+4*s_+1}], v{rK0} offset:{s_ * 1024}')
        a.I(f'ds_read_b64_tr_b16 v[{KA+4*s_+2}:{KA+4*s_+3}], v{rK1} offset:{s_ * 1024}')
    for s_ in range(4):
        a.I(f'ds_read_b64_tr_b16 v[{KB+4*s_}:{KB+4*s_+1}], v{rV0} offset:{s_ * 512}')
        a.I(f'ds_read_b64_tr_b16 v[{KB+4*s_+2}:{KB+4*s_+3}], v{rV1} offset:{s_ * 512}')
    for n in range(RC):
        for i in range(3):
            a.bg_add(lambda n=n, i=i: cf_load(n, i))
    a.bg_pace = opt('paceC', 64)
    a.bg_emit(opt('preC', 3))
    a.I(f'v_cmp_le_u32 vcc, 16, v{l31}')
    a.I('s_waitcnt lgkmcnt(0)')
    for i in range(16):
        a.I(f'v_cndmask_b32 v{KB+i}, v{KB+i}, v{VONE}, vcc')
    for s_ in range(4):
        c = '0' if s_ == 0 else f'v[{KD}:{KD+15}]'
        a.I(f'v_mfma_f32_32x32x16_bf16 v[{KD}:{KD+15}], v[{KA+4*s_}:{KA+4*s_+3}], v[{KB+4*s_}:{KB+4*s_+3}], {c}')
    fix_seg(0)
    for i in range(8):
        a.I(f'v_cvt_pk_bf16_f32 v{KB+i}, v{KD+2*i}, v{KD+2*i+1}')
    a.lock()
    a.I('s_mov_b32 exec_lo, 0x1ffff')
    a.I('s_mov_b32 exec_hi, 0x1ffff')
    for sg in range(2):
        tokKV = a.I(f'buffer_store_dwordx4 v[{KB+4*sg}:{KB+4*sg+3}], v{vKP}, {S(R_WS)}, s{S_KP} offen offset:{sg * 544} sc1')
    a.I('s_mov_b64 exec, -1')
    a.unlock()
    a.stamp()
    phi(0, 0)
    phi(1, 32)
    def kvflag():
        a.wait_vm(tokKV)
        flag_set(a, 0)

    if opt('kvmid', 1):
        softmax2(a, [0, 32], SMT, [PHQ, PHQ + 8], mid=kvflag)
    else:
        softmax2(a, [0, 32], SMT, [PHQ, PHQ + 8])
        kvflag()
    e_setup_v()
    a.bg_drain()
    a.stamp()
    a.collect()
    a.I('s_barrier')
    a.I(f's_mov_b32 s{S_OD}, 0')
    if STAMPS:
        a.I(f'v_writelane_b32 v{vSTAMP}, 0, 44')
    a.I(f's_cmp_lg_u32 s{S_SPARE}, -1')
    a.I('s_cbranch_scc1 L_RED')
    vm_at_branch = a.vm_issued

    KV, OD, vKF = 48, 160, 64

    def kvf_loads():
        for hd in range(2):
            for sg in range(2):
                b = KV + 8 * hd + 4 * sg
                tok = a.I(f'buffer_load_dwordx4 v[{b}:{b+3}], v{vKF}, {S(R_WS)}, s{S_KF} offen offset:{hd * 1088 + sg * 544} sc1')
        return tok

    def o_addr():
        a.I(f's_lshr_b32 s{S_T1}, s{S_W}, 1')
        a.I(f's_lshl_b32 s{S_T1}, s{S_T1}, 1')
        a.I(f's_lshl_b32 s{S_T2}, s{S_CG}, 2')
        a.I(f's_add_u32 s{S_HD0}, s{S_T1}, s{S_T2}')
        a.I(f's_mul_i32 s{S_KF}, s{S_HD0}, 1088')
        a.I(f's_add_u32 s{S_KF}, s{S_KF}, {KVF_OFF}')
        a.I(f'v_min_u32 v{vKF}, 16, v{l31}')
        a.I(f'v_mul_u32_u24 v{t0}, 17, v{hh}')
        a.I(f'v_add_lshl_u32 v{vKF}, v{vKF}, v{t0}, 4')

    def kvf_check():
        a.I(f'v_max3_u32 v{t0}, v{KV}, v{KV+1}, v{KV+2}')
        a.I(f'v_max3_u32 v{t1}, v{KV+3}, v{KV+4}, v{KV+5}')
        a.I(f'v_max3_u32 v{t0}, v{t0}, v{KV+6}, v{KV+7}')
        a.I(f'v_max3_u32 v{t1}, v{t1}, v{KV+8}, v{KV+9}')
        a.I(f'v_max3_u32 v{t0}, v{t0}, v{KV+10}, v{KV+11}')
        a.I(f'v_max3_u32 v{t1}, v{t1}, v{KV+12}, v{KV+13}')
        a.I(f'v_max3_u32 v{t0}, v{t0}, v{KV+14}, v{KV+15}')
        a.I(f'v_max_u32 v{t0}, v{t0}, v{t1}')
        a.I(f'v_cmp_eq_u32 vcc, -1, v{t0}')

    def o_compute():
        for hd in range(2):
            D = OD + 16 * hd
            a.I(f'v_mfma_f32_32x32x16_bf16 v[{D}:{D+15}], v[{KV+8*hd}:{KV+8*hd+3}], v[{PHQ+8*hd}:{PHQ+8*hd+3}], 0')
            a.I(f'v_mfma_f32_32x32x16_bf16 v[{D}:{D+15}], v[{KV+8*hd+4}:{KV+8*hd+7}], v[{PHQ+8*hd+4}:{PHQ+8*hd+7}], v[{D}:{D+15}]')
        a.I(f's_lshl_b32 s{S_T0}, s{S_TB}, 5')
        a.I(f's_add_u32 s{S_T0}, s{S_T0}, s{S_HD0}')
        a.I(f's_lshl_b32 s{S_T0}, s{S_T0}, 11')
        a.I(f's_and_b32 s{S_T2}, s{S_W}, 1')
        a.I(f's_lshl_b32 s{S_T2}, s{S_T2}, 10')
        a.I(f's_add_u32 s{S_T0}, s{S_T0}, s{S_T2}')
        a.I(f's_add_u32 s{S_T0}, s{S_T0}, {OF_OFF}')
        for hd in range(2):
            D = OD + 16 * hd
            a.I(f'v_add_f32 v{D+8}, 0x358637bd, v{D+8}')
        for hd in range(2):
            D = OD + 16 * hd
            a.I(f'v_rcp_f32 v{D+8}, v{D+8}')
        for hd in range(2):
            D = OD + 16 * hd
            for i in range(4):
                a.I(f'v_pk_mul_f32 v[{D+2*i}:{D+2*i+1}], v[{D+2*i}:{D+2*i+1}], v[{D+8}:{D+9}] op_sel_hi:[1,0]')
            for i in range(4):
                a.I(f'v_cvt_pk_bf16_f32 v{D+12+i}, v{D+2*i}, v{D+2*i+1}')
            a.I(f'buffer_store_dwordx4 v[{D+12}:{D+15}], v{vL16}, {S(R_WS)}, s{S_T0} offen offset:{hd * 2048} sc1')

    def o_try(tok):
        a.lock()
        a.wait_vm(tok)
        save = a.vm_issued
        kvf_check()
        a.I('s_cbranch_vccnz L_OTRY')
        o_compute()
        a.I(f's_mov_b32 s{S_OD}, 1')
        a.vm_issued = save
        a.label('L_OTRY')
        a.unlock()

    def o_flag_if_done(name):
        a.lock()
        save = a.vm_issued
        a.I(f's_cmp_eq_u32 s{S_OD}, 0')
        a.I(f's_cbranch_scc1 {name}')
        a.I('s_waitcnt vmcnt(0)')
        flag_set(a, 2)
        a.vm_issued = save
        a.label(name)
        a.unlock()

    def o_blocking():
        a.lock()
        save = a.vm_issued
        a.I(f's_cmp_lg_u32 s{S_OD}, 0')
        a.I('s_cbranch_scc1 L_OB_DONE')
        a.I(f's_mov_b32 s{S_SPIN}, 0')
        a.label('L_OB')
        kvf_loads()
        a.I(f's_add_u32 s{S_SPIN}, s{S_SPIN}, 1')
        a.I('s_waitcnt vmcnt(0)')
        kvf_check()
        a.I('s_cbranch_vccz L_OB_OK')
        a.I(f's_cmp_gt_u32 s{S_SPIN}, 0x8000')
        a.I('s_cbranch_scc1 L_OB_OK')
        a.I('s_sleep 6')
        a.I('s_branch L_OB')
        a.label('L_OB_OK')
        if STAMPS:
            a.I(f'v_writelane_b32 v{vSTAMP}, s{S_SPIN}, 44')
        o_compute()
        a.I('s_waitcnt vmcnt(0)')
        flag_set(a, 2)
        a.vm_issued = save
        a.label('L_OB_DONE')
        a.unlock()

    CF = 72
    vBi, BI = 104, 106

    def c_reads(n):
        b = CF + 16 * (n & 1)
        o = (n % NTC) * 4096
        L = []
        for fb in range(4):
            L.append(f'ds_read_b64_tr_b16 v[{b+4*fb}:{b+4*fb+1}], v{vCR+fb} offset:{o}')
            L.append(f'ds_read_b64_tr_b16 v[{b+4*fb+2}:{b+4*fb+3}], v{vCR+fb} offset:{o + 512}')
        return L

    o_addr()
    pend = []
    for n in range(16):
        if n >= NTC:
            pend += [('T', n, b) for b in range(4)]
        if n >= RC:
            pend += [('F', n, i) for i in range(3)]
    OTRY = opt('otry', 12)
    vpE = 105
    srd(a, R_TMP, P_W2, 1376 * 4096)
    a.I(f'v_min_u32 v{vpE}, 11, v{i16}')
    a.I(f'v_lshlrev_b32 v{vpE}, 7, v{vpE}')
    a.wait_vm(ctT[0])
    crt = {0: [a.I(t) for t in c_reads(0)]}
    npend0 = len(pend)
    LASTISS = opt('lastiss', 11)
    nslots = 12 * (LASTISS + 1)
    done_slots = 0
    for n in range(16):
        w = ctF[n]
        if n + 1 < 16:
            w = max(w, ctT[n + 1])
        a.wait_vm(w)
        base = 12 * (n % RC)
        b = CF + 16 * (n & 1)
        R = c_reads(n + 1) if n + 1 < 16 else []
        crt[n + 1] = []
        k = 0
        for fb in range(4):
            a.wait_lg(crt[n][2 * fb + 1])
            for db in range(3):
                D = 4 * (fb * 3 + db)
                c = '0' if n == 0 else f'v[{D}:{D+3}]'
                a.I(f'v_mfma_f32_16x16x32_bf16 v[{D}:{D+3}], v[{b+4*fb}:{b+4*fb+3}], a[{base+4*db}:{base+4*db+3}], {c}')
                if R and k < 8:
                    crt[n + 1].append(a.I(R.pop(0)))
                k += 1
                done_slots += 1
                want = min(npend0, (npend0 * done_slots + nslots - 1) // nslots)
                while pend and npend0 - len(pend) < want:
                    kind, n_, i_ = pend[0]
                    if kind == 'T' and not (n_ - NTC < n or (n_ - NTC == n and fb == 3)):
                        break
                    if kind == 'F' and not (n_ - RC < n):
                        break
                    pend.pop(0)
                    (ct_load if kind == 'T' else cf_load)(n_, i_)
        while pend and pend[0][1] <= n + 2:
            kind, n_, i_ = pend.pop(0)
            (ct_load if kind == 'T' else cf_load)(n_, i_)
        if opt('pfE', 1) == 2 and n in (1, 3, 5, 7):
            k_ = n // 2
            a.I(f'buffer_load_dword v{vDUM}, v{vpE}, {S(R_TMP)}, s{k_ >> 1} offen offset:{(k_ & 1) * 1536}')
        if n == 13:
            assert not pend
            srd(a, R_HF, P_B1, 2752)
            a.I(f's_lshl_b32 s{S_T0}, s{S_FT}, 7')
            a.I(f's_lshl_b32 s{S_T1}, s{S_W}, 5')
            a.I(f's_add_u32 s{S_T0}, s{S_T0}, s{S_T1}')
            a.I(f'v_and_b32 v{vBi}, 1, v{vL}')
            a.I(f'v_lshlrev_b32 v{vBi}, 4, v{vBi}')
            a.I(f'v_lshl_add_u32 v{vBi}, v{hh}, 3, v{vBi}')
            tokB = a.I(f'buffer_load_dwordx2 v[{BI}:{BI+1}], v{vBi}, {S(R_HF)}, s{S_T0} offen')
            e_setup_s()
        if n == OTRY - 1:
            tokKF = kvf_loads()
        if n == OTRY and n < 15:
            o_try(tokKF)
    a.stamp()
    if OTRY >= 15:
        o_try(tokKF)
    else:
        o_flag_if_done('L_OF0')
    a.stamp()
    NTB = opt('ntb', 8)
    for m in range(NTB):
        a.bg_add(lambda m=m: t_issue(m))
    a.bg_pace = opt('paceT', 150)
    a.bg_acc = 0
    aW, aRd, aSt = 108, 109, 110
    a.I(f's_mul_i32 s{S_T0}, s{S_W}, 13056')
    a.I(f's_add_u32 s{S_T0}, s{S_T0}, {CRED}')
    a.I(f'v_mul_u32_u24 v{aW}, 272, v{i16}')
    a.I(f'v_lshl_add_u32 v{aW}, v{gq}, 4, v{aW}')
    a.I(f'v_add_u32 v{aW}, s{S_T0}, v{aW}')
    for fb in range(4):
        for db in range(3):
            D = 4 * (fb * 3 + db)
            a.I(f'ds_write_b128 v{aW}, v[{D}:{D+3}] offset:{db * 4352 + fb * 64}')
    a.I(f's_lshl_b32 s{S_T2}, s{S_W}, 6')
    a.I(f's_add_u32 s{S_T2}, s{S_T2}, {CRED}')
    a.I(f'v_bfe_u32 v{t1}, v{vL}, 1, 4')
    a.I(f'v_mul_u32_u24 v{aRd}, 272, v{t1}')
    a.I(f'v_and_b32 v{t0}, 1, v{vL}')
    a.I(f'v_lshl_add_u32 v{aRd}, v{t0}, 5, v{aRd}')
    a.I(f'v_lshl_add_u32 v{aRd}, v{hh}, 4, v{aRd}')
    a.I(f'v_add_u32 v{aRd}, s{S_T2}, v{aRd}')
    a.I(f'v_lshlrev_b32 v{aSt}, 3, v{l31}')
    a.I(f'v_lshl_add_u32 v{aSt}, v{hh}, 9, v{aSt}')
    a.I(f's_lshl_b32 s{S_T2}, s{S_FT}, 2')
    a.I(f's_add_u32 s{S_T2}, s{S_T2}, s{S_W}')
    a.I(f's_lshl_b32 s{S_T2}, s{S_T2}, 11')
    a.I(f's_add_u32 s{S_T2}, s{S_T2}, {UF_OFF}')
    for jj, sr in enumerate((S_K1, S_K2, S_K3)):
        a.I(f's_mul_i32 s{S_T0}, s{S_DT}, 3')
        a.I(f's_add_u32 s{S_T0}, s{S_T0}, {jj}')
        a.I(f's_lshr_b32 s{S_T1}, s{S_T0}, 2')
        a.I(f's_mul_i32 s{sr}, s{S_T1}, {UF_DT}')
        a.I(f's_add_u32 s{sr}, s{sr}, s{S_T2}')
        a.I(f's_bfe_u32 s{S_T1}, s{S_T0}, 0x10001')
        a.I(f's_lshl_b32 s{S_T1}, s{S_T1}, 10')
        a.I(f's_add_u32 s{sr}, s{sr}, s{S_T1}')
        a.I(f's_and_b32 s{S_T1}, s{S_T0}, 1')
        a.I(f's_lshl_b32 s{S_T1}, s{S_T1}, 8')
        a.I(f's_add_u32 s{sr}, s{sr}, s{S_T1}')
    a.I(f's_mov_b32 s{S_SOX}, {GK2}')
    TG = 111
    a.I(f'v_mov_b32 v{TG}, {GK1}')
    a.I('s_waitcnt lgkmcnt(0)')
    a.I('s_barrier')
    a.stamp()
    a.collect()
    RD = 0
    for p in range(4):
        for jj in range(3):
            b = RD + 16 * jj + 4 * p
            a.I(f'ds_read_b128 v[{b}:{b+3}], v{aRd} offset:{p * 13056 + jj * 4352}')
    a.wait_vm(tokB)
    BU = 112
    for k in range(2):
        a.I(f'v_lshlrev_b32 v{BU+2*k}, 16, v{BI+k}')
        a.I(f'v_and_b32 v{BU+2*k+1}, 0xffff0000, v{BI+k}')
    J3 = range(3)
    a.I('s_waitcnt lgkmcnt(6)')
    for jj in J3:
        b = RD + 16 * jj
        for k in range(2):
            a.I(f'v_pk_add_f32 v[{b+2*k}:{b+2*k+1}], v[{b+2*k}:{b+2*k+1}], v[{b+4+2*k}:{b+4+2*k+1}]')
    a.I('s_waitcnt lgkmcnt(0)')
    for jj in J3:
        b = RD + 16 * jj
        for k in range(2):
            a.I(f'v_pk_add_f32 v[{b+8+2*k}:{b+8+2*k+1}], v[{b+8+2*k}:{b+8+2*k+1}], v[{b+12+2*k}:{b+12+2*k+1}]')
    for jj in J3:
        b = RD + 16 * jj
        for k in range(2):
            a.I(f'v_pk_add_f32 v[{b+2*k}:{b+2*k+1}], v[{b+2*k}:{b+2*k+1}], v[{b+8+2*k}:{b+8+2*k+1}]')

    def round4():
        for jj in J3:
            b = RD + 16 * jj
            a.I(f'v_cvt_pk_bf16_f32 v{b+4}, v{b}, v{b+1}')
            a.I(f'v_cvt_pk_bf16_f32 v{b+5}, v{b+2}, v{b+3}')
        for jj in J3:
            b = RD + 16 * jj
            for k in range(2):
                a.I(f'v_lshlrev_b32 v{b+2*k}, 16, v{b+4+k}')
                a.I(f'v_and_b32 v{b+2*k+1}, 0xffff0000, v{b+4+k}')
    round4()
    for jj in J3:
        b = RD + 16 * jj
        for k in range(2):
            a.I(f'v_pk_add_f32 v[{b+2*k}:{b+2*k+1}], v[{b+2*k}:{b+2*k+1}], v[{BU+2*k}:{BU+2*k+1}]')
    round4()
    for jj in J3:
        b = RD + 16 * jj
        for k in range(2):
            a.I(f'v_pk_mul_f32 v[{b+4+2*k}:{b+4+2*k+1}], v[{b+2*k}:{b+2*k+1}], v[{b+2*k}:{b+2*k+1}]')
    for jj in J3:
        b = RD + 16 * jj
        for i in range(4):
            a.I(f'v_fma_f32 v{b+4+i}, v{b+4+i}, s{S_SOX}, v{TG}')
    for jj in J3:
        b = RD + 16 * jj
        for k in range(2):
            a.I(f'v_pk_mul_f32 v[{b+4+2*k}:{b+4+2*k+1}], v[{b+4+2*k}:{b+4+2*k+1}], v[{b+2*k}:{b+2*k+1}]')
    for jj in J3:
        b = RD + 16 * jj
        for i in range(4):
            a.I(f'v_exp_f32 v{b+4+i}, v{b+4+i}')
    for jj in J3:
        b = RD + 16 * jj
        for i in range(4):
            a.I(f'v_add_f32 v{b+4+i}, 1.0, v{b+4+i}')
    for jj in J3:
        b = RD + 16 * jj
        for i in range(4):
            a.I(f'v_rcp_f32 v{b+4+i}, v{b+4+i}')
    for jj in J3:
        b = RD + 16 * jj
        for k in range(2):
            a.I(f'v_pk_mul_f32 v[{b+2*k}:{b+2*k+1}], v[{b+2*k}:{b+2*k+1}], v[{b+4+2*k}:{b+4+2*k+1}]')
    for jj in J3:
        b = RD + 16 * jj
        a.I(f'v_cvt_pk_bf16_f32 v{b+8}, v{b}, v{b+1}')
        a.I(f'v_cvt_pk_bf16_f32 v{b+9}, v{b+2}, v{b+3}')
    NTB = NTB - len(a.bg)
    a.bg = []
    print('E T slots issued before the u stores:', NTB)
    if OTRY >= 15:
        o_flag_if_done('L_OF1')
    for jj, sr in enumerate((S_K1, S_K2, S_K3)):
        b = RD + 16 * jj
        tokU = a.I(f'buffer_store_dwordx2 v[{b+8}:{b+9}], v{aSt}, {S(R_WS)}, s{sr} offen sc1')
    a.stamp()
    a.wait_vm(tokU)
    flag_set(a, 1)
    a.I('s_barrier')
    a.stamp()
    a.I('s_branch L_JOIN')

    a.label('L_RED')
    a.vm_issued = vm_at_branch
    o_addr()
    e_setup_s()
    a.I(f's_mul_i32 s{S_T2}, s{S_W}, 14')
    a.I(f's_add_u32 s{S_K1}, s{S_SPARE}, s{S_T2}')
    a.I(f's_cmp_ge_u32 s{S_K1}, 34')
    a.I('s_cbranch_scc1 L_RED_DONE')
    a.I(f's_lshl_b32 s{S_K2}, s{S_K1}, 10')
    a.I(f's_add_u32 s{S_K2}, s{S_K2}, {KVP_OFF}')
    a.I(f's_mul_i32 s{S_T0}, s{S_K1}, 61681')
    a.I(f's_lshr_b32 s{S_T0}, s{S_T0}, 16')
    a.I(f'v_add_u32 v{t0}, s{S_T0}, v{hh}')
    a.I(f'v_min_u32 v{t0}, 31, v{t0}')
    a.I(f'v_lshlrev_b32 v{t0}, 7, v{t0}')
    a.I(f'v_lshl_add_u32 v{vPOFF}, v{l31}, 2, v{t0}')
    a.I(f's_mov_b32 s{S_T0}, {FLK_OFF}')
    a.stamp_at(40)
    flag_wait(a, S_T0, 'L_FK', sleep=2)
    a.I('s_waitcnt vmcnt(0)')
    a.stamp_at(41)
    a.vm_issued = 0
    rt = {}
    NRB = 16
    LB = 160

    def rissue(i):
        b = LB + 4 * (i % NRB)
        rt[i] = a.I(f'buffer_load_dwordx4 v[{b}:{b+3}], v{vL16}, {S(R_WS)}, s{S_K2} offen sc1')
        a.I(f's_add_u32 s{S_K2}, s{S_K2}, 34816')

    for i in range(NRB):
        rissue(i)
    for i in range(32):
        a.wait_vm(rt[i])
        b = LB + 4 * (i % NRB)
        for k in range(4):
            d = (2 * k) if i == 0 else (8 + 2 * k)
            a.I(f'v_lshlrev_b32 v{d}, 16, v{b+k}')
            a.I(f'v_and_b32 v{d+1}, 0xffff0000, v{b+k}')
        if i > 0:
            for k in range(4):
                a.I(f'v_pk_add_f32 v[{2*k}:{2*k+1}], v[{2*k}:{2*k+1}], v[{8+2*k}:{8+2*k+1}]')
        if i + NRB < 32:
            rissue(i + NRB)
    a.stamp_at(42)
    for k in range(4):
        a.I(f'v_cvt_pk_bf16_f32 v{8+k}, v{2*k}, v{2*k+1}')
    a.I(f's_lshl_b32 s{S_T1}, s{S_K1}, 10')
    a.I(f's_add_u32 s{S_T1}, s{S_T1}, {KVF_OFF}')
    a.I(f'buffer_store_dwordx4 v[8:11], v{vL16}, {S(R_WS)}, s{S_T1} offen sc1')
    a.label('L_RED_DONE')
    if opt('pfE', 1) == 2:
        a.I(f's_lshl_b32 s{S_T0}, s{S_SPARE}, 2')
        a.I(f's_add_u32 s{S_T0}, s{S_T0}, s{S_W}')
        a.I(f'v_lshlrev_b32 v{t0}, 7, v{vL}')
        a.I(f's_lshl_b32 s{S_T1}, s{S_T0}, 14')
        srd(a, R_HF, P_WO, 512 * 1024)
        for k in range(2):
            a.I(f'buffer_load_dword v{vDUM}, v{t0}, {S(R_HF)}, s{S_T1} offen')
            a.I(f's_add_u32 s{S_T1}, s{S_T1}, 8192')
    for m in range(NTB):
        t_issue(m)
    a.I('s_waitcnt vmcnt(0)')

    a.label('L_JOIN')
    a.vm_issued = 0
    for k in list(tT):
        tT[k] = -1000
    o_blocking()
    a.stamp()
    for m in range(NTB, TSLOTS):
        t_issue(m)
    XR, BR = 104, 112
    srd(a, R_HF, P_B2, 4096)
    a.I(f's_lshl_b32 s{S_T2}, s{S_TB}, 7')
    a.I(f's_mov_b32 s{S_K1}, 32768')
    a.I(f'buffer_load_dwordx4 v[{XR}:{XR+3}], v{vXO}, {S(R_X)}, 0 offen')
    a.I(f'buffer_load_dwordx4 v[{XR+4}:{XR+7}], v{vXO}, {S(R_X)}, s{S_K1} offen')
    a.I(f'buffer_load_ushort v{BR}, v{vBO}, {S(R_HF)}, s{S_T2} offen')
    a.I(f'buffer_load_ushort v{BR+1}, v{vBO}, {S(R_HF)}, s{S_T2} offen offset:64')
    a.stamp()
    a.collect()

    DEP = 16
    TB_ = 84

    def f_issue(n):
        r = 8 * (n % DEP)
        m = n if n < NP1 else n - NP1
        R_ = R_F1 if n < NP1 else R_F2
        o = (m & 1) * 2048
        a.I(f's_mov_b32 s{S_SOF}, {(m >> 1) * 4096}')
        a.I(f'buffer_load_dwordx4 a[{r}:{r+3}], v{vL16}, {S(R_)}, s{S_SOF} offen offset:{o} sc1')
        tF[n] = a.I(f'buffer_load_dwordx4 a[{r+4}:{r+7}], v{vL16}, {S(R_)}, s{S_SOF} offen offset:{o + 1024} sc1')

    def treads(n):
        b = TB_ + 8 * (n & 1)
        sl = n % TSLOTS
        regs, o = ((vR0, vR1), sl * 2048) if sl < TLO else ((vR2, vR3), (sl - TLO) * 2048)
        L = []
        for cb, ad in enumerate(regs):
            L.append(f'ds_read_b64_tr_b16 v[{b+4*cb}:{b+4*cb+1}], v{ad} offset:{o}')
            L.append(f'ds_read_b64_tr_b16 v[{b+4*cb+2}:{b+4*cb+3}], v{ad} offset:{o + 1024}')
        return L

    FLEAD = opt('flead', 5)
    tokP4 = [None]

    def e_steps(n0, n1):
        nf = n0
        while nf < min(n1, n0 + FLEAD):
            f_issue(nf)
            nf += 1
        for n in range(n0, n1):
            w = tF[n]
            if n + 1 < NS:
                w = max(w, tT[n + 1])
            a.wait_vm(w)
            a.I('s_waitcnt lgkmcnt(0)')
            R = treads(n + 1) if n + 1 < NS else []
            b = TB_ + 8 * (n & 1)
            r = 8 * (n % DEP)
            k = 0
            for i in range(2):
                for j in range(2):
                    if n < NP1:
                        D = 16 * (2 * i + j)
                        c = '0' if n == 0 else f'v[{D}:{D+15}]'
                        a.I(f'v_mfma_f32_32x32x16_bf16 v[{D}:{D+15}], v[{b+4*i}:{b+4*i+3}], a[{r+4*j}:{r+4*j+3}], {c}')
                    else:
                        D = 16 * (2 * j + i)
                        a.I(f'v_mfma_f32_32x32x16_bf16 v[{D}:{D+15}], a[{r+4*j}:{r+4*j+3}], v[{b+4*i}:{b+4*i+3}], v[{D}:{D+15}]')
                    if k < 2:
                        for t in R[2 * k:2 * k + 2]:
                            a.I(t)
                    if k == 1 and nf < n1:
                        f_issue(nf)
                        nf += 1
                    if k == 2 and n + TSLOTS < NS:
                        t_issue(n + TSLOTS)
                    k += 1
            if n == NP1 - 3:
                tokP4[0] = a.I(f'buffer_load_dword v{vPOLL}, v{vPOFF}, {S(R_WS)}, s{S_K2} offen sc1')

    a.I(f's_lshl_b32 s{S_T1}, s{S_TB}, 7')
    a.I(f's_lshl_b32 s{S_T0}, s{S_W}, 5')
    a.I(f's_add_u32 s{S_T1}, s{S_T1}, s{S_T0}')
    a.I(f's_add_u32 s{S_T1}, s{S_T1}, {FL5_OFF}')
    a.I(f'v_lshlrev_b32 v{vPOFF}, 2, v{l7}')
    flag_wait(a, S_T1, 'L_F5', sleep=opt('slp', 4))
    a.wait_vm(tT[0])
    for t in treads(0):
        a.I(t)
    a.I(f's_lshl_b32 s{S_T0}, s{S_CG}, 2')
    a.I(f's_mul_i32 s{S_T0}, s{S_T0}, 21846')
    a.I(f's_lshr_b32 s{S_T0}, s{S_T0}, 16')
    a.I(f's_mul_i32 s{S_T0}, s{S_T0}, 88')
    a.I(f's_add_u32 s{S_T0}, s{S_T0}, s{S_KB0}')
    a.I(f's_lshl_b32 s{S_T0}, s{S_T0}, 2')
    a.I(f's_add_u32 s{S_K2}, s{S_T0}, {FL4_OFF}')
    a.I(f's_sub_u32 s{S_T1}, s{S_CNT}, 1')
    a.I(f'v_min_u32 v{t0}, s{S_T1}, v{l31}')
    a.I(f'v_mul_u32_u24 v{t1}, 88, v{hh}')
    a.I(f'v_add_lshl_u32 v{vPOFF}, v{t0}, v{t1}, 2')
    a.stamp()
    e_steps(0, NP1)
    a.stamp()
    flag_wait(a, S_K2, 'L_F4', sleep=opt('slp', 4), tok=tokP4[0])
    a.stamp()
    e_steps(NP1, NS)
    a.stamp()
    aW = 64
    srd(a, R_OUT, P_OUT, 2048 * 1024)
    a.I(f's_mul_i32 s{S_T0}, s{S_W}, 17408')
    a.I(f'v_mul_u32_u24 v{aW}, 272, v{l31}')
    a.I(f'v_lshl_add_u32 v{aW}, v{hh}, 4, v{aW}')
    a.I(f'v_add_u32 v{aW}, s{S_T0}, v{aW}')
    a.I('s_barrier')
    for fb in range(2):
        for cb in range(2):
            D = 16 * (2 * fb + cb)
            for q in range(4):
                a.I(f'ds_write_b128 v{aW}, v[{D+4*q}:{D+4*q+3}] offset:{cb * 32 * 272 + fb * 128 + q * 32}')
    XU = 66
    for ps in range(2):
        a.I(f'v_lshlrev_b32 v{BR+ps}, 16, v{BR+ps}')
        for k in range(4):
            x = XR + 4 * ps + k
            a.I(f'v_lshlrev_b32 v{XU+8*ps+2*k}, 16, v{x}')
            a.I(f'v_and_b32 v{XU+8*ps+2*k+1}, 0xffff0000, v{x}')
    for ps in range(2):
        sel = 'op_sel_hi:[1,0]' if ps == 0 else 'op_sel:[0,1] op_sel_hi:[1,1]'
        for k in range(4):
            r = XU + 8 * ps + 2 * k
            a.I(f'v_pk_add_f32 v[{r}:{r+1}], v[{r}:{r+1}], v[{BR}:{BR+1}] {sel}')
    a.I('s_waitcnt lgkmcnt(0)')
    a.I('s_barrier')
    a.stamp()
    a.collect()
    for ps in range(2):
        for p in range(4):
            for hf in range(2):
                b = 32 * ps + 8 * p + 4 * hf
                a.I(f'ds_read_b128 v[{b}:{b+3}], v{aR} offset:{p * 17408 + ps * 8704 + hf * 16}')
    for ps in range(2):
        a.I(f's_waitcnt lgkmcnt({8 - 8 * ps})')
        b = 32 * ps
        for k in range(4):
            a.I(f'v_pk_add_f32 v[{b+2*k}:{b+2*k+1}], v[{b+2*k}:{b+2*k+1}], v[{b+8+2*k}:{b+8+2*k+1}]')
            a.I(f'v_pk_add_f32 v[{b+16+2*k}:{b+16+2*k+1}], v[{b+16+2*k}:{b+16+2*k+1}], v[{b+24+2*k}:{b+24+2*k+1}]')
        for k in range(4):
            a.I(f'v_pk_add_f32 v[{b+2*k}:{b+2*k+1}], v[{b+2*k}:{b+2*k+1}], v[{b+16+2*k}:{b+16+2*k+1}]')
        for k in range(4):
            r = XU + 8 * ps + 2 * k
            a.I(f'v_pk_add_f32 v[{b+2*k}:{b+2*k+1}], v[{b+2*k}:{b+2*k+1}], v[{r}:{r+1}]')
        for k in range(4):
            a.I(f'v_cvt_pk_bf16_f32 v{b+16+k}, v{b+2*k}, v{b+2*k+1}')
        so = '0' if ps == 0 else f's{S_K1}'
        a.I(f'buffer_store_dwordx4 v[{b+16}:{b+19}], v{vXO}, {S(R_OUT)}, {so} offen')
    if STAMPS:
        a.stamp()
        a.I('s_waitcnt vmcnt(0)')
        a.stamp()
        a.stamp(rt=True)
        a.collect()
        a.I('s_lshl_b32 s3, s2, 2')
        a.I(f's_add_u32 s3, s3, s{S_W}')
        a.I('s_lshl_b32 s3, s3, 8')
        a.I(f's_add_u32 s3, s3, {STAMP_OFF}')
        a.I(f'v_lshlrev_b32 v{t0}, 2, v{vL}')
        a.I(f'buffer_store_dword v{vSTAMP}, v{t0}, {S(R_WS)}, s3 offen')
        print('stamps:', a.nstamp)
    a.label(end)
    a.I('s_endpgm')


HEADER = """; Kernarg layout for this problem (96 bytes, ptrs only, base s[0:1]):
; @launch grid=(256,1,1) block=(256,1,1) lds=163840
.amdgcn_target "amdgcn-amd-amdhsa--gfx950"
"""


def main():
    out = sys.argv[1] if len(sys.argv) > 1 else f'cdna_kernels/{NAME}.s'
    a = K()
    gen(a)
    name = NAME + '_kernel'
    pad = '    s_nop 0\n' * 0
    txt = HEADER + f""".text
.globl {name}
.p2align 8
.type {name},@function
{name}:
{a.text()}{pad}.section .rodata,"a"
.p2align 6
.amdhsa_kernel {name}
  .amdhsa_next_free_vgpr 512
  .amdhsa_next_free_sgpr 102
  .amdhsa_accum_offset 256
  .amdhsa_group_segment_fixed_size 0
  .amdhsa_kernarg_size 96
  .amdhsa_user_sgpr_count 2
  .amdhsa_user_sgpr_kernarg_segment_ptr 1
  .amdhsa_system_sgpr_workgroup_id_x 1
  .amdhsa_float_denorm_mode_32 3
.end_amdhsa_kernel
"""
    open(out, 'w').write(txt)
    print('wrote', out, len(txt), 'bytes')


if __name__ == '__main__':
    main()
```

```python
import sys
import os
import math
import struct
sys.path.insert(0, os.path.dirname(os.path.abspath(__file__)))
from asmlib import Asm

NAME = 'parallel_sum__linear_kernel_hedgehog__mixer_token_mlp__prompt'
OPT = dict(kv.split('=') for kv in os.environ.get('OPT', '').split(',') if kv)


def opt(k, d):
    return int(OPT.get(k, d))


def f32bits(x):
    return struct.unpack('<I', struct.pack('<f', x))[0]


MB = 1 << 20
HF_OFF = 0
KVP_OFF = 8 * MB
KVP_STRIDE = 1088
KVF_OFF = 11 * MB
UF_OFF = 12 * MB
UF_DT = 90 * 2048
OF_OFF = 14 * MB
FW = opt('fw', 640)
FS = 32 * FW
FL4_OFF = 16 * MB
FLX_OFF = 18 * MB
XP_OFF = 2 * MB
FL5_OFF = 17 * MB
FLK_OFF = 11 * MB + 262144
STAMP_OFF = 20 * MB
WS_USED = 24 * MB

LOG2E = 0x3fb8aa3b
ONES = 0x3f803f80
GK1 = f32bits(-2.0 * math.sqrt(2.0 / math.pi) * math.log2(math.e))
GK2 = f32bits(-2.0 * math.sqrt(2.0 / math.pi) * math.log2(math.e) * 0.044715)
STAMPS = os.environ.get('STAMPS', '0') == '1'

P_X, P_WQKV, P_WPHI, P_WO, P_BX, P_W1, P_B1, P_W2, P_B2, P_OUT, P_DBG, P_WS = [4 + 2 * i for i in range(12)]
R_X, R_W, R_W1, R_WS, R_HF, R_TMP, R_DBG, R_OUT = 28, 32, 36, 40, 44, 48, 52, 56
(S_W, S_TB, S_CG, S_IA, S_T0, S_T1, S_T2, S_XW, S_WW, S_SOX, S_SOW0, S_SOW1, S_XCD, S_J, S_DT, S_FT,
 S_K1, S_K2, S_K3, S_L2E, S_SPIN, S_LW, S_LW2, S_SPARE) = range(60, 84)
S_EXEC = 84
S_SOT, S_SOF, S_KP, S_CNT = 86, 87, 88, 89
S_HD0, S_KF, S_OD = S_IA, S_XW, S_WW
S_KQ, S_TAU = 12, 13
S_KB0 = S_SOW1
S_STAMP = 90
SQ = [4, 5, 6, 7, 8, 9, 84, 85]

XS0, WS0 = 0, 40960
def XS(slot): return XS0 + slot * 8192
def WSL(slot): return WS0 + slot * 24576
HS = XS(4)
WPHI_L = WSL(4) + 22 * 1024
EP = WSL(3)
EP_CS, EP_ST, EP_PK, EP_VV = 155648, 156672, EP + 2048, EP + 2048 + 16384
CST = 28672
THI = 6
TSLOTS = 20
THB = 114688

vL, l31, hh, i16, gq, r4, c4, l3, l7 = range(144, 153)
t0, t1, t2 = 153, 154, 155
vAX, vL16, vPOLL, vPOFF = 156, 157, 158, 159
PHQ = 232
vFL = 248
vCF = 249
vSTAMP = 255
vKP = 156
vDUM = 128


class K(Asm):
    def _I(self, text):
        if text.startswith('s_barrier'):
            self.nbar += 1
        return super()._I(text)

    def __init__(self):
        super().__init__()
        self.nbar = 0
        self.pending = []
        self.nstamp = 0

    def stamp(self, rt=False):
        if not STAMPS:
            return
        slot = len(self.pending)
        assert slot < 6
        r = S_STAMP + 2 * slot
        self.I(f's_memrealtime s[{r}:{r+1}]' if rt else f's_memtime s[{r}:{r+1}]')
        self.pending.append((self.nstamp, r))
        self.nstamp += 1

    def stamp_at(self, idx):
        if not STAMPS:
            return
        self.I('s_memtime s[100:101]')
        self.I('s_waitcnt lgkmcnt(0)')
        self.I(f'v_writelane_b32 v{vSTAMP}, s100, {idx}')

    def collect(self):
        if not STAMPS or not self.pending:
            return
        self.I('s_waitcnt lgkmcnt(0)')
        for idx, r in self.pending:
            self.I(f'v_writelane_b32 v{vSTAMP}, s{r}, {idx}')
        self.pending = []


def srd(a, d, ptr, nbytes, off_sgpr=None, off_imm=0):
    a.lock()
    if off_sgpr is None and off_imm == 0:
        a.I(f's_mov_b32 s{d}, s{ptr}')
        a.I(f's_mov_b32 s{d+1}, s{ptr+1}')
    elif off_sgpr is not None:
        a.I(f's_add_u32 s{d}, s{ptr}, s{off_sgpr}')
        a.I(f's_addc_u32 s{d+1}, s{ptr+1}, 0')
        assert off_imm == 0
    else:
        a.I(f's_add_u32 s{d}, s{ptr}, {off_imm}')
        a.I(f's_addc_u32 s{d+1}, s{ptr+1}, 0')
    a.I(f's_mov_b32 s{d+2}, {nbytes}')
    a.I(f's_mov_b32 s{d+3}, 0x20000')
    a.unlock()


def S(r):
    return f's[{r}:{r+3}]'


def bf16_round(a, dst, src):
    a.I(f'v_cvt_pk_bf16_f32 v{dst}, v{src}, v{src}')
    a.I(f'v_and_b32 v{dst}, 0xffff0000, v{dst}')


def ln_scalars(a, vsum, vsq, vm, vrs, t):
    a.I(f'v_mul_f32 v{vsum}, 0x3b000000, v{vsum}')
    a.I(f'v_mul_f32 v{vsq}, 0x3b000000, v{vsq}')
    a.I(f'v_fma_f32 v{vsq}, -v{vsum}, v{vsum}, v{vsq}')
    a.I(f'v_max_f32 v{vsq}, 0, v{vsq}')
    bf16_round(a, vm, vsum)
    bf16_round(a, t, vsq)
    a.I(f'v_add_f32 v{t}, 0x3727c5ac, v{t}')
    bf16_round(a, t, t)
    a.I(f'v_sqrt_f32 v{t}, v{t}')
    bf16_round(a, t, t)
    a.I(f'v_rcp_f32 v{vrs}, v{t}')


def reduce32(a, regs, tmps):
    for ctl in ('quad_perm:[1,0,3,2]', 'quad_perm:[2,3,0,1]', 'row_half_mirror', 'row_mirror'):
        for r in regs:
            a.I(f'v_add_f32_dpp v{r}, v{r}, v{r} {ctl} row_mask:0xf bank_mask:0xf')
    for r, t in zip(regs, tmps):
        a.I(f'v_mov_b32 v{t}, v{r}')
    for r, t in zip(regs, tmps):
        a.I(f'v_permlane16_swap_b32 v{r}, v{t}')
    for r, t in zip(regs, tmps):
        a.I(f'v_add_f32 v{r}, v{r}, v{t}')


def softmax2(a, Ps, T, OUTs, mid=None):
    U = [(P, T + 4 * u, O) for u, (P, O) in enumerate(zip(Ps, OUTs))]
    for step in range(4):
        for P, Tb, _ in U:
            for t, b in ((Tb, P), (Tb + 1, P + 8)):
                if step == 0:
                    a.I(f'v_max3_f32 v{t}, v{b}, v{b+1}, v{b+2}')
                elif step < 3:
                    a.I(f'v_max3_f32 v{t}, v{t}, v{b+1+2*step}, v{b+2+2*step}')
                else:
                    a.I(f'v_max_f32 v{t}, v{t}, v{b+7}')
    for P, Tb, _ in U:
        a.I(f'v_permlane32_swap_b32 v{Tb}, v{Tb+1}')
    for P, Tb, _ in U:
        a.I(f'v_max_f32 v{Tb+2}, v{Tb}, v{Tb+1}')
    for P, Tb, _ in U:
        a.I(f'v_mul_f32 v{Tb+2}, s{S_L2E}, v{Tb+2}')
    for P, Tb, _ in U:
        a.I(f'v_mov_b32 v{Tb+3}, v{Tb+2}')
    for P, Tb, _ in U:
        a.I(f'v_permlane32_swap_b32 v{Tb+2}, v{Tb+3}')
    for P, Tb, _ in U:
        for i in range(16):
            m = Tb + 2 if i < 8 else Tb + 3
            a.I(f'v_fma_f32 v{P+i}, v{P+i}, s{S_L2E}, -v{m}')
            a.I(f'v_exp_f32 v{P+i}, v{P+i}') if False else None
    for P, Tb, _ in U:
        for i in range(16):
            a.I(f'v_exp_f32 v{P+i}, v{P+i}')
    if mid:
        mid()
    for P, Tb, O in U:
        for hlf in range(2):
            b = P + 8 * hlf
            o = O + 4 * hlf
            a.I(f'v_pk_add_f32 v[{o}:{o+1}], v[{b}:{b+1}], v[{b+2}:{b+3}]')
            a.I(f'v_pk_add_f32 v[{o+2}:{o+3}], v[{b+4}:{b+5}], v[{b+6}:{b+7}]')
    for P, Tb, O in U:
        for hlf in range(2):
            o = O + 4 * hlf
            a.I(f'v_pk_add_f32 v[{o}:{o+1}], v[{o}:{o+1}], v[{o+2}:{o+3}]')
    for P, Tb, O in U:
        for hlf in range(2):
            o = O + 4 * hlf
            a.I(f'v_add_f32 v{Tb+hlf}, v{o}, v{o+1}')
    for P, Tb, _ in U:
        a.I(f'v_permlane32_swap_b32 v{Tb}, v{Tb+1}')
    for P, Tb, _ in U:
        a.I(f'v_add_f32 v{Tb+2}, v{Tb}, v{Tb+1}')
    for P, Tb, _ in U:
        a.I(f'v_rcp_f32 v{Tb+2}, v{Tb+2}')
    for P, Tb, _ in U:
        a.I(f'v_mov_b32 v{Tb+3}, v{Tb+2}')
    for P, Tb, _ in U:
        a.I(f'v_permlane32_swap_b32 v{Tb+2}, v{Tb+3}')
    for P, Tb, _ in U:
        for i in range(8):
            sel = 'op_sel:[0,0] op_sel_hi:[1,0]' if i < 4 else 'op_sel:[0,1] op_sel_hi:[1,1]'
            a.I(f'v_pk_mul_f32 v[{P+2*i}:{P+2*i+1}], v[{P+2*i}:{P+2*i+1}], v[{Tb+2}:{Tb+3}] {sel}')
    for P, Tb, O in U:
        for i in range(8):
            a.I(f'v_cvt_pk_bf16_f32 v{O+i}, v{P+2*i}, v{P+2*i+1}')


def publish(a, soff_sgpr_or_imm, name):
    a.lock()
    a.I('s_barrier')
    a.I(f's_cmp_lg_u32 s{S_W}, 0')
    a.I(f's_cbranch_scc1 {name}')
    save = a.vm_issued
    a.I(f'v_mov_b32 v{vPOLL}, 1')
    a.I(f'v_mov_b32 v{vPOFF}, 0')
    a.I('s_mov_b64 exec, 1')
    a.I(f'buffer_atomic_add v{vPOLL}, v{vPOFF}, {S(R_DBG)}, {soff_sgpr_or_imm} offen sc1')
    a.I('s_mov_b64 exec, -1')
    a.vm_issued = save
    a.label(name)
    a.unlock()


def poll_issue(a, soff):
    return a.I(f'buffer_load_dword v{vPOLL}, v{vPOFF}, {S(R_DBG)}, {soff} offen sc1')


def poll_check(a, tok, soff, expected, name, sleep=4):
    a.lock()
    if tok is None:
        a.I('s_waitcnt vmcnt(0)')
    else:
        a.wait_vm(tok)
    a.I(f'v_cmp_gt_u32 vcc, {expected}, v{vPOLL}')
    a.I(f's_cbranch_vccz {name}_OK')
    a.I(f's_mov_b32 s{S_SPIN}, 0')
    a.label(name + '_SPIN')
    save = a.vm_issued
    a.I(f's_sleep {sleep}')
    a.I(f'buffer_load_dword v{vPOLL}, v{vPOFF}, {S(R_DBG)}, {soff} offen sc1')
    a.I(f's_add_u32 s{S_SPIN}, s{S_SPIN}, 1')
    a.I(f's_cmp_gt_u32 s{S_SPIN}, 0x20000')
    a.I(f's_cbranch_scc1 {name}_OK')
    a.I('s_waitcnt vmcnt(0)')
    a.I(f'v_cmp_gt_u32 vcc, {expected}, v{vPOLL}')
    a.I(f's_cbranch_vccnz {name}_SPIN')
    a.vm_issued = save
    a.label(name + '_OK')
    a.unlock()


def wg_wait(a, soff, expected, name, voff_expr=None, sleep=4):
    a.lock()
    a.I(f's_cmp_lg_u32 s{S_W}, 0')
    a.I(f's_cbranch_scc1 {name}_B')
    save = a.vm_issued
    a.I(voff_expr if voff_expr else f'v_mov_b32 v{vPOFF}, 0')
    poll_issue(a, soff)
    poll_check(a, None, soff, expected, name, sleep)
    a.vm_issued = save
    a.label(name + '_B')
    a.I('s_barrier')
    a.unlock()


def flag_set(a, k):
    a.lock()
    a.I(f'v_mov_b32 v{vPOLL}, 0')
    a.I(f's_mov_b64 exec, {1 << k}')
    a.I(f'buffer_store_dword v{vPOLL}, v{vFL}, {S(R_WS)}, 0 offen sc1')
    a.I('s_mov_b64 exec, -1')
    a.unlock()


def flag_wait(a, soff, name, sleep=4, tok=None):
    a.lock()
    if tok is not None:
        a.wait_vm(tok)
        a.I(f'v_cmp_ne_u32 vcc, 0, v{vPOLL}')
        a.I(f's_cbranch_vccz {name}_OK')
    save = a.vm_issued
    a.I(f's_mov_b32 s{S_SPIN}, 0')
    a.label(name)
    a.I(f'buffer_load_dword v{vPOLL}, v{vPOFF}, {S(R_WS)}, s{soff} offen sc1')
    a.I(f's_add_u32 s{S_SPIN}, s{S_SPIN}, 1')
    a.I(f's_cmp_gt_u32 s{S_SPIN}, 0x20000')
    a.I(f's_cbranch_scc1 {name}_OK')
    a.I('s_waitcnt vmcnt(0)')
    a.I(f'v_cmp_ne_u32 vcc, 0, v{vPOLL}')
    a.I(f's_cbranch_vccz {name}_OK')
    a.I(f's_sleep {sleep}')
    a.I(f's_branch {name}')
    a.vm_issued = save
    a.label(name + '_OK')
    a.unlock()


def f1_issue(a, own):
    if own:
        a.I(f's_lshl_b32 s{S_T2}, s{S_KQ}, 6')
        a.I(f's_load_dword s{SQ[0]}, s[{P_DBG}:{P_DBG+1}], s{S_T2}')
        a.I(f's_load_dword s{SQ[1]}, s[{P_DBG}:{P_DBG+1}], s{S_T2} offset:32')
    else:
        for k in range(8):
            a.I(f's_load_dword s{SQ[k]}, s[{P_DBG}:{P_DBG+1}], {32 * k}')


def f1_check(a, own, name):
    a.lock()
    n = 2 if own else 8
    for k in range(1, n):
        a.I(f's_min_u32 s{SQ[0]}, s{SQ[0]}, s{SQ[k]}')
    a.I(f's_cmp_ge_u32 s{SQ[0]}, 32')
    a.I(f's_cbranch_scc1 {name}_B')
    save = a.vm_issued
    poll_issue(a, '0')
    poll_check(a, None, '0', 32, name, 4)
    a.vm_issued = save
    a.label(name + '_B')
    a.unlock()


def gen(a):
    NSH = opt('nsh', 8)
    end = 'L_END'
    a.I('s_cmp_ge_u32 s2, 256')
    a.I(f's_cbranch_scc1 {end}')
    a.I('s_load_dwordx16 s[4:19], s[0:1], 0')
    a.I('s_load_dwordx8 s[20:27], s[0:1], 64')
    a.stamp(rt=True)
    a.stamp()
    a.raw('L_PC:')
    a.I(f's_getpc_b64 s[{R_TMP}:{R_TMP+1}]')
    ACC, CSA, XSUM, GRAM, VONE = 0, 48, 60, 64, 68
    FR, AUXE, AUXO, PHI = 72, 104, 112, 120
    vXD0, vXD1, vWD = 129, 130, 131
    vXA, vWA, vCA, vSA = 132, 136, 139, 142
    vH = 160

    a.I(f'v_and_b32 v{vL}, 63, v0')
    a.I(f'v_lshrrev_b32 v{t0}, 6, v0')
    a.I(f'v_readfirstlane_b32 s{S_W}, v{t0}')
    a.I(f's_and_b32 s{S_XCD}, s2, 7')
    a.I(f's_lshr_b32 s{S_J}, s2, 3')
    a.I(f's_cmp_eq_u32 s{S_W}, 5')
    a.I('s_cbranch_scc1 L_HELP')
    a.I(f's_lshl_b32 s{S_IA}, s{S_XCD}, 5')
    a.I(f's_add_u32 s{S_IA}, s{S_IA}, s{S_J}')
    a.I(f's_lshr_b32 s{S_TB}, s{S_XCD}, 1')
    a.I(f's_lshl_b32 s{S_TB}, s{S_TB}, 3')
    a.I(f's_lshr_b32 s{S_T2}, s{S_J}, 2')
    a.I(f's_add_u32 s{S_TB}, s{S_TB}, s{S_T2}')
    a.I(f's_and_b32 s{S_CG}, s{S_XCD}, 1')
    a.I(f's_lshl_b32 s{S_CG}, s{S_CG}, 2')
    a.I(f's_and_b32 s{S_T2}, s{S_J}, 3')
    a.I(f's_add_u32 s{S_CG}, s{S_CG}, s{S_T2}')
    a.I(f's_lshl_b32 s{S_XW}, s{S_W}, 11')
    a.I(f's_mul_i32 s{S_WW}, s{S_W}, 6144')
    a.I(f's_mov_b32 s{S_L2E}, {LOG2E}')
    a.I(f'v_and_b32 v{l31}, 31, v{vL}')
    a.I(f'v_lshrrev_b32 v{hh}, 5, v{vL}')
    a.I(f'v_lshlrev_b32 v{vAX}, 10, v{hh}')
    a.I(f'v_lshl_add_u32 v{vAX}, v{l31}, 4, v{vAX}')
    a.I(f'v_lshlrev_b32 v{vL16}, 4, v{vL}')
    a.I(f'v_and_b32 v{i16}, 15, v{vL}')
    a.I(f'v_lshrrev_b32 v{gq}, 4, v{vL}')
    a.I(f'v_bfe_u32 v{r4}, v{vL}, 2, 2')
    a.I(f'v_and_b32 v{c4}, 3, v{vL}')
    a.I(f'v_lshrrev_b32 v{l3}, 3, v{vL}')
    a.I(f'v_and_b32 v{l7}, 7, v{vL}')
    a.I(f's_cmp_eq_u32 s{S_W}, 4')
    a.I('s_cbranch_scc1 L_LOAD')
    a.I(f's_lshl_b32 s{S_T0}, s{S_IA}, 13')
    a.I(f's_add_u32 s{S_T0}, s{S_T0}, s{S_XW}')
    a.I('s_waitcnt lgkmcnt(0)')
    srd(a, R_X, P_X, 2048 * 1024)
    a.I(f'buffer_load_dwordx4 v[{vH}:{vH+3}], v{vAX}, {S(R_X)}, s{S_T0} offen')
    tokAX = a.I(f'buffer_load_dwordx4 v[{vH+4}:{vH+7}], v{vAX}, {S(R_X)}, s{S_T0} offen offset:512')
    srd(a, R_WS, P_WS, WS_USED)
    srd(a, R_DBG, P_DBG, 256)

    a.I(f's_and_b32 s{S_T0}, s{S_W}, 1')
    a.I(f's_lshr_b32 s{S_T1}, s{S_W}, 1')
    a.I(f'v_bfe_u32 v{t0}, v{vL}, 1, 3')
    a.I(f'v_xor_b32 v{t0}, v{t0}, v{hh}')
    a.I(f'v_lshlrev_b32 v{t0}, 4, v{t0}')
    a.I(f'v_lshl_add_u32 v{t0}, v{l31}, 7, v{t0}')
    a.I(f's_lshl_b32 s{S_T2}, s{S_T0}, 12')
    a.I(f'v_add_u32 v{vXA}, s{S_T2}, v{t0}')
    for ks in range(1, 4):
        a.I(f'v_xor_b32 v{vXA+ks}, {ks * 32}, v{vXA}')
    a.I(f'v_bfe_u32 v{t0}, v{vL}, 3, 1')
    a.I(f'v_lshlrev_b32 v{t0}, 2, v{t0}')
    a.I(f'v_and_b32 v{t1}, 1, v{vL}')
    a.I(f'v_lshlrev_b32 v{t1}, 3, v{t1}')
    a.I(f'v_lshl_add_u32 v{t1}, v{r4}, 7, v{t1}')
    a.I(f'v_bfe_u32 v{t2}, v{vL}, 4, 1')
    a.I(f'v_lshlrev_b32 v{t2}, 1, v{t2}')
    a.I(f'v_bfe_u32 v{vWA}, v{vL}, 1, 1')
    a.I(f'v_add_u32 v{t2}, v{t2}, v{vWA}')
    a.I(f's_lshl_b32 s{S_T2}, s{S_T1}, 2')
    a.I(f'v_add_u32 v{t2}, s{S_T2}, v{t2}')
    a.I(f'v_xor_b32 v{t2}, v{t2}, v{t0}')
    a.I(f'v_lshl_add_u32 v{t2}, v{t2}, 4, v{t1}')
    a.I(f'v_mul_u32_u24 v{vWA}, 3072, v{hh}')
    a.I(f'v_add_u32 v{t2}, v{t2}, v{vWA}')
    for b in range(2):
        a.I(f'v_add_u32 v{vWA+b}, {WS0 + b * 49152}, v{t2}')
    a.I(f'v_bfe_u32 v{t2}, v{vL}, 1, 1')
    a.I(f's_lshl_b32 s{S_T2}, s{S_W}, 1')
    a.I(f'v_add_u32 v{t2}, s{S_T2}, v{t2}')
    a.I(f'v_xor_b32 v{t2}, v{t2}, v{t0}')
    a.I(f'v_lshl_add_u32 v{t2}, v{t2}, 4, v{t1}')
    a.I(f'v_mul_u32_u24 v{vCA}, 3072, v{gq}')
    a.I(f'v_add_u32 v{t2}, v{t2}, v{vCA}')
    for b in range(2):
        a.I(f'v_add_u32 v{vCA+b}, {WS0 + b * 49152}, v{t2}')
    a.I(f'v_bfe_u32 v{t0}, v{vL}, 1, 3')
    a.I(f'v_xor_b32 v{t0}, v{t0}, v{gq}')
    a.I(f'v_lshlrev_b32 v{t0}, 4, v{t0}')
    a.I(f'v_lshl_add_u32 v{t0}, v{i16}, 7, v{t0}')
    a.I(f'v_add_u32 v{vSA}, s{S_XW}, v{t0}')
    a.I(f'v_xor_b32 v{vSA+1}, 64, v{vSA}')
    for i in range(4):
        a.I(f'v_mov_b32 v{VONE+i}, {ONES}')

    X = vH
    sm, sq, vm, vrs, tt, tt2_ = vH + 8, vH + 9, vH + 10, vH + 11, vH + 12, vH + 13
    U = vH + 32
    aHW0, aHW1 = vH + 14, vH + 15
    aH0, aH1, aST, aPH, vSG, vpW1 = vH + 16, vH + 17, vH + 19, vH + 20, vH + 21, vH + 22
    a.I(f's_lshl_b32 s{S_T0}, s{S_W}, 1')
    a.I(f'v_add_u32 v{t0}, s{S_T0}, v{hh}')
    a.I(f'v_and_b32 v{t1}, 3, v{t0}')
    a.I(f'v_lshlrev_b32 v{t1}, 6, v{t1}')
    a.I(f'v_lshl_add_u32 v{t1}, v{l31}, 4, v{t1}')
    a.I(f'v_lshl_add_u32 v{aHW0}, v{t0}, 10, v{t1}')
    a.I(f'v_add_u32 v{t1}, 512, v{t1}')
    a.I(f'v_and_b32 v{t1}, 1023, v{t1}')
    a.I(f'v_lshl_add_u32 v{aHW1}, v{t0}, 10, v{t1}')
    a.I(f'v_lshlrev_b32 v{t0}, 5, v{gq}')
    a.I(f'v_lshl_add_u32 v{t0}, v{c4}, 3, v{t0}')
    a.I(f's_lshl_b32 s{S_T0}, s{S_W}, 8')
    a.I(f'v_lshl_add_u32 v{t1}, v{r4}, 6, v{t0}')
    a.I(f'v_add_u32 v{t1}, s{S_T0}, v{t1}')
    a.I(f'v_add_u32 v{t2}, 128, v{t1}')
    a.I(f'v_and_b32 v{t1}, 1023, v{t1}')
    a.I(f'v_and_b32 v{t2}, 1023, v{t2}')
    a.I(f'v_lshl_add_u32 v{aH0}, v{r4}, 10, v{t1}')
    a.I(f'v_lshl_add_u32 v{aH1}, v{r4}, 10, v{t2}')
    a.I(f's_and_b32 s{S_T0}, s{S_IA}, 3')
    a.I(f's_lshl_b32 s{S_T0}, s{S_T0}, 8')
    a.I(f's_lshr_b32 s{S_T1}, s{S_IA}, 2')
    a.I(f's_lshl_b32 s{S_T1}, s{S_T1}, 10')
    a.I(f's_add_u32 s{S_T0}, s{S_T0}, s{S_T1}')
    a.I(f'v_lshlrev_b32 v{aST}, 16, v{gq}')
    a.I(f'v_lshl_add_u32 v{aST}, v{i16}, 4, v{aST}')
    a.I(f'v_add_u32 v{aST}, s{S_T0}, v{aST}')
    a.I(f'v_lshl_add_u32 v{aPH}, v{hh}, 2, v{r4}')
    a.I(f'v_lshlrev_b32 v{aPH}, 5, v{aPH}')
    a.I(f'v_lshl_add_u32 v{aPH}, v{c4}, 3, v{aPH}')
    a.I(f's_lshr_b32 s{S_T0}, s{S_W}, 1')
    a.I(f's_lshl_b32 s{S_T0}, s{S_T0}, 10')
    a.I(f's_add_u32 s{S_T0}, s{S_T0}, {WPHI_L}')
    a.I(f'v_add_u32 v{aPH}, s{S_T0}, v{aPH}')
    a.I(f'v_bfe_u32 v{vSG}, v{vL}, 4, 1')
    a.I(f'v_mul_u32_u24 v{vSG}, 0x8000, v{vSG}')
    a.I(f'v_lshl_or_b32 v{vSG}, v{vSG}, 16, v{vSG}')
    a.I(f's_lshl_b32 s{S_T2}, s{S_CG}, 2')
    a.I(f's_add_u32 s{S_T2}, s{S_T2}, s{S_W}')
    a.I(f's_lshl_b32 s{S_T0}, s{S_TB}, 5')
    a.I(f's_add_u32 s{S_KP}, s{S_T2}, s{S_T0}')
    a.I(f's_mul_i32 s{S_SOT}, s{S_T2}, {FW}')
    a.I(f's_mul_i32 s{S_T0}, s{S_TB}, {FS}')
    a.I(f's_add_u32 s{S_SOT}, s{S_SOT}, s{S_T0}')
    a.I(f's_add_u32 s{S_SOT}, s{S_SOT}, {FL5_OFF}')
    a.I(f's_mul_i32 s{S_KP}, s{S_KP}, {KVP_STRIDE}')
    a.I(f's_add_u32 s{S_KP}, s{S_KP}, {KVP_OFF}')
    a.I(f'v_mul_u32_u24 v{vKP}, 17, v{hh}')
    a.I(f'v_add_lshl_u32 v{vKP}, v{vKP}, v{l31}, 4')
    a.I(f'v_mov_b32 v{vFL}, {FLK_OFF + 8192}')
    a.I(f'v_writelane_b32 v{vFL}, s{S_SOT}, 2')
    a.I(f's_lshr_b32 s{S_KQ}, s{S_XCD}, 1')
    a.I(f's_and_b32 s{S_T0}, s{S_XCD}, 1')
    a.I(f's_mul_i32 s{S_TAU}, s{S_T0}, 30')
    a.I(f's_add_u32 s{S_TAU}, s{S_TAU}, s{S_J}')
    a.I(f's_lshl_b32 s{S_T1}, s{S_XCD}, 1')
    a.I(f's_add_u32 s{S_T1}, s{S_T1}, s{S_J}')
    a.I(f's_sub_u32 s{S_T1}, s{S_T1}, 30')
    a.I(f's_cmp_ge_u32 s{S_J}, 30')
    a.I(f's_cselect_b32 s{S_SPARE}, s{S_T1}, -1')
    a.I(f's_cselect_b32 s{S_TAU}, 60, s{S_TAU}')
    a.I(f's_lshr_b32 s{S_FT}, s{S_TAU}, 2')
    a.I(f's_and_b32 s{S_DT}, s{S_TAU}, 3')
    a.I(f's_lshl_b32 s{S_T0}, s{S_TAU}, 2')
    a.I(f's_add_u32 s{S_T0}, s{S_T0}, s{S_W}')
    a.I(f's_mul_i32 s{S_T0}, s{S_T0}, {4 * FW}')
    a.I(f's_mul_i32 s{S_T1}, s{S_KQ}, {FW}')
    a.I(f's_add_u32 s{S_T0}, s{S_T0}, s{S_T1}')
    a.I(f's_add_u32 s{S_T0}, s{S_T0}, {FLX_OFF}')
    a.I(f'v_writelane_b32 v{vFL}, s{S_T0}, 3')
    a.I(f's_lshl_b32 s{S_T0}, s{S_DT}, 3')
    a.I(f's_and_b32 s{S_T1}, s{S_KQ}, 1')
    a.I(f's_lshl_b32 s{S_T1}, s{S_T1}, 2')
    a.I(f's_add_u32 s{S_T0}, s{S_T0}, s{S_T1}')
    a.I(f's_add_u32 s0, s{S_T0}, s{S_W}')
    a.I(f's_lshl_b32 s{S_T1}, s{S_FT}, 1')
    a.I(f's_lshr_b32 s{S_T2}, s{S_KQ}, 1')
    a.I(f's_add_u32 s1, s{S_T1}, s{S_T2}')
    a.I(f's_mul_i32 s{S_T0}, s0, {FS}')
    a.I(f's_mul_i32 s{S_T1}, s1, {FW}')
    a.I(f's_add_u32 s{S_T0}, s{S_T0}, s{S_T1}')
    a.I(f's_add_u32 s{S_T0}, s{S_T0}, {FL4_OFF}')
    a.I(f'v_writelane_b32 v{vFL}, s{S_T0}, 1')
    SEN = vH + 24
    for i in range(4):
        a.I(f'v_mov_b32 v{SEN+i}, -1')
    a.I(f's_lshl_b32 s{S_LW}, s{S_W}, 19')
    a.I(f's_add_u32 s{S_LW2}, s{S_LW}, 262144')
    a.I(f's_lshl_b32 s{S_SOF}, s2, 8')
    a.I(f's_lshl_b32 s{S_T0}, s{S_W}, 6')
    a.I(f's_add_u32 s{S_SOF}, s{S_SOF}, s{S_T0}')
    a.I(f's_add_u32 s{S_SOF}, s{S_SOF}, {KVF_OFF}')
    W1W = 0

    def ln_round():
        a.I(f'v_mov_b32 v{sm}, 0')
        a.I(f'v_mov_b32 v{sq}, 0')
        for i in range(8):
            a.I(f'v_dot2c_f32_bf16 v{sm}, v{VONE}, v{X+i}')
            a.I(f'v_dot2c_f32_bf16 v{sq}, v{X+i}, v{X+i}')
        for i in range(8):
            a.I(f'v_lshlrev_b32 v{U+2*i}, 16, v{X+i}')
            a.I(f'v_and_b32 v{U+2*i+1}, 0xffff0000, v{X+i}')
        reduce32(a, [sm, sq], [tt, tt2_])
        ln_scalars(a, sm, sq, vm, vrs, tt)
        for i in range(8):
            a.I(f'v_pk_add_f32 v[{U+2*i}:{U+2*i+1}], v[{U+2*i}:{U+2*i+1}], v[{vm}:{vm+1}] op_sel_hi:[1,0] neg_lo:[0,1] neg_hi:[0,1]')
        for i in range(8):
            a.I(f'v_cvt_pk_bf16_f32 v{X+i}, v{U+2*i}, v{U+2*i+1}')
        for i in range(8):
            a.I(f'v_lshlrev_b32 v{U+2*i}, 16, v{X+i}')
            a.I(f'v_and_b32 v{U+2*i+1}, 0xffff0000, v{X+i}')
        for i in range(8):
            a.I(f'v_pk_mul_f32 v[{U+2*i}:{U+2*i+1}], v[{U+2*i}:{U+2*i+1}], v[{vm}:{vm+1}] op_sel:[0,1] op_sel_hi:[1,1]')
        for i in range(8):
            a.I(f'v_cvt_pk_bf16_f32 v{X+i}, v{U+2*i}, v{U+2*i+1}')

    a.stamp()
    a.wait_vm(tokAX)
    a.stamp()
    ln_round()
    ln_round()
    a.I(f'ds_write_b128 v{aHW0}, v[{X}:{X+3}] offset:{HS}')
    a.I(f'ds_write_b128 v{aHW1}, v[{X+4}:{X+7}] offset:{HS}')
    a.stamp()
    TRB = 200
    a.I('s_mov_b32 exec_lo, 0x1ffff')
    a.I('s_mov_b32 exec_hi, 0x1ffff')
    for sg in range(2):
        a.I(f'buffer_store_dwordx4 v[{SEN}:{SEN+3}], v{vKP}, {S(R_WS)}, s{S_KP} offen offset:{sg * 544} sc1')
    a.I('s_mov_b64 exec, 15')
    a.I(f'buffer_store_dwordx4 v[{SEN}:{SEN+3}], v{vL16}, {S(R_WS)}, s{S_SOF} offen sc1')
    a.I('s_mov_b64 exec, 14')
    a.I(f'buffer_store_dword v{SEN}, v{vFL}, {S(R_WS)}, 0 offen sc1')
    a.I('s_mov_b64 exec, -1')
    a.stamp()
    a.I('s_waitcnt lgkmcnt(0)')
    a.I('s_barrier')
    a.collect()
    a.stamp()
    for u, ad in enumerate((aH0, aH1)):
        a.I(f'ds_read_b64_tr_b16 v[{TRB+4*u}:{TRB+4*u+1}], v{ad} offset:{HS}')
        a.I(f'ds_read_b64_tr_b16 v[{TRB+4*u+2}:{TRB+4*u+3}], v{ad} offset:{HS + 4096}')
    for hd in range(2):
        a.I(f'ds_read_b64_tr_b16 v[{PHI+4*hd}:{PHI+4*hd+1}], v{aPH} offset:{hd * 512}')
        a.I(f'ds_read_b64_tr_b16 v[{PHI+4*hd+2}:{PHI+4*hd+3}], v{aPH} offset:{hd * 512 + 256}')

    def wbase(slot):
        return slot // 2, (slot % 2) * 24576

    def reads(n):
        st, ks = divmod(n, 4)
        slot = st % 4
        F = FR + 16 * (n & 1)
        bi, bo = wbase(slot)
        L = [f'ds_read_b128 v[{F}:{F+3}], v{vXA+ks} offset:{XS(slot)}']
        for seg in range(3):
            o = bo + ks * 6144 + seg * 1024
            W = F + 4 + 4 * seg
            L.append(f'ds_read_b64_tr_b16 v[{W}:{W+1}], v{vWA+bi} offset:{o}')
            L.append(f'ds_read_b64_tr_b16 v[{W+2}:{W+3}], v{vWA+bi} offset:{o + 512}')
        jp = ks >> 1
        if n % 2 == 0:
            L.append(f'ds_read_b128 v[{AUXE}:{AUXE+3}], v{vSA+jp} offset:{XS(slot)}')
            segs = [(0, AUXE + 4)]
        else:
            segs = [(1, AUXO), (2, AUXO + 4)]
        for seg, W in segs:
            o = bo + jp * 12288 + seg * 1024
            L.append(f'ds_read_b64_tr_b16 v[{W}:{W+1}], v{vCA+bi} offset:{o}')
            L.append(f'ds_read_b64_tr_b16 v[{W+2}:{W+3}], v{vCA+bi} offset:{o + 512}')
        return L

    def mfmas(n):
        F = FR + 16 * (n & 1)
        L = []
        for seg in range(3):
            A = ACC + 16 * seg
            W = F + 4 + 4 * seg
            c = '0' if n == 0 else f'v[{A}:{A+15}]'
            L.append((f'v_mfma_f32_32x32x16_bf16 v[{A}:{A+15}], v[{W}:{W+3}], v[{F}:{F+3}], {c}', 2 + 2 * seg))
        if n % 2 == 0:
            lst = [(XSUM, VONE, AUXE, 7), (GRAM, AUXE, AUXE, 7), (CSA, AUXE + 4, VONE, 9)]
        else:
            lst = [(CSA + 4, AUXO, VONE, 8), (CSA + 8, AUXO + 4, VONE, 10)]
        for D, A_, B_, need in lst:
            c = '0' if n < 2 else f'v[{D}:{D+3}]'
            L.append((f'v_mfma_f32_16x16x32_bf16 v[{D}:{D+3}], v[{A_}:{A_+3}], v[{B_}:{B_+3}], {c}', need))
        return L

    rtok = {0: [a.I(t) for t in reads(0)]}
    a.wait_lg(rtok[0][2])
    a.I(f'buffer_store_dwordx4 v[{TRB}:{TRB+3}], v{aST}, {S(R_WS)}, s{S_LW} offen sc1')
    tokAS = a.I(f'buffer_store_dwordx4 v[{TRB+4}:{TRB+7}], v{aST}, {S(R_WS)}, s{S_LW2} offen sc1')
    PUB1 = opt('pub1', 3)
    bfill = [f'v_xor_b32 v{PHI+i}, v{PHI+i}, v{vSG}' for i in range(8)]
    for n in range(32):
        if n in (8, 16, 24) and opt('stB', 0):
            a.stamp()
        M = mfmas(n)
        R = reads(n + 1) if n + 1 < 32 else []
        rtok[n + 1] = []
        newst = (n + 1) % 4 == 0 and n + 1 < 32
        quota = [3, 3, 3, 1, 1, 1]
        for k, (txt, need) in enumerate(M):
            a.wait_lg(rtok[n][need])
            a.I(txt)
            if k == 0 and newst:
                st = (n + 1) // 4
                a.I('s_waitcnt lgkmcnt(0)')
                if st == PUB1:
                    a.wait_vm(tokAS)
                    a.I(f's_and_b32 s{S_T0}, s2, {NSH - 1}')
                    a.I(f's_mul_i32 s{S_T0}, s{S_T0}, {256 // NSH}')
                    publish(a, f's{S_T0}', 'L_PUB1')
                else:
                    a.I('s_barrier')
            q = quota[k] if k < len(M) - 1 else 99
            while R and q > 0:
                rtok[n + 1].append(a.I(R.pop(0)))
                q -= 1
            if bfill:
                a.I(bfill.pop(0))
    a.stamp()

    vCT = 129
    vCFd = 132
    vCR = 134
    vCB = 140
    S_CT, S_CFW, S_CTW = S_K1, S_K2, S_K3

    def c_setup():
        a.I(f's_lshr_b32 s{S_T0}, s{S_W}, 1')
        a.I(f's_mul_i32 s{S_T0}, s{S_T0}, 6')
        a.I(f'v_lshl_add_u32 v{t0}, v{gq}, 3, v{r4}')
        a.I(f'v_mul_u32_u24 v{t0}, 192, v{t0}')
        a.I(f'v_and_b32 v{t1}, 1, v{vL}')
        a.I(f'v_lshl_add_u32 v{t0}, v{t1}, 3, v{t0}')
        a.I(f'v_bfe_u32 v{t1}, v{vL}, 1, 1')
        a.I(f'v_add_u32 v{t1}, s{S_T0}, v{t1}')
        a.I(f'v_bfe_u32 v{t2}, v{vL}, 4, 1')
        a.I(f'v_lshlrev_b32 v{t2}, 1, v{t2}')
        for fb in range(3):
            a.I(f'v_add_u32 v{vCR+fb}, {2 * fb}, v{t1}')
            a.I(f'v_xor_b32 v{vCR+fb}, v{vCR+fb}, v{t2}')
            a.I(f'v_lshl_add_u32 v{vCR+fb}, v{vCR+fb}, 4, v{t0}')
            a.I(f'v_add_u32 v{vCR+3+fb}, {2 * CST}, v{vCR+fb}')
        a.I(f's_and_b32 s{S_T0}, s{S_W}, 1')
        a.I(f's_lshl_b32 s{S_T0}, s{S_T0}, 13')
        a.I(f's_add_u32 s{S_T0}, s{S_T0}, 12288')
        a.I(f'v_add_u32 v{vCB}, s{S_T0}, v{vL16}')
        a.I(f'v_add_u32 v{vCB+1}, {2 * CST}, v{vCB}')

    vTD0, vTD1, vTE0, vTE1 = 216, 217, 218, 219
    vR0, vR1, vR2, vR3 = 220, 221, 222, 223
    vXO, vBO, aR, vF1, vF2, vKF = 224, 225, 226, 227, 228, 229
    f0, f1 = 230, 231
    vR4, vR5 = 249, 250
    R_T1, R_T2 = R_W, R_OUT

    def e_setup_list():
        L = []
        A = L.append
        A(f's_lshl_b32 s{S_LW}, s{S_W}, 11')
        A(f's_mul_i32 s{S_LW2}, s{S_W}, {THI * 2048}')
        A(f's_add_u32 s{S_LW2}, s{S_LW2}, {THB}')
        for d, p, n in ((R_T1, P_WO, 512 * 1024), (R_T2, P_W2, 1376 * 4096)):
            A(f's_mov_b32 s{d}, s{p}')
            A(f's_mov_b32 s{d+1}, s{p+1}')
            A(f's_mov_b32 s{d+2}, {n}')
            A(f's_mov_b32 s{d+3}, 0x20000')
        A(f'v_bfe_u32 v{f0}, v{vL}, 4, 1')
        A(f'v_lshlrev_b32 v{f0}, 2, v{f0}')
        A(f'v_xor_b32 v{f0}, v{f0}, v{l7}')
        A(f'v_lshlrev_b32 v{f0}, 4, v{f0}')
        A(f's_lshl_b32 s{S_T1}, s{S_CG}, 7')
        A(f's_lshl_b32 s{S_T2}, s{S_W}, 17')
        A(f's_add_u32 s{S_T1}, s{S_T1}, s{S_T2}')
        A(f'v_lshl_add_u32 v{vTD0}, v{l3}, 10, v{f0}')
        A(f'v_add_u32 v{vTD0}, s{S_T1}, v{vTD0}')
        A(f'v_add_u32 v{vTD1}, {8 * 1024 - 1024}, v{vTD0}')
        A(f's_lshl_b32 s{S_T1}, s{S_TB}, 7')
        A(f's_mul_i32 s{S_T2}, s{S_W}, {22 * 65536}')
        A(f's_add_u32 s{S_T1}, s{S_T1}, s{S_T2}')
        A(f'v_lshl_add_u32 v{vTE0}, v{l3}, 12, v{f0}')
        A(f'v_add_u32 v{vTE0}, s{S_T1}, v{vTE0}')
        A(f'v_add_u32 v{vTE1}, {8 * 4096 - 1024}, v{vTE0}')
        A(f'v_bfe_u32 v{f0}, v{vL}, 3, 1')
        A(f'v_lshlrev_b32 v{f0}, 2, v{f0}')
        A(f'v_bfe_u32 v{f1}, v{vL}, 4, 1')
        A(f'v_lshlrev_b32 v{f1}, 1, v{f1}')
        A(f'v_bfe_u32 v{vR0}, v{vL}, 1, 1')
        A(f'v_add_u32 v{f1}, v{f1}, v{vR0}')
        A(f'v_xor_b32 v{f1}, v{f1}, v{f0}')
        A(f'v_lshlrev_b32 v{f1}, 4, v{f1}')
        A(f'v_and_b32 v{f0}, 1, v{vL}')
        A(f'v_lshl_add_u32 v{f1}, v{f0}, 3, v{f1}')
        A(f'v_lshl_add_u32 v{f0}, v{hh}, 2, v{r4}')
        A(f'v_lshl_add_u32 v{f1}, v{f0}, 7, v{f1}')
        A(f'v_add_u32 v{vR0}, s{S_LW}, v{f1}')
        A(f'v_xor_b32 v{vR1}, 64, v{vR0}')
        A(f'v_add_u32 v{vR2}, s{S_LW2}, v{f1}')
        A(f'v_xor_b32 v{vR3}, 64, v{vR2}')
        A(f'v_add_u32 v{vR4}, {7 * 8192}, v{vR0}')
        A(f'v_add_u32 v{vR5}, {7 * 8192}, v{vR1}')
        A(f's_lshl_b32 s{S_T0}, s{S_W}, 3')
        A(f'v_add_u32 v{f0}, s{S_T0}, v{l3}')
        A(f'v_lshlrev_b32 v{vBO}, 1, v{f0}')
        A(f'v_mul_u32_u24 v{aR}, 272, v{f0}')
        A(f'v_lshl_add_u32 v{aR}, v{l7}, 5, v{aR}')
        A(f'v_lshlrev_b32 v{vXO}, 10, v{f0}')
        A(f'v_lshl_add_u32 v{vXO}, v{l7}, 4, v{vXO}')
        A(f's_lshl_b32 s{S_T0}, s{S_TB}, 16')
        A(f's_lshl_b32 s{S_T1}, s{S_CG}, 7')
        A(f's_add_u32 s{S_T1}, s{S_T0}, s{S_T1}')
        A(f'v_add_u32 v{vXO}, s{S_T1}, v{vXO}')
        A(f's_lshl_b32 s{S_T1}, s{S_W}, 14')
        A(f's_add_u32 s{S_T0}, s{S_T0}, s{S_T1}')
        A(f's_add_u32 s{S_T0}, s{S_T0}, {OF_OFF}')
        A(f'v_add_u32 v{vF1}, s{S_T0}, v{vL16}')
        A(f's_mul_i32 s{S_T1}, s{S_CG}, {UF_DT}')
        A(f's_mul_i32 s{S_T2}, s{S_W}, {22 * 2048}')
        A(f's_add_u32 s{S_T1}, s{S_T1}, s{S_T2}')
        A(f's_add_u32 s{S_T1}, s{S_T1}, {UF_OFF}')
        A(f'v_add_u32 v{vF2}, s{S_T1}, v{vL16}')
        A(f's_lshr_b32 s{S_T1}, s{S_W}, 1')
        A(f's_lshl_b32 s{S_T1}, s{S_T1}, 1')
        A(f's_lshl_b32 s{S_T2}, s{S_CG}, 2')
        A(f's_add_u32 s{S_HD0}, s{S_T1}, s{S_T2}')
        A(f's_mul_i32 s{S_KF}, s{S_HD0}, 1088')
        A(f's_add_u32 s{S_KF}, s{S_KF}, {KVF_OFF}')
        A(f'v_min_u32 v{vKF}, 16, v{l31}')
        A(f'v_mul_u32_u24 v{f0}, 17, v{hh}')
        A(f'v_add_lshl_u32 v{vKF}, v{vKF}, v{f0}, 4')
        return L

    NP1, NP2 = 8, 22
    NS = NP1 + NP2
    tT, tF = {}, {}

    def t_issue(n):
        sl = n % TSLOTS
        a.lock()
        if n >= NP2:
            so, v0_, v1_, R_ = (n - NP2) * 16384, vTD0, vTD1, R_T1
        else:
            so, v0_, v1_, R_ = n * 65536, vTE0, vTE1, R_T2
        a.I(f's_mov_b32 s{S_SOT}, {so}')
        if sl < THI:
            a.I(f's_add_u32 m0, s{S_LW2}, {sl * 2048}')
        else:
            a.I(f's_add_u32 m0, s{S_LW}, {(sl - THI) * 8192}')
        a.I(f'buffer_load_dwordx4 v{v0_}, {S(R_)}, s{S_SOT} offen lds')
        tT[n] = a.I(f'buffer_load_dwordx4 v{v1_}, {S(R_)}, s{S_SOT} offen offset:1024 lds')
        a.unlock()

    e0 = FR
    aC, aS, g0, g1 = e0, e0 + 1, e0 + 2, e0 + 3
    a.I(f's_lshl_b32 s{S_T0}, s{S_W}, 6')
    a.I(f's_add_u32 s{S_T0}, s{S_T0}, {EP_CS}')
    a.I(f'v_lshlrev_b32 v{aC}, 4, v{gq}')
    a.I(f'v_add_u32 v{aC}, s{S_T0}, v{aC}')
    a.I(f's_lshl_b32 s{S_T0}, s{S_W}, 7')
    a.I(f's_add_u32 s{S_T0}, s{S_T0}, {EP_ST}')
    a.I(f'v_lshlrev_b32 v{aS}, 3, v{i16}')
    a.I(f'v_add_u32 v{aS}, s{S_T0}, v{aS}')
    a.I(f'v_cmp_eq_u32 vcc, 1, v{c4}')
    a.I(f'v_cndmask_b32 v{g1}, v{GRAM}, v{GRAM+1}, vcc')
    a.I(f'v_cmp_eq_u32 vcc, 2, v{c4}')
    a.I(f'v_cndmask_b32 v{g1}, v{g1}, v{GRAM+2}, vcc')
    a.I(f'v_cmp_eq_u32 vcc, 3, v{c4}')
    a.I(f'v_cndmask_b32 v{g1}, v{g1}, v{GRAM+3}, vcc')
    a.I(f'v_mov_b32 v{g0}, v{XSUM}')
    a.lock()
    a.I(f'v_cmp_eq_u32 vcc, v{r4}, v{gq}')
    a.I(f's_and_saveexec_b64 s[{S_EXEC}:{S_EXEC+1}], vcc')
    a.I(f'ds_write_b64 v{aS}, v[{g0}:{g1}]')
    a.I(f's_mov_b64 exec, s[{S_EXEC}:{S_EXEC+1}]')
    a.I(f'v_cmp_eq_u32 vcc, 0, v{i16}')
    a.I(f's_and_saveexec_b64 s[{S_EXEC}:{S_EXEC+1}], vcc')
    for seg in range(3):
        a.I(f'ds_write_b128 v{aC}, v[{CSA+4*seg}:{CSA+4*seg+3}] offset:{seg * 256}')
    a.I(f's_mov_b64 exec, s[{S_EXEC}:{S_EXEC+1}]')
    a.unlock()
    c_setup()
    a.I(f's_and_b32 s{S_T0}, s{S_W}, 1')
    a.I(f's_lshr_b32 s{S_T1}, s{S_W}, 1')
    a.I(f's_lshl_b32 s{S_T2}, s{S_T0}, 8')
    a.I(f's_add_u32 s{S_T2}, s{S_T2}, {EP_ST}')
    a.I(f'v_lshlrev_b32 v{aS}, 3, v{l31}')
    a.I(f'v_add_u32 v{aS}, s{S_T2}, v{aS}')
    a.I(f's_lshl_b32 s{S_T2}, s{S_T1}, 7')
    a.I(f's_add_u32 s{S_T2}, s{S_T2}, {EP_CS}')
    a.I(f'v_lshlrev_b32 v{aC}, 4, v{hh}')
    a.I(f'v_add_u32 v{aC}, s{S_T2}, v{aC}')
    a.I('s_waitcnt lgkmcnt(0)')
    a.I('s_barrier')
    a.stamp()
    a.collect()
    CSR = 160
    a.I(f'ds_read_b64 v[{g0}:{g1}], v{aS}')
    for seg in (1, 2, 0):
        for q4 in range(4):
            b = CSR + 16 * seg + 4 * q4
            a.I(f'ds_read_b128 v[{b}:{b+3}], v{aC} offset:{seg * 256 + q4 * 32}')
    aV, aK, swv, swk = e0 + 8, e0 + 9, e0 + 10, e0 + 11
    aV2, aK1, aK2, aK3 = e0 + 12, e0 + 13, e0 + 14, e0 + 15
    a.I(f's_lshl_b32 s{S_T2}, s{S_T1}, 12')
    a.I(f's_lshl_b32 s{S_SOX}, s{S_T0}, 10')
    a.I(f's_add_u32 s{S_T2}, s{S_T2}, s{S_SOX}')
    a.I(f's_add_u32 s{S_T2}, s{S_T2}, {EP_VV}')
    a.I(f'v_xor_b32 v{swv}, v{r4}, v{hh}')
    a.I(f'v_lshlrev_b32 v{swv}, 3, v{swv}')
    a.I(f'v_lshl_add_u32 v{aV}, v{l31}, 5, v{swv}')
    a.I(f'v_add_u32 v{aV}, s{S_T2}, v{aV}')
    a.I(f'v_xor_b32 v{aV2}, 16, v{aV}')
    a.I(f's_lshl_b32 s{S_T2}, s{S_T1}, 13')
    a.I(f's_lshl_b32 s{S_SOX}, s{S_T0}, 11')
    a.I(f's_add_u32 s{S_T2}, s{S_T2}, s{S_SOX}')
    a.I(f's_add_u32 s{S_T2}, s{S_T2}, {EP_PK}')
    a.I(f'v_bfe_u32 v{swk}, v{vL}, 1, 3')
    a.I(f'v_xor_b32 v{swk}, v{swk}, v{hh}')
    a.I(f'v_lshlrev_b32 v{swk}, 3, v{swk}')
    a.I(f'v_lshl_add_u32 v{aK}, v{l31}, 6, v{swk}')
    a.I(f'v_add_u32 v{aK}, s{S_T2}, v{aK}')
    a.I(f'v_xor_b32 v{aK1}, 16, v{aK}')
    a.I(f'v_xor_b32 v{aK2}, 32, v{aK}')
    a.I(f'v_xor_b32 v{aK3}, 48, v{aK}')
    vm2, vrs2, tt2 = e0 + 4, e0 + 5, e0 + 6
    a.I('s_waitcnt lgkmcnt(12)')
    ln_scalars(a, g0, g1, vm2, vrs2, tt2)
    PKD = 208

    def fix_seg(seg):
        for i in range(8):
            r = ACC + 16 * seg + 2 * i
            c = CSR + 16 * seg + 2 * i
            a.I(f'v_pk_fma_f32 v[{r}:{r+1}], v[{c}:{c+1}], v[{vm2}:{vm2+1}], v[{r}:{r+1}] op_sel_hi:[1,0,1] neg_lo:[0,1,0] neg_hi:[0,1,0]')
        for i in range(8):
            r = ACC + 16 * seg + 2 * i
            a.I(f'v_pk_mul_f32 v[{r}:{r+1}], v[{r}:{r+1}], v[{vm2}:{vm2+1}] op_sel:[0,1] op_sel_hi:[1,1]')
        for i in range(8):
            r = ACC + 16 * seg + 2 * i
            a.I(f'v_cvt_pk_bf16_f32 v{PKD+8*seg+i}, v{r}, v{r+1}')

    def phi(u, D):
        hd = u & 1
        B_ = PKD + 4 * u
        a.I(f'v_mfma_f32_32x32x16_bf16 v[{D}:{D+15}], v[{PHI+4*hd}:{PHI+4*hd+3}], v[{B_}:{B_+3}], 0')

    a.I('s_waitcnt lgkmcnt(8)')
    fix_seg(1)
    phi(2, 16)
    phi(3, 48)
    a.I('s_waitcnt lgkmcnt(4)')
    fix_seg(2)
    for hd in range(2):
        b = PKD + 16 + 4 * hd
        a.I(f'ds_write_b64 v{aV}, v[{b}:{b+1}] offset:{hd * 2048}')
        a.I(f'ds_write_b64 v{aV2}, v[{b+2}:{b+3}] offset:{hd * 2048}')
    SMT = e0 + 16
    PHK = 176
    a.stamp()
    softmax2(a, [16, 48], SMT, [PHK, PHK + 8])
    for hd in range(2):
        for c, ad in enumerate((aK, aK1, aK2, aK3)):
            b = PHK + 8 * hd + 2 * c
            a.I(f'ds_write_b64 v{ad}, v[{b}:{b+1}] offset:{hd * 4096}')
    rK0, rK1, rV0, rV1 = e0 + 24, e0 + 25, e0 + 26, e0 + 27
    tk = e0 + 28
    a.I(f'v_lshl_add_u32 v{tk}, v{hh}, 3, v{r4}')
    a.I(f'v_bfe_u32 v{rK0}, v{vL}, 4, 1')
    a.I(f'v_lshl_add_u32 v{rK0}, v{rK0}, 2, v{c4}')
    a.I(f'v_lshrrev_b32 v{rK1}, 1, v{tk}')
    a.I(f'v_xor_b32 v{rK0}, v{rK0}, v{rK1}')
    a.I(f'v_lshlrev_b32 v{rK0}, 3, v{rK0}')
    a.I(f'v_lshl_add_u32 v{rK0}, v{tk}, 6, v{rK0}')
    a.I(f's_lshl_b32 s{S_T2}, s{S_W}, 12')
    a.I(f's_add_u32 s{S_T2}, s{S_T2}, {EP_PK}')
    a.I(f'v_add_u32 v{rK0}, s{S_T2}, v{rK0}')
    a.I(f'v_xor_b32 v{rK1}, 16, v{rK0}')
    a.I(f'v_add_u32 v{rK1}, 256, v{rK1}')
    a.I(f'v_lshrrev_b32 v{rV0}, 2, v{tk}')
    a.I(f'v_xor_b32 v{rV0}, v{rV0}, v{c4}')
    a.I(f'v_lshlrev_b32 v{rV0}, 3, v{rV0}')
    a.I(f'v_lshl_add_u32 v{rV0}, v{tk}, 5, v{rV0}')
    a.I(f's_lshl_b32 s{S_T2}, s{S_W}, 11')
    a.I(f's_add_u32 s{S_T2}, s{S_T2}, {EP_VV}')
    a.I(f'v_add_u32 v{rV0}, s{S_T2}, v{rV0}')
    a.I(f'v_xor_b32 v{rV1}, 8, v{rV0}')
    a.I(f'v_add_u32 v{rV1}, 128, v{rV1}')
    a.I('s_waitcnt lgkmcnt(0)')
    a.I('s_barrier')
    a.stamp()
    KA, KB, KD = 32, 192, 16
    for s_ in range(4):
        a.I(f'ds_read_b64_tr_b16 v[{KA+4*s_}:{KA+4*s_+1}], v{rK0} offset:{s_ * 1024}')
        a.I(f'ds_read_b64_tr_b16 v[{KA+4*s_+2}:{KA+4*s_+3}], v{rK1} offset:{s_ * 1024}')
    for s_ in range(4):
        a.I(f'ds_read_b64_tr_b16 v[{KB+4*s_}:{KB+4*s_+1}], v{rV0} offset:{s_ * 512}')
        a.I(f'ds_read_b64_tr_b16 v[{KB+4*s_+2}:{KB+4*s_+3}], v{rV1} offset:{s_ * 512}')
    a.I(f'v_cmp_le_u32 vcc, 16, v{l31}')
    a.I('s_waitcnt lgkmcnt(0)')
    for i in range(16):
        a.I(f'v_cndmask_b32 v{KB+i}, v{KB+i}, v{VONE}, vcc')
    for s_ in range(4):
        c = '0' if s_ == 0 else f'v[{KD}:{KD+15}]'
        a.I(f'v_mfma_f32_32x32x16_bf16 v[{KD}:{KD+15}], v[{KA+4*s_}:{KA+4*s_+3}], v[{KB+4*s_}:{KB+4*s_+3}], {c}')
    fix_seg(0)
    for i in range(8):
        a.I(f'v_cvt_pk_bf16_f32 v{KB+i}, v{KD+2*i}, v{KD+2*i+1}')
    a.lock()
    a.I('s_mov_b32 exec_lo, 0x1ffff')
    a.I('s_mov_b32 exec_hi, 0x1ffff')
    for sg in range(2):
        tokKV = a.I(f'buffer_store_dwordx4 v[{KB+4*sg}:{KB+4*sg+3}], v{vKP}, {S(R_WS)}, s{S_KP} offen offset:{sg * 544} sc1')
    a.I('s_mov_b64 exec, -1')
    a.unlock()
    a.stamp()
    a.collect()
    a.I(f's_mov_b32 s{S_OD}, 0')
    if STAMPS:
        a.I(f'v_writelane_b32 v{vSTAMP}, 0, 44')

    def q_path(mid=None):
        phi(0, 0)
        phi(1, 32)
        softmax2(a, [0, 32], SMT, [PHQ, PHQ + 8], mid=mid)

    KV, OD = 48, 160

    def kvf_loads():
        for hd in range(2):
            for sg in range(2):
                b = KV + 8 * hd + 4 * sg
                tok = a.I(f'buffer_load_dwordx4 v[{b}:{b+3}], v{vKF}, {S(R_WS)}, s{S_KF} offen offset:{hd * 1088 + sg * 544} sc1')
        return tok

    def kvf_check():
        a.I(f'v_max3_u32 v{t0}, v{KV}, v{KV+1}, v{KV+2}')
        a.I(f'v_max3_u32 v{t1}, v{KV+3}, v{KV+4}, v{KV+5}')
        a.I(f'v_max3_u32 v{t0}, v{t0}, v{KV+6}, v{KV+7}')
        a.I(f'v_max3_u32 v{t1}, v{t1}, v{KV+8}, v{KV+9}')
        a.I(f'v_max3_u32 v{t0}, v{t0}, v{KV+10}, v{KV+11}')
        a.I(f'v_max3_u32 v{t1}, v{t1}, v{KV+12}, v{KV+13}')
        a.I(f'v_max3_u32 v{t0}, v{t0}, v{KV+14}, v{KV+15}')
        a.I(f'v_max_u32 v{t0}, v{t0}, v{t1}')
        a.I(f'v_cmp_eq_u32 vcc, -1, v{t0}')

    def o_compute():
        for hd in range(2):
            D = OD + 16 * hd
            a.I(f'v_mfma_f32_32x32x16_bf16 v[{D}:{D+15}], v[{KV+8*hd}:{KV+8*hd+3}], v[{PHQ+8*hd}:{PHQ+8*hd+3}], 0')
            a.I(f'v_mfma_f32_32x32x16_bf16 v[{D}:{D+15}], v[{KV+8*hd+4}:{KV+8*hd+7}], v[{PHQ+8*hd+4}:{PHQ+8*hd+7}], v[{D}:{D+15}]')
        a.I(f's_lshl_b32 s{S_T0}, s{S_TB}, 5')
        a.I(f's_add_u32 s{S_T0}, s{S_T0}, s{S_HD0}')
        a.I(f's_lshl_b32 s{S_T0}, s{S_T0}, 11')
        a.I(f's_and_b32 s{S_T2}, s{S_W}, 1')
        a.I(f's_lshl_b32 s{S_T2}, s{S_T2}, 10')
        a.I(f's_add_u32 s{S_T0}, s{S_T0}, s{S_T2}')
        a.I(f's_add_u32 s{S_T0}, s{S_T0}, {OF_OFF}')
        for hd in range(2):
            D = OD + 16 * hd
            a.I(f'v_add_f32 v{D+8}, 0x358637bd, v{D+8}')
        for hd in range(2):
            D = OD + 16 * hd
            a.I(f'v_rcp_f32 v{D+8}, v{D+8}')
        for hd in range(2):
            D = OD + 16 * hd
            for i in range(4):
                a.I(f'v_pk_mul_f32 v[{D+2*i}:{D+2*i+1}], v[{D+2*i}:{D+2*i+1}], v[{D+8}:{D+9}] op_sel_hi:[1,0]')
            for i in range(4):
                a.I(f'v_cvt_pk_bf16_f32 v{D+12+i}, v{D+2*i}, v{D+2*i+1}')
            a.I(f'buffer_store_dwordx4 v[{D+12}:{D+15}], v{vL16}, {S(R_WS)}, s{S_T0} offen offset:{hd * 2048} sc1')

    def o_try(tok):
        a.lock()
        a.wait_vm(tok)
        save = a.vm_issued
        kvf_check()
        a.I('s_cbranch_vccnz L_OTRY')
        o_compute()
        a.I(f's_mov_b32 s{S_OD}, 1')
        a.vm_issued = save
        a.label('L_OTRY')
        a.unlock()

    def o_flag_if_done(name, mark):
        a.lock()
        save = a.vm_issued
        a.I(f's_cmp_eq_u32 s{S_OD}, 0')
        a.I(f's_cbranch_scc1 {name}')
        a.wait_vm(mark)
        flag_set(a, 2)
        a.vm_issued = save
        a.label(name)
        a.unlock()

    def o_blocking():
        a.lock()
        save = a.vm_issued
        a.I(f's_cmp_lg_u32 s{S_OD}, 0')
        a.I('s_cbranch_scc1 L_OB_DONE')
        a.I(f's_mov_b32 s{S_SPIN}, 0')
        a.label('L_OB')
        kvf_loads()
        a.I(f's_add_u32 s{S_SPIN}, s{S_SPIN}, 1')
        a.I('s_waitcnt vmcnt(0)')
        kvf_check()
        a.I('s_cbranch_vccz L_OB_OK')
        a.I(f's_cmp_gt_u32 s{S_SPIN}, 0x8000')
        a.I('s_cbranch_scc1 L_OB_OK')
        a.I('s_sleep 6')
        a.I('s_branch L_OB')
        a.label('L_OB_OK')
        if STAMPS:
            a.I(f'v_writelane_b32 v{vSTAMP}, s{S_SPIN}, 44')
        o_compute()
        a.I('s_waitcnt vmcnt(0)')
        flag_set(a, 2)
        a.vm_issued = save
        a.label('L_OB_DONE')
        a.unlock()

    CFB = (72, 160)

    def c_reads(n):
        st, kbl = divmod(n, 2)
        sl = st % 4
        bi, bo = sl // 2, (sl % 2) * CST
        b = CFB[n & 1]
        L = []
        def ta(fb):
            o = bo + kbl * 6144
            return [f'ds_read_b64_tr_b16 v[{b+4*fb}:{b+4*fb+1}], v{vCR+3*bi+fb} offset:{o}',
                    f'ds_read_b64_tr_b16 v[{b+4*fb+2}:{b+4*fb+3}], v{vCR+3*bi+fb} offset:{o + 768}']
        L += ta(0)
        for db in range(4):
            L.append(f'ds_read_b128 v[{b+12+4*db}:{b+12+4*db+3}], v{vCB+bi} offset:{bo + db * 2048 + kbl * 1024}')
        L += ta(1) + ta(2)
        return L

    NBAR_COMMON = a.nbar
    print('barriers before the C split:', NBAR_COMMON)
    a.lock()
    a.I(f's_cmp_lg_u32 s{S_SPARE}, -1')
    a.I('s_cbranch_scc1 L_SKIPC')
    a.unlock()
    a.I('s_barrier')
    a.stamp()
    crt = {0: [a.I(t) for t in c_reads(0)]}
    fill = e_setup_list()
    for n in range(16):
        b = CFB[n & 1]
        R = c_reads(n + 1) if n + 1 < 16 else []
        crt[n + 1] = []
        newst = (n + 1) % 2 == 0 and n + 1 < 16
        k = 0
        for fb in range(3):
            for db in range(4):
                need = [2 + db, 7, 9][fb] if fb else 2 + db
                a.wait_lg(crt[n][need])
                D = 4 * (fb * 4 + db)
                c = '0' if n == 0 else f'v[{D}:{D+3}]'
                a.I(f'v_mfma_f32_16x16x32_bf16 v[{D}:{D+3}], v[{b+4*fb}:{b+4*fb+3}], v[{b+12+4*db}:{b+12+4*db+3}], {c}')
                if k == 0 and newst:
                    a.I('s_waitcnt lgkmcnt(0)')
                    a.I('s_barrier')
                if R and k < 10:
                    crt[n + 1].append(a.I(R.pop(0)))
                if fill:
                    a.I(fill.pop(0))
                k += 1
    a.stamp()
    XO = 72
    for db in range(4):
        for fb in range(2):
            D = 4 * (fb * 4 + db)
            a.I(f'v_cvt_pk_bf16_f32 v{XO+4*db+2*fb}, v{D}, v{D+1}')
            a.I(f'v_cvt_pk_bf16_f32 v{XO+4*db+2*fb+1}, v{D+2}, v{D+3}')
    for db in range(4):
        D = 4 * (8 + db)
        a.I(f'v_cvt_pk_bf16_f32 v{XO+16+2*db}, v{D}, v{D+1}')
        a.I(f'v_cvt_pk_bf16_f32 v{XO+16+2*db+1}, v{D+2}, v{D+3}')
    a.I(f's_lshl_b32 s{S_T0}, s{S_TAU}, 2')
    a.I(f's_add_u32 s{S_T0}, s{S_T0}, s{S_W}')
    a.I(f's_lshl_b32 s{S_T0}, s{S_T0}, 2')
    a.I(f's_add_u32 s{S_T0}, s{S_T0}, s{S_KQ}')
    a.I(f's_mul_i32 s{S_T0}, s{S_T0}, 6144')
    a.I(f's_add_u32 s{S_T0}, s{S_T0}, {XP_OFF}')
    a.I(f's_add_u32 s{S_T1}, s{S_T0}, 4096')
    for k in range(6):
        so = f's{S_T0} offen offset:{k * 1024}' if k < 4 else f's{S_T1} offen offset:{(k - 4) * 1024}'
        tokX = a.I(f'buffer_store_dwordx4 v[{XO+4*k}:{XO+4*k+3}], v{vL16}, {S(R_WS)}, {so} sc1')
    a.stamp()
    a.I('s_branch L_AFTERC')
    a.label('L_SKIPC')
    save = a.vm_issued
    a.I(f'v_lshlrev_b32 v{vPOFF}, 5, v{l7}')
    poll_issue(a, '0')
    for t in e_setup_list():
        a.I(t)
    a.I(f's_lshl_b32 s{S_T2}, s{S_W}, 4')
    a.I(f's_add_u32 s{S_K1}, s{S_SPARE}, s{S_T2}')
    a.I(f's_lshl_b32 s{S_K3}, s{S_K1}, 10')
    a.I(f's_add_u32 s{S_K3}, s{S_K3}, {KVP_OFF}')
    vQ = 67
    a.I(f's_mov_b32 s{S_T0}, 34816')
    a.I(f'v_mul_u32_u24 v{vQ}, s{S_T0}, v{l31}')
    a.I(f'v_mul_u32_u24 v{t0}, 1020, v{hh}')
    a.I(f'v_add_u32 v{vQ}, v{vQ}, v{t0}')
    poll_check(a, None, '0', 32, 'L_F1R', 4)
    a.I('s_barrier')
    a.I(f's_cmp_ge_u32 s{S_K1}, 34')
    a.I('s_cbranch_scc1 L_RDONE')
    a.I(f's_mov_b32 s{S_SPIN}, 0')
    a.stamp_at(40)
    a.label('L_RPOLL')
    a.I(f'buffer_load_dword v{vPOLL}, v{vQ}, {S(R_WS)}, s{S_K3} offen sc1')
    a.I(f's_add_u32 s{S_SPIN}, s{S_SPIN}, 1')
    a.I(f's_cmp_gt_u32 s{S_SPIN}, 0x8000')
    a.I('s_cbranch_scc1 L_RPASS')
    a.I('s_waitcnt vmcnt(0)')
    a.I(f'v_cmp_eq_u32 vcc, -1, v{vPOLL}')
    a.I('s_cbranch_vccz L_RPASS')
    a.I('s_sleep 2')
    a.I('s_branch L_RPOLL')
    a.label('L_RPASS')
    a.I('s_waitcnt vmcnt(0)')
    a.stamp_at(41)
    a.vm_issued = 0
    a.I(f's_mov_b32 s{S_K2}, s{S_K3}')
    rregs = [16 + 4 * k for k in range(12)] + [72 + 4 * k for k in range(12)] + [160 + 4 * k for k in range(8)]
    rt = {}
    for i in range(32):
        b = rregs[i]
        rt[i] = a.I(f'buffer_load_dwordx4 v[{b}:{b+3}], v{vL16}, {S(R_WS)}, s{S_K2} offen sc1')
        a.I(f's_add_u32 s{S_K2}, s{S_K2}, 34816')
    for k in range(8):
        a.I(f'v_mov_b32 v{k}, 0')
    a.I('v_mov_b32 v8, 0x3f80')
    a.I('v_mov_b32 v9, 0x3f800000')
    for i in range(32):
        if i % 4 == 0:
            a.wait_vm(rt[i + 3])
        b = rregs[i]
        for k in range(4):
            a.I(f'v_dot2c_f32_bf16 v{2*k}, v8, v{b+k}')
            a.I(f'v_dot2c_f32_bf16 v{2*k+1}, v9, v{b+k}')
    a.I('v_add_f32 v10, v0, v2')
    a.I('v_add_f32 v11, v4, v6')
    a.I('v_cmp_u_f32 vcc, v10, v11')
    a.I('s_cbranch_vccz L_RGOOD')
    a.I(f's_add_u32 s{S_SPIN}, s{S_SPIN}, 0x400')
    a.I(f's_cmp_gt_u32 s{S_SPIN}, 0x8000')
    a.I('s_cbranch_scc0 L_RPASS')
    a.label('L_RGOOD')
    a.stamp_at(42)
    for k in range(4):
        a.I(f'v_cvt_pk_bf16_f32 v{8+k}, v{2*k}, v{2*k+1}')
    a.I(f's_lshl_b32 s{S_T1}, s{S_K1}, 10')
    a.I(f's_add_u32 s{S_T1}, s{S_T1}, {KVF_OFF}')
    a.I(f'buffer_store_dwordx4 v[8:11], v{vL16}, {S(R_WS)}, s{S_T1} offen sc1')
    a.label('L_RDONE')
    a.I('s_waitcnt vmcnt(0)')
    a.vm_issued = save
    a.label('L_AFTERC')
    SMT = 96

    def xflag():
        a.wait_vm(tokX)
        flag_set(a, 3)

    q_path(mid=lambda: f1_issue(a, False))
    xflag()
    a.stamp()
    a.collect()
    a.I(f'v_lshlrev_b32 v{vPOFF}, 5, v{l7}')
    a.I('s_waitcnt lgkmcnt(0)')
    f1_check(a, False, 'L_F1B')
    a.I('s_barrier')
    a.stamp()
    a.stamp()
    omark = a.vm_issued
    a.stamp()
    a.I(f's_cmp_lg_u32 s{S_SPARE}, -1')
    a.I('s_cbranch_scc1 L_RED_DONE')
    vXS, vBi, BI, aSt, TG, BU = vL16, 101, 102, 108, 109, 110
    a.I(f'v_lshlrev_b32 v{vBi}, 3, v{gq}')
    a.I(f'v_bfe_u32 v{t0}, v{vL}, 4, 1')
    a.I(f'v_lshlrev_b32 v{aSt}, 4, v{i16}')
    a.I(f'v_lshl_add_u32 v{aSt}, v{t0}, 9, v{aSt}')
    a.I(f'v_lshl_add_u32 v{aSt}, v{hh}, 11, v{aSt}')
    srd(a, R_HF, P_B1, 2752)
    a.I(f's_mul_i32 s{S_T0}, s1, 96')
    for fb in range(3):
        tokB = a.I(f'buffer_load_dwordx2 v[{BI+2*fb}:{BI+2*fb+1}], v{vBi}, {S(R_HF)}, s{S_T0} offen offset:{fb * 32}')
    a.I(f's_lshl_b32 s{S_T0}, s{S_TAU}, 2')
    a.I(f's_add_u32 s{S_T0}, s{S_T0}, s{S_KQ}')
    a.I(f's_mul_i32 s{S_K3}, s{S_T0}, {4 * FW}')
    a.I(f's_add_u32 s{S_K3}, s{S_K3}, {FLX_OFF}')
    a.I(f's_mul_i32 s{S_K1}, s{S_T0}, {4 * 6144}')
    a.I(f's_add_u32 s{S_K1}, s{S_K1}, {XP_OFF}')
    a.I(f's_lshr_b32 s{S_T1}, s{S_W}, 1')
    a.I(f's_lshl_b32 s{S_T1}, s{S_T1}, 10')
    a.I(f's_and_b32 s{S_T2}, s{S_W}, 1')
    a.I(f's_lshl_b32 s{S_T2}, s{S_T2}, 3')
    a.I(f's_add_u32 s{S_K2}, s{S_K1}, s{S_T1}')
    a.I(f's_add_u32 s{S_K2}, s{S_K2}, s{S_T2}')
    a.I(f's_add_u32 s{S_K2}, s{S_K2}, 4096')
    a.I(f's_lshl_b32 s{S_T1}, s{S_W}, 10')
    a.I(f's_add_u32 s{S_K1}, s{S_K1}, s{S_T1}')
    a.I(f'v_mul_u32_u24 v{vPOFF}, {FW}, v{c4}')
    save = a.vm_issued
    a.I(f's_mov_b32 s{S_SPIN}, 0')
    a.label('L_FX')
    a.I(f'buffer_load_dword v{t2}, v{vPOFF}, {S(R_WS)}, s{S_K3} offen sc1')
    a.I(f's_cmp_lg_u32 s{S_OD}, 0')
    a.I('s_cbranch_scc1 L_FX_NOO')
    kvf_loads()
    a.I('s_waitcnt vmcnt(4)')
    a.I(f'v_cmp_ne_u32 vcc, 0, v{t2}')
    a.I('s_cbranch_vccz L_FX_OK')
    a.I('s_waitcnt vmcnt(0)')
    kvf_check()
    a.I('s_cbranch_vccnz L_FX_AGAIN')
    o_compute()
    a.I(f's_mov_b32 s{S_OD}, 1')
    a.I('s_waitcnt vmcnt(0)')
    flag_set(a, 2)
    a.I('s_branch L_FX')
    a.label('L_FX_NOO')
    a.I('s_waitcnt vmcnt(0)')
    a.I(f'v_cmp_ne_u32 vcc, 0, v{t2}')
    a.I('s_cbranch_vccz L_FX_OK')
    a.label('L_FX_AGAIN')
    a.I(f's_add_u32 s{S_SPIN}, s{S_SPIN}, 1')
    a.I(f's_cmp_gt_u32 s{S_SPIN}, 0x20000')
    a.I('s_cbranch_scc1 L_FX_OK')
    a.I(f's_sleep {opt("slp", 4)}')
    a.I('s_branch L_FX')
    a.label('L_FX_OK')
    a.vm_issued = save
    a.stamp()
    XL = 72
    for p in range(4):
        a.I(f'buffer_load_dwordx4 v[{XL+6*p}:{XL+6*p+3}], v{vXS}, {S(R_WS)}, s{S_K1} offen sc1')
        tokXL = a.I(f'buffer_load_dwordx2 v[{XL+6*p+4}:{XL+6*p+5}], v{vXS}, {S(R_WS)}, s{S_K2} offen sc1')
        if p < 3:
            a.I(f's_add_u32 s{S_K1}, s{S_K1}, 6144')
            a.I(f's_add_u32 s{S_K2}, s{S_K2}, 6144')
    a.I(f's_lshr_b32 s{S_T1}, s0, 2')
    a.I(f's_mul_i32 s{S_K3}, s{S_T1}, {UF_DT}')
    a.I(f's_mul_i32 s{S_T1}, s1, 6144')
    a.I(f's_add_u32 s{S_K3}, s{S_K3}, s{S_T1}')
    a.I(f's_bfe_u32 s{S_T1}, s0, 0x10001')
    a.I(f's_lshl_b32 s{S_T1}, s{S_T1}, 10')
    a.I(f's_add_u32 s{S_K3}, s{S_K3}, s{S_T1}')
    a.I(f's_and_b32 s{S_T1}, s0, 1')
    a.I(f's_lshl_b32 s{S_T1}, s{S_T1}, 8')
    a.I(f's_add_u32 s{S_K3}, s{S_K3}, s{S_T1}')
    a.I(f's_add_u32 s{S_K3}, s{S_K3}, {UF_OFF}')
    a.I(f's_add_u32 s{S_T0}, s{S_K3}, 4096')
    a.I(f's_mov_b32 s{S_SOX}, {GK2}')
    a.I(f'v_mov_b32 v{TG}, {GK1}')
    RD = 0
    J3 = range(3)
    for jj in J3:
        for k in range(2):
            a.I(f'v_lshlrev_b32 v{BU+4*jj+2*k}, 16, v{BI+2*jj+k}')
            a.I(f'v_and_b32 v{BU+4*jj+2*k+1}, 0xffff0000, v{BI+2*jj+k}')
    a.wait_vm(tokXL)
    for p in range(4):
        for jj in J3:
            b = RD + 16 * jj + 4 * p
            for k in range(2):
                src = XL + 6 * p + 2 * jj + k
                a.I(f'v_lshlrev_b32 v{b+2*k}, 16, v{src}')
                a.I(f'v_and_b32 v{b+2*k+1}, 0xffff0000, v{src}')
    for jj in J3:
        b = RD + 16 * jj
        for k in range(2):
            a.I(f'v_pk_add_f32 v[{b+2*k}:{b+2*k+1}], v[{b+2*k}:{b+2*k+1}], v[{b+4+2*k}:{b+4+2*k+1}]')
            a.I(f'v_pk_add_f32 v[{b+8+2*k}:{b+8+2*k+1}], v[{b+8+2*k}:{b+8+2*k+1}], v[{b+12+2*k}:{b+12+2*k+1}]')
    for jj in J3:
        b = RD + 16 * jj
        for k in range(2):
            a.I(f'v_pk_add_f32 v[{b+2*k}:{b+2*k+1}], v[{b+2*k}:{b+2*k+1}], v[{b+8+2*k}:{b+8+2*k+1}]')
    for jj in J3:
        b = RD + 16 * jj
        for k in range(2):
            a.I(f'v_pk_add_f32 v[{b+2*k}:{b+2*k+1}], v[{b+2*k}:{b+2*k+1}], v[{BU+4*jj+2*k}:{BU+4*jj+2*k+1}]')
    for jj in J3:
        b = RD + 16 * jj
        for k in range(2):
            a.I(f'v_pk_mul_f32 v[{b+4+2*k}:{b+4+2*k+1}], v[{b+2*k}:{b+2*k+1}], v[{b+2*k}:{b+2*k+1}]')
    for jj in J3:
        b = RD + 16 * jj
        for i in range(4):
            a.I(f'v_fma_f32 v{b+4+i}, v{b+4+i}, s{S_SOX}, v{TG}')
    for jj in J3:
        b = RD + 16 * jj
        for k in range(2):
            a.I(f'v_pk_mul_f32 v[{b+4+2*k}:{b+4+2*k+1}], v[{b+4+2*k}:{b+4+2*k+1}], v[{b+2*k}:{b+2*k+1}]')
    for jj in J3:
        b = RD + 16 * jj
        for i in range(4):
            a.I(f'v_exp_f32 v{b+4+i}, v{b+4+i}')
    for jj in J3:
        b = RD + 16 * jj
        for i in range(4):
            a.I(f'v_add_f32 v{b+4+i}, 1.0, v{b+4+i}')
    for jj in J3:
        b = RD + 16 * jj
        for i in range(4):
            a.I(f'v_rcp_f32 v{b+4+i}, v{b+4+i}')
    for jj in J3:
        b = RD + 16 * jj
        for k in range(2):
            a.I(f'v_pk_mul_f32 v[{b+2*k}:{b+2*k+1}], v[{b+2*k}:{b+2*k+1}], v[{b+4+2*k}:{b+4+2*k+1}]')
    PO = 48
    for jj in J3:
        b = RD + 16 * jj
        a.I(f'v_cvt_pk_bf16_f32 v{PO+2*jj}, v{b}, v{b+1}')
        a.I(f'v_cvt_pk_bf16_f32 v{PO+2*jj+1}, v{b+2}, v{b+3}')
    a.I(f'v_mov_b32 v{PO+6}, v{PO+4}')
    a.I(f'v_mov_b32 v{PO+7}, v{PO+5}')
    for k in range(2):
        a.I(f'v_permlane32_swap_b32 v{PO+k}, v{PO+2+k}')
    for k in range(2):
        a.I(f'v_permlane32_swap_b32 v{PO+4+k}, v{PO+6+k}')
    a.I(f'buffer_store_dwordx4 v[{PO}:{PO+3}], v{aSt}, {S(R_WS)}, s{S_K3} offen sc1')
    a.I('s_mov_b32 exec_hi, 0')
    tokU = a.I(f'buffer_store_dwordx4 v[{PO+4}:{PO+7}], v{aSt}, {S(R_WS)}, s{S_T0} offen sc1')
    a.I('s_mov_b32 exec_hi, -1')
    a.stamp()
    a.collect()
    a.wait_vm(tokU)
    flag_set(a, 1)
    a.stamp()
    a.I('s_branch L_JOIN')

    a.label('L_RED_DONE')
    a.I('s_waitcnt vmcnt(0)')

    a.label('L_JOIN')
    a.vm_issued = 0
    for k in range(TSLOTS):
        tT[k] = -1000
    o_blocking()
    a.stamp()
    XR, BR = 104, 112
    srd(a, R_HF, P_B2, 4096)
    a.I(f's_lshl_b32 s{S_T2}, s{S_TB}, 7')
    a.I(f's_mov_b32 s{S_K1}, 32768')
    a.I(f'buffer_load_dwordx4 v[{XR}:{XR+3}], v{vXO}, {S(R_X)}, 0 offen')
    a.I(f'buffer_load_dwordx4 v[{XR+4}:{XR+7}], v{vXO}, {S(R_X)}, s{S_K1} offen')
    a.I(f'buffer_load_ushort v{BR}, v{vBO}, {S(R_HF)}, s{S_T2} offen')
    a.I(f'buffer_load_ushort v{BR+1}, v{vBO}, {S(R_HF)}, s{S_T2} offen offset:64')
    a.stamp()
    a.collect()

    DEP = 7
    FRB = 160
    TB_ = 84

    def f_issue(n):
        r = FRB + 8 * (n % DEP)
        m = n if n < NP2 else n - NP2
        vb = vF2 if n < NP2 else vF1
        o = (m & 1) * 2048
        a.I(f's_mov_b32 s{S_SOF}, {(m >> 1) * 4096}')
        a.I(f'buffer_load_dwordx4 v[{r}:{r+3}], v{vb}, {S(R_WS)}, s{S_SOF} offen offset:{o} sc1')
        tF[n] = a.I(f'buffer_load_dwordx4 v[{r+4}:{r+7}], v{vb}, {S(R_WS)}, s{S_SOF} offen offset:{o + 1024} sc1')

    def treads(n):
        b = TB_ + 8 * (n & 1)
        sl = n % TSLOTS
        if sl < THI:
            regs, o = (vR2, vR3), sl * 2048
        elif sl - THI < 7:
            regs, o = (vR0, vR1), (sl - THI) * 8192
        else:
            regs, o = (vR4, vR5), (sl - THI - 7) * 8192
        L = []
        for cb, ad in enumerate(regs):
            L.append(f'ds_read_b64_tr_b16 v[{b+4*cb}:{b+4*cb+1}], v{ad} offset:{o}')
            L.append(f'ds_read_b64_tr_b16 v[{b+4*cb+2}:{b+4*cb+3}], v{ad} offset:{o + 1024}')
        return L

    FLEAD = opt('flead', 5)
    a.I(f's_mul_i32 s{S_T0}, s{S_CG}, {4 * FS}')
    a.I(f's_mul_i32 s{S_T1}, s{S_W}, 22')
    a.I(f's_mul_i32 s{S_T1}, s{S_T1}, 21846')
    a.I(f's_lshr_b32 s{S_T1}, s{S_T1}, 16')
    a.I(f's_mul_i32 s{S_T1}, s{S_T1}, {FW}')
    a.I(f's_add_u32 s{S_T0}, s{S_T0}, s{S_T1}')
    a.I(f's_add_u32 s{S_K2}, s{S_T0}, {FL4_OFF}')
    a.I(f'v_bfe_u32 v{t0}, v{vL}, 3, 2')
    a.I(f'v_mul_u32_u24 v{t0}, {FS}, v{t0}')
    a.I(f'v_mul_u32_u24 v{vPOFF}, {FW}, v{l7}')
    a.I(f'v_add_u32 v{vPOFF}, v{vPOFF}, v{t0}')
    flag_wait(a, S_K2, 'L_F4', sleep=opt('slp', 4))
    a.stamp()
    a.I(f's_mul_i32 s{S_T1}, s{S_TB}, {FS}')
    a.I(f's_mul_i32 s{S_T0}, s{S_W}, {8 * FW}')
    a.I(f's_add_u32 s{S_T1}, s{S_T1}, s{S_T0}')
    a.I(f's_add_u32 s{S_K2}, s{S_T1}, {FL5_OFF}')
    a.I(f'v_mul_u32_u24 v{vPOFF}, {FW}, v{l7}')
    nf = 0
    while nf < FLEAD:
        f_issue(nf)
        nf += 1
    a.I('s_barrier')
    for t in treads(0):
        a.I(t)
    tokP5 = None
    for n in range(NS):
        if n == NP2:
            a.stamp()
        w = tF[n]
        if n + 1 < NS:
            w = max(w, tT[n + 1])
        a.wait_vm(w)
        a.I('s_waitcnt lgkmcnt(0)')
        R = treads(n + 1) if n + 1 < NS else []
        b = TB_ + 8 * (n & 1)
        r = FRB + 8 * (n % DEP)
        k = 0
        for i in range(2):
            for j in range(2):
                if n >= NP2:
                    D = 16 * (2 * i + j)
                    a.I(f'v_mfma_f32_32x32x16_bf16 v[{D}:{D+15}], v[{b+4*i}:{b+4*i+3}], v[{r+4*j}:{r+4*j+3}], v[{D}:{D+15}]')
                else:
                    D = 16 * (2 * j + i)
                    c = '0' if n == 0 else f'v[{D}:{D+15}]'
                    a.I(f'v_mfma_f32_32x32x16_bf16 v[{D}:{D+15}], v[{r+4*j}:{r+4*j+3}], v[{b+4*i}:{b+4*i+3}], {c}')
                if k < 2:
                    for t in R[2 * k:2 * k + 2]:
                        a.I(t)
                if k == 1 and nf < NS:
                    if nf == NP2:
                        flag_wait(a, S_K2, 'L_F5', sleep=opt('slp', 4), tok=tokP5)
                        a.stamp()
                    f_issue(nf)
                    nf += 1
                if k == 2 and n + TSLOTS < NS:
                    t_issue(n + TSLOTS)
                k += 1
        if nf == NP2 - 3:
            tokP5 = a.I(f'buffer_load_dword v{vPOLL}, v{vPOFF}, {S(R_WS)}, s{S_K2} offen sc1')
    a.stamp()
    aW = 64
    srd(a, R_OUT, P_OUT, 2048 * 1024)
    a.I(f's_mul_i32 s{S_T0}, s{S_W}, 17408')
    a.I(f'v_mul_u32_u24 v{aW}, 272, v{l31}')
    a.I(f'v_lshl_add_u32 v{aW}, v{hh}, 4, v{aW}')
    a.I(f'v_add_u32 v{aW}, s{S_T0}, v{aW}')
    a.I('s_barrier')
    for fb in range(2):
        for cb in range(2):
            D = 16 * (2 * fb + cb)
            for q in range(4):
                a.I(f'ds_write_b128 v{aW}, v[{D+4*q}:{D+4*q+3}] offset:{cb * 32 * 272 + fb * 128 + q * 32}')
    XU = 66
    for ps in range(2):
        a.I(f'v_lshlrev_b32 v{BR+ps}, 16, v{BR+ps}')
        for k in range(4):
            x = XR + 4 * ps + k
            a.I(f'v_lshlrev_b32 v{XU+8*ps+2*k}, 16, v{x}')
            a.I(f'v_and_b32 v{XU+8*ps+2*k+1}, 0xffff0000, v{x}')
    for ps in range(2):
        sel = 'op_sel_hi:[1,0]' if ps == 0 else 'op_sel:[0,1] op_sel_hi:[1,1]'
        for k in range(4):
            r = XU + 8 * ps + 2 * k
            a.I(f'v_pk_add_f32 v[{r}:{r+1}], v[{r}:{r+1}], v[{BR}:{BR+1}] {sel}')
    a.I('s_waitcnt lgkmcnt(0)')
    a.I('s_barrier')
    a.stamp()
    a.collect()
    for ps in range(2):
        for p in range(4):
            for hf in range(2):
                b = 32 * ps + 8 * p + 4 * hf
                a.I(f'ds_read_b128 v[{b}:{b+3}], v{aR} offset:{p * 17408 + ps * 8704 + hf * 16}')
    for ps in range(2):
        a.I(f's_waitcnt lgkmcnt({8 - 8 * ps})')
        b = 32 * ps
        for k in range(4):
            a.I(f'v_pk_add_f32 v[{b+2*k}:{b+2*k+1}], v[{b+2*k}:{b+2*k+1}], v[{b+8+2*k}:{b+8+2*k+1}]')
            a.I(f'v_pk_add_f32 v[{b+16+2*k}:{b+16+2*k+1}], v[{b+16+2*k}:{b+16+2*k+1}], v[{b+24+2*k}:{b+24+2*k+1}]')
        for k in range(4):
            a.I(f'v_pk_add_f32 v[{b+2*k}:{b+2*k+1}], v[{b+2*k}:{b+2*k+1}], v[{b+16+2*k}:{b+16+2*k+1}]')
        for k in range(4):
            r = XU + 8 * ps + 2 * k
            a.I(f'v_pk_add_f32 v[{b+2*k}:{b+2*k+1}], v[{b+2*k}:{b+2*k+1}], v[{r}:{r+1}]')
        for k in range(4):
            a.I(f'v_cvt_pk_bf16_f32 v{b+16+k}, v{b+2*k}, v{b+2*k+1}')
        so = '0' if ps == 0 else f's{S_K1}'
        a.I(f'buffer_store_dwordx4 v[{b+16}:{b+19}], v{vXO}, {S(R_OUT)}, {so} offen')
    if STAMPS:
        a.stamp()
        a.I('s_waitcnt vmcnt(0)')
        a.stamp()
        a.stamp(rt=True)
        a.collect()
        a.I('s_lshl_b32 s3, s2, 2')
        a.I(f's_add_u32 s3, s3, s{S_W}')
        a.I('s_lshl_b32 s3, s3, 8')
        a.I(f's_add_u32 s3, s3, {STAMP_OFF}')
        a.I(f'v_lshlrev_b32 v{t0}, 2, v{vL}')
        a.I(f'buffer_store_dword v{vSTAMP}, v{t0}, {S(R_WS)}, s3 offen')
        print('stamps:', a.nstamp)
    a.label(end)
    a.I('s_endpgm')


    a.label('L_LOAD')
    a.vm_issued = 0
    vXD0, vXD1, vWD = 1, 2, 3
    vCT, vCFd = 4, 7
    lTD0, lTD1 = 9, 10
    a.I(f's_lshl_b32 s{S_T0}, s{S_TB}, 16')
    a.I(f'v_xor_b32 v{t0}, v{l7}, v{gq}')
    a.I(f'v_lshlrev_b32 v{t0}, 4, v{t0}')
    a.I(f'v_lshl_add_u32 v{t0}, v{l3}, 10, v{t0}')
    a.I(f'v_add_u32 v{vXD0}, s{S_T0}, v{t0}')
    a.I(f'v_xor_b32 v{vXD1}, 64, v{vXD0}')
    a.I(f'v_add_u32 v{vXD1}, {8192 - 1024}, v{vXD1}')
    a.I(f's_lshl_b32 s{S_T1}, s{S_CG}, 7')
    a.I(f'v_and_b32 v{t0}, 1, v{gq}')
    a.I(f'v_lshlrev_b32 v{t0}, 2, v{t0}')
    a.I(f'v_xor_b32 v{t0}, v{l7}, v{t0}')
    a.I(f'v_lshlrev_b32 v{t0}, 4, v{t0}')
    a.I(f'v_mul_u32_u24 v{t1}, 3072, v{l3}')
    a.I(f'v_add3_u32 v{vWD}, v{t0}, v{t1}, s{S_T1}')
    a.I(f's_lshl_b32 s{S_T1}, s{S_TB}, 7')
    a.I(f'v_lshl_add_u32 v{lTD0}, v{l3}, 12, v{t0}')
    a.I(f'v_add_u32 v{lTD0}, s{S_T1}, v{lTD0}')
    a.I(f'v_add_u32 v{lTD1}, {8 * 4096 - 1024}, v{lTD0}')
    a.I('s_waitcnt lgkmcnt(0)')
    srd(a, R_X, P_X, 2048 * 1024)
    srd(a, R_W, P_WQKV, 512 * 3072)
    ltok = {}

    def l_stageB(st):
        slot = st % 4
        for w in range(4):
            a.I(f's_mov_b32 s{S_SOX}, {st * 128 + w * 16384}')
            a.I(f's_mov_b32 m0, {XS(slot) + w * 2048}')
            a.I(f'buffer_load_dwordx4 v{vXD0}, {S(R_X)}, s{S_SOX} offen lds')
            a.I(f'buffer_load_dwordx4 v{vXD1}, {S(R_X)}, s{S_SOX} offen offset:1024 lds')
            for p in range(2):
                a.I(f's_mov_b32 s{S_SOX}, {st * 196608 + w * 49152 + p * 24576}')
                a.I(f's_mov_b32 m0, {WSL(slot) + w * 6144 + p * 3072}')
                for seg in range(3):
                    off = f' offset:{seg * 1024}' if seg else ''
                    ltok[st] = a.I(f'buffer_load_dwordx4 v{vWD}, {S(R_W)}, s{S_SOX} offen{off} lds')

    l_stageB(0)
    srd(a, R_TMP, P_WPHI, 16384)
    a.I(f's_lshl_b32 s{S_T0}, s{S_CG}, 11')
    a.I(f's_mov_b32 m0, {WPHI_L}')
    a.I(f'buffer_load_dwordx4 v{vL16}, {S(R_TMP)}, s{S_T0} offen lds')
    ltok[0] = a.I(f'buffer_load_dwordx4 v{vL16}, {S(R_TMP)}, s{S_T0} offen offset:1024 lds')
    LPRE = opt('lpre', 2)
    for st in range(1, LPRE):
        l_stageB(st)
    a.I(f's_lshr_b32 s{S_KQ}, s{S_XCD}, 1')
    a.I(f's_and_b32 s{S_T0}, s{S_XCD}, 1')
    a.I(f's_mul_i32 s{S_TAU}, s{S_T0}, 30')
    a.I(f's_add_u32 s{S_TAU}, s{S_TAU}, s{S_J}')
    a.I(f's_lshr_b32 s{S_FT}, s{S_TAU}, 2')
    a.I(f's_and_b32 s{S_DT}, s{S_TAU}, 3')
    a.wait_vm(ltok[0])
    a.I('s_barrier')
    nxt = LPRE
    for st in range(1, 8):
        while nxt <= min(7, st + 2):
            l_stageB(nxt)
            nxt += 1
        a.wait_vm(ltok[st])
        a.I('s_barrier')
    a.I(f's_mul_i32 s{S_T0}, s{S_FT}, 192')
    srd(a, R_W1, P_W1, 0, off_sgpr=S_T0)
    a.I(f's_sub_u32 s{R_W1+2}, {2048 * 2752}, s{S_T0}')
    srd(a, R_HF, P_WS, 2 * MB)
    srd(a, R_DBG, P_DBG, 256)
    srd(a, R_OUT, P_W2, 1376 * 4096)
    a.I(f's_mul_i32 s{S_K1}, s{S_KQ}, {512 * 2752}')
    a.I(f's_lshl_b32 s{S_T0}, s{S_DT}, 19')
    a.I(f's_lshl_b32 s{S_T1}, s{S_KQ}, 14')
    a.I(f's_add_u32 s{S_T0}, s{S_T0}, s{S_T1}')
    a.I(f'v_add_u32 v{vCFd}, s{S_T0}, v{vL16}')
    a.I(f'v_add_u32 v{vCFd+1}, {65536 - 2048}, v{vCFd}')
    for i in range(3):
        a.I(f'v_add_u32 v{t0}, {64 * i}, v{vL}')
        a.I(f'v_mul_u32_u24 v{t1}, 5462, v{t0}')
        a.I(f'v_lshrrev_b32 v{t1}, 16, v{t1}')
        a.I(f'v_mul_u32_u24 v{t2}, 12, v{t1}')
        a.I(f'v_sub_u32 v{t0}, v{t0}, v{t2}')
        a.I(f'v_bfe_u32 v{t2}, v{t1}, 3, 1')
        a.I(f'v_lshlrev_b32 v{t2}, 1, v{t2}')
        a.I(f'v_xor_b32 v{t0}, v{t0}, v{t2}')
        a.I(f'v_mul_u32_u24 v{t1}, 2752, v{t1}')
        a.I(f'v_lshl_add_u32 v{vCT+i}, v{t0}, 4, v{t1}')
        a.I(f'v_add_u32 v{vCT+i}, s{S_K1}, v{vCT+i}')
        if i:
            a.I(f'v_subrev_u32 v{vCT+i}, {1024 * i}, v{vCT+i}')
    a.I(f'v_and_b32 v{t0}, 1, v{vL}')
    a.I(f's_lshl_b32 s{S_T2}, s{S_KQ}, 1')
    a.I(f'v_add_lshl_u32 v{vPOFF}, v{t0}, s{S_T2}, 5')
    tokLP = poll_issue(a, '0')
    ctok = {}

    def l_cT(st):
        for w in range(4):
            a.I(f's_mov_b32 s{S_SOX}, {(st * 64 + w * 16) * 2752}')
            a.I(f's_mov_b32 m0, {(st % 4) * CST + w * 3072}')
            for i in range(3):
                off = f' offset:{i * 1024}' if i else ''
                ctok[st] = a.I(f'buffer_load_dwordx4 v{vCT+i}, {S(R_W1)}, s{S_SOX} offen{off} lds')

    def l_cF(st):
        for w in range(4):
            a.I(f's_mov_b32 s{S_SOX}, {st * 2048 + w * 131072}')
            a.I(f's_mov_b32 m0, {(st % 4) * CST + 12288 + w * 4096}')
            for i in range(4):
                off = f' offset:{i * 1024}' if i else ''
                ctok[st] = a.I(f'buffer_load_dwordx4 v{vCFd + (i >> 1)}, {S(R_HF)}, s{S_SOX} offen{off} sc1 lds')

    def l_eT(m, slp=0):
        for w in range(4):
            a.I(f's_mov_b32 s{S_SOX}, {(w * 22 + m) * 65536}')
            dst = THB + w * THI * 2048 + m * 2048 if m < THI else (m - THI) * 8192 + w * 2048
            a.I(f's_mov_b32 m0, {dst}')
            a.I(f'buffer_load_dwordx4 v{lTD0}, {S(R_OUT)}, s{S_SOX} offen lds')
            a.I(f'buffer_load_dwordx4 v{lTD1}, {S(R_OUT)}, s{S_SOX} offen offset:1024 lds')
            if slp:
                a.I(f's_sleep {slp}')

    a.I('s_barrier')
    a.I(f's_cmp_ge_u32 s{S_J}, 30')
    a.I('s_cbranch_scc1 L_LOAD_SP')
    poll_check(a, tokLP, '0', 32, 'L_LF1', 4)
    CPRE = opt('cpre', 3)
    for st in range(CPRE):
        l_cT(st)
        l_cF(st)
    a.I('s_barrier')
    for st in range(CPRE, 4):
        l_cT(st)
        l_cF(st)
    a.wait_vm(ctok[0])
    a.I('s_barrier')
    me = 0
    EPS = opt('eps', 3)
    for st in range(1, 8):
        if 4 <= st + 2 <= 7:
            l_cT(st + 2)
            l_cF(st + 2)
        elif st + 2 > 7:
            lim = THI + ((st - 5) * CST) // 8192
            for _ in range(EPS):
                if me < lim:
                    l_eT(me)
                    me += 1
        a.wait_vm(ctok[st])
        a.I('s_barrier')
    lim = THI + (3 * CST) // 8192
    me0 = me
    while me < lim:
        l_eT(me)
        me += 1
    a.I('s_branch L_LOAD_E')
    a.label('L_LOAD_SP')
    a.I('s_barrier')
    a.I('s_barrier')
    for m in range(lim):
        l_eT(m)
    a.label('L_LOAD_E')
    a.I('s_barrier')
    for m in range(lim, TSLOTS):
        l_eT(m)
    a.I('s_waitcnt vmcnt(0)')
    a.I('s_barrier')
    a.I('s_endpgm')

    a.label('L_HELP')
    hv0, hv1, hv2, hv3 = 1, 2, 3, 4
    a.I(f's_mov_b32 s{R_TMP+2}, L_HELP-L_PC')
    a.I(f's_mov_b32 s{R_TMP+3}, 0x20000')
    a.I('s_bfe_u32 s3, s2, 0x20003')
    a.I('s_lshl_b32 s3, s3, 13')
    a.I(f'v_lshlrev_b32 v{hv0}, 7, v{vL}')
    a.I(f'buffer_load_dword v{vDUM}, v{hv0}, {S(R_TMP)}, s3 offen')
    a.I('s_add_u32 s3, s3, 32768')
    a.I(f'buffer_load_dword v{vDUM}, v{hv0}, {S(R_TMP)}, s3 offen')
    a.I(f'v_lshrrev_b32 v{hv1}, 2, v{vL}')
    a.I(f'v_lshlrev_b32 v{hv1}, 10, v{hv1}')
    a.I(f'v_and_b32 v{hv2}, 3, v{vL}')
    a.I(f'v_lshl_add_u32 v{hv1}, v{hv2}, 7, v{hv1}')
    a.I(f'v_bfe_u32 v{hv3}, v{vL}, 2, 2')
    a.I(f'v_min_u32 v{hv3}, 2, v{hv3}')
    a.I(f'v_lshlrev_b32 v{hv3}, 10, v{hv3}')
    a.I(f'v_lshl_add_u32 v{hv2}, v{hv2}, 7, v{hv3}')
    a.I(f'v_lshrrev_b32 v{hv3}, 4, v{vL}')
    a.I(f'v_mul_u32_u24 v{hv3}, 3072, v{hv3}')
    a.I(f'v_add_u32 v{hv2}, v{hv2}, v{hv3}')
    a.I(f's_lshr_b32 s{S_FT}, s{S_XCD}, 1')
    a.I(f's_lshl_b32 s{S_K1}, s{S_FT}, 19')
    a.I(f's_lshl_b32 s{S_T2}, s{S_J}, 14')
    a.I(f's_add_u32 s{S_K1}, s{S_K1}, s{S_T2}')
    a.I(f's_mul_i32 s{S_K2}, s{S_J}, {8 * 3072}')
    a.I(f's_and_b32 s{S_T0}, s{S_XCD}, 1')
    a.I(f's_lshl_b32 s{S_T2}, s{S_T0}, 9')
    a.I(f's_add_u32 s{S_K2}, s{S_K2}, s{S_T2}')
    a.I(f'v_and_b32 v{hv3}, 15, v{vL}')
    a.I(f'v_lshlrev_b32 v{hv3}, 7, v{hv3}')
    a.I(f'v_min_u32 v{hv3}, 1532, v{hv3}')
    a.I(f'v_lshrrev_b32 v5, 4, v{vL}')
    a.I(f'v_mul_u32_u24 v5, 2752, v5')
    a.I(f'v_add_u32 v{hv3}, v{hv3}, v5')
    a.I(f's_lshl_b32 s{S_K3}, s{S_FT}, 9')
    a.I(f's_lshl_b32 s{S_T2}, s{S_J}, 4')
    a.I(f's_add_u32 s{S_K3}, s{S_K3}, s{S_T2}')
    a.I(f's_mul_i32 s{S_K3}, s{S_K3}, 2752')
    a.I(f's_mul_i32 s{S_T0}, s{S_T0}, 1344')
    a.I(f's_add_u32 s{S_K3}, s{S_K3}, s{S_T0}')
    a.I(f's_mul_i32 s{S_T1}, s2, {172 * 128}')
    a.I(f's_lshl_b32 s{S_T2}, s2, 11')
    a.I('s_waitcnt lgkmcnt(0)')
    srd(a, R_X, P_X, 2048 * 1024)
    srd(a, R_W, P_WQKV, 512 * 3072)

    def h_coop(hf):
        a.I(f'buffer_load_dword v{vDUM}, v{hv2}, {S(R_W)}, s{S_K2} offen')
        a.I(f's_add_u32 s{S_K2}, s{S_K2}, {4 * 3072}')
        a.I(f'buffer_load_dword v{vDUM}, v{hv1}, {S(R_X)}, s{S_K1} offen' + (' offset:512' if hf else ''))
        a.I(f'buffer_load_dword v{vDUM}, v{hv2}, {S(R_W)}, s{S_K2} offen')
        a.I(f's_add_u32 s{S_K2}, s{S_K2}, {252 * 3072}')

    def h_w1():
        a.I(f'buffer_load_dword v{vDUM}, v{hv3}, {S(R_W1)}, s{S_K3} offen')
        a.I(f's_add_u32 s{S_K3}, s{S_K3}, {4 * 2752}')

    def h_w2(k):
        a.I(f's_mov_b32 s{S_T0}, {k * 8192}')
        a.I(f'buffer_load_dword v{vDUM}, v{hv0}, {S(R_WS)}, s{S_T0} offen')

    def h_wo():
        a.I(f'buffer_load_dword v{vDUM}, v{hv0}, {S(R_HF)}, 0 offen')

    h_coop(0)
    srd(a, R_W1, P_W1, 2048 * 2752)
    srd(a, R_WS, P_W2, 172 * 128, off_sgpr=S_T1)
    srd(a, R_HF, P_WO, 2048, off_sgpr=S_T2)
    if opt('hsl', 24):
        a.I(f's_sleep {opt("hsl", 24)}')
    h_coop(1)
    sched = {int(k): v for k, v in (kv.split(':') for kv in os.environ.get('HSCHED', '4:a,5:a,6:a,7:a,8:b,9:cd,10:o').split(','))}

    def h_do(chs):
        for ch in chs:
            if ch == 'a':
                h_w1()
            elif ch == 'o':
                h_wo()
            else:
                h_w2('bcd'.index(ch))

    for nb in range(1, NBAR_COMMON + 1):
        a.I('s_barrier')
        h_do(sched.get(nb, ''))
    late = [nb for nb in sched if nb > NBAR_COMMON]
    if late:
        a.I(f's_cmp_ge_u32 s{S_J}, 30')
        a.I('s_cbranch_scc1 L_HELP_SP')
        for nb in range(NBAR_COMMON + 1, NBAR_COMMON + 9):
            a.I('s_barrier')
            h_do(sched.get(nb, ''))
        a.I('s_endpgm')
        a.label('L_HELP_SP')
        a.I('s_barrier')
        a.I('s_sleep 64')
        for nb in late:
            h_do(sched[nb])
    a.I('s_endpgm')


HEADER = """; Kernarg layout for this problem (96 bytes, ptrs only, base s[0:1]):
; @launch grid=(256,1,1) block=(384,1,1) lds=163840
.amdgcn_target "amdgcn-amd-amdhsa--gfx950"
"""


def main():
    out = sys.argv[1] if len(sys.argv) > 1 else f'cdna_kernels/{NAME}.s'
    a = K()
    gen(a)
    name = NAME + '_kernel'
    pad = '    s_nop 0\n' * 0
    txt = HEADER + f""".text
.globl {name}
.p2align 8
.type {name},@function
{name}:
{a.text()}{pad}.section .rodata,"a"
.p2align 6
.amdhsa_kernel {name}
  .amdhsa_next_free_vgpr 256
  .amdhsa_next_free_sgpr 102
  .amdhsa_accum_offset 256
  .amdhsa_group_segment_fixed_size 0
  .amdhsa_kernarg_size 96
  .amdhsa_user_sgpr_count 2
  .amdhsa_user_sgpr_kernarg_segment_ptr 1
  .amdhsa_system_sgpr_workgroup_id_x 1
  .amdhsa_float_denorm_mode_32 3
.end_amdhsa_kernel
"""
    open(out, 'w').write(txt)
    print('wrote', out, len(txt), 'bytes')


if __name__ == '__main__':
    main()
```
